```python
import torch

def _softmax(x, axis=-1):
    return torch.softmax(x, dim=axis)
def _gelu(x):
    return torch.nn.functional.gelu(x, approximate="tanh")
def _silu(x):
    return torch.nn.functional.silu(x)
def _sigmoid(x):
    return torch.sigmoid(x)
def _layernorm(x, axis=-1, eps=1e-5):
    m = x.mean(dim=axis, keepdim=True)
    v = x.var(dim=axis, keepdim=True, unbiased=False)
    return (x - m) / torch.sqrt(v + eps)
def _scatter_add(tgt, idx, src, axis=0):
    return tgt.clone().index_add_(axis, idx, src)
def _segment_sum(src, seg, n):
    out = torch.zeros((n,) + src.shape[1:], dtype=src.dtype)
    return out.index_add_(0, seg, src)
def _pad(x, pw):
    flat = tuple(v for pair in reversed(pw) for v in pair)
    return torch.nn.functional.pad(x, flat)

kernel_name = 'parallel_sum__ssm_conv_s4d__dense_activation_squared_relu__prompt'

def setup_inputs():

    _w = (lambda a: (lambda t: t.to(torch.bfloat16) if t.is_floating_point() else t)(torch.as_tensor(a)))
    def _A_setup():
        Bsz, L, D, N = 1, 2048, 512, 128
        return {
            "u": _w((lambda *s: torch.randn(*s, dtype=torch.bfloat16) * 0.05)(Bsz, L, D)),
            "log_A_real": _w((lambda *s: torch.randn(*s, dtype=torch.bfloat16) * 3.2)(D, N) * 0.5),
            "A_imag": _w((lambda *s: torch.randn(*s, dtype=torch.bfloat16) * 0.2)(D, N) * 3.14),
            "C_real": _w((lambda *s: torch.randn(*s, dtype=torch.bfloat16) * 3.2)(D, N) / N ** 0.5),
            "C_imag": _w((lambda *s: torch.randn(*s, dtype=torch.bfloat16) * 3.2)(D, N) / N ** 0.5),
            "log_dt": _w((lambda *s: torch.randn(*s, dtype=torch.bfloat16) * 0.2)(D) * 0.5 - 4.0),
            "D_skip": _w((lambda *s: torch.randn(*s, dtype=torch.bfloat16) * 0.4)(D)),
        }
    _A_in = _A_setup()

    def _B_setup():
        B, S, D, F = 1, 2048, 512, 1376
        return {
            "x": _w((lambda *s: torch.randn(*s, dtype=torch.bfloat16) * 0.05)(B, S, D)),
            "w1": _w((lambda *s: torch.randn(*s, dtype=torch.bfloat16) * 0.05)(D, F)),
            "b1": _w((lambda *s: torch.randn(*s, dtype=torch.bfloat16) * 0.2)(F)),
            "w2": _w((lambda *s: torch.randn(*s, dtype=torch.bfloat16) * 0.05)(F, D)),
            "b2": _w((lambda *s: torch.randn(*s, dtype=torch.bfloat16) * 0.8)(D)),
        }
    _B_in = _B_setup()

    return {
        "A_u": _A_in["u"],
        "A_log_A_real": _A_in["log_A_real"],
        "A_A_imag": _A_in["A_imag"],
        "A_C_real": _A_in["C_real"],
        "A_C_imag": _A_in["C_imag"],
        "A_log_dt": _A_in["log_dt"],
        "A_D_skip": _A_in["D_skip"],
        "B_x": _B_in["x"],
        "B_w1": _B_in["w1"],
        "B_b1": _B_in["b1"],
        "B_w2": _B_in["w2"],
        "B_b2": _B_in["b2"],
    }

def reference(A_u, A_log_A_real, A_A_imag, A_C_real, A_C_imag, A_log_dt, A_D_skip, B_x, B_w1, B_b1, B_w2, B_b2):
    def _A_ref(u, log_A_real, A_imag, C_real, C_imag, log_dt, D_skip):
        L = u.shape[1]
        dt = torch.exp(log_dt)
        A = -torch.exp(log_A_real) + 1j * A_imag
        C = (C_real + 1j * C_imag) * dt[:, None]
        pos = (lambda x, dt: x.to(dt))(torch.arange(L), log_dt.dtype)
        P = torch.exp((A * dt[:, None])[:, :, None] * pos[None, None, :])
        K = 2.0 * torch.einsum("dn,dnl->dl", C, P).real
        L2 = 2 * L
        u_t = (lambda x, *d: x.permute(*d))(u, 0, 2, 1)
        Kf = (lambda x, *a, **k: torch.fft.rfft(x.float(), *a, **k))(K, L2)
        Uf = (lambda x, *a, **k: torch.fft.rfft(x.float(), *a, **k))(u_t, L2)
        y = (lambda x, *a, **k: torch.fft.irfft(x, *a, **k).to(torch.bfloat16))(Uf * Kf[None, :, :], L2)[:, :, :L]
        y = (lambda x, *d: x.permute(*d))(y, 0, 2, 1)
        return y + u * D_skip[None, None, :]

    def _B_ref(x, w1, b1, w2, b2):
        h = torch.einsum("bsd,df->bsf", x, w1) + b1
        zero = torch.zeros_like(h)
        r = torch.where(h > zero, h, zero)
        h = r * r
        out = torch.einsum("bsf,fd->bsd", h, w2) + b2
        return out

    x = A_u
    xn = _layernorm(x, axis=-1)
    return x + _A_ref(xn, A_log_A_real, A_A_imag, A_C_real, A_C_imag, A_log_dt, A_D_skip) + _B_ref(xn, B_w1, B_b1, B_w2, B_b2)
```

```python
import re

def _regs(tok):
    tok = tok.strip()
    tok = tok.lstrip('-')
    m = re.match(r'^abs\((.*)\)$', tok)
    if m: tok = m.group(1)
    tok = tok.strip('|')
    m = re.match(r'^([vsa])\[(\d+):(\d+)\]$', tok)
    if m: return [(m.group(1), i) for i in range(int(m.group(2)), int(m.group(3)) + 1)]
    m = re.match(r'^([vsa])(\d+)$', tok)
    if m: return [(m.group(1), int(m.group(2)))]
    if tok in ('vcc', 'vcc_lo', 'vcc_hi'): return [('x', 'vcc')]
    if tok in ('exec', 'exec_lo', 'exec_hi'): return [('x', 'exec')]
    if tok == 'm0': return [('x', 'm0')]
    return []

TRANS = ('v_exp_f32', 'v_log_f32', 'v_rcp_f32', 'v_rsq_f32', 'v_sqrt_f32', 'v_sin_f32', 'v_cos_f32')

class Ins:
    def __init__(self, text):
        self.text = text
        t = text.split(';')[0].strip()
        self.is_label = t.endswith(':')
        self.op = ''
        self.dst = []; self.src = []
        self.kind = 'other'
        if self.is_label or not t or t.startswith('.'):
            self.kind = 'label' if self.is_label else 'none'
            return
        parts = t.split(None, 1)
        self.op = op = parts[0]
        rest = parts[1] if len(parts) > 1 else ''
        ops = []; cur = ''; depth = 0
        for ch in rest:
            if ch == '[': depth += 1
            if ch == ']': depth -= 1
            if ch == ',' and depth == 0: ops.append(cur); cur = ''
            else: cur += ch
        if cur: ops.append(cur)
        clean = []
        for o in ops:
            o = o.strip()
            clean.append(o.split()[0] if o else o)
        self.mods = rest
        R = [_regs(o) for o in clean]
        flat = lambda L: [r for x in L for r in x]
        if op.startswith('v_mfma'):
            self.kind = 'mfma'; self.dst = R[0]; self.srcab = R[1] + R[2]; self.srcc = R[3]; self.src = flat(R[1:])
            self.passes = 8 if '32x32' in op else 4
        elif op.startswith('v_cmp'):
            self.kind = 'valu'; self.dst = R[0]; self.src = flat(R[1:])
            if op.startswith('v_cmpx'): self.dst = self.dst + [('x', 'exec')]
        elif op.startswith('v_readfirstlane') or op.startswith('v_readlane'):
            self.kind = 'valu'; self.dst = R[0]; self.src = flat(R[1:]); self.rl = True
        elif op.startswith('v_permlane') or op.startswith('v_swap'):
            self.kind = 'valu'; self.dst = R[0] + R[1]; self.src = R[0] + R[1]
        elif op.startswith('v_'):
            self.kind = 'valu'
            nd = 1
            if '_co_' in op or op.startswith('v_div_scale') or op.startswith('v_mad_u64'): nd = 2
            self.dst = flat(R[:nd]); self.src = flat(R[nd:])
            if op.startswith('v_fmac') or op.startswith('v_dot2c') or op.startswith('v_pk_fmac') or 'dpp' in op or 'row_' in rest or 'quad_perm' in rest or 'wave_' in rest or 'sdwa' in op:
                self.src = self.src + R[0]
            if op.startswith('v_cndmask') and len(R) == 3: self.src = self.src + [('x', 'vcc')]
        elif op.startswith('ds_'):
            self.kind = 'ds'
            if op.startswith('ds_read') or op.startswith('ds_bpermute') or op.startswith('ds_permute') or op.startswith('ds_swizzle') or '_rtn' in op:
                self.dst = R[0]; self.src = flat(R[1:])
            else:
                self.src = flat(R)
        elif op.startswith('buffer_') or op.startswith('global_'):
            self.kind = 'vmem'
            if op in ('buffer_inv', 'buffer_wbl2'):
                pass
            elif 'load' in op and ' lds' not in (' ' + rest) and 'load_lds' not in op:
                self.dst = R[0]; self.src = flat(R[1:])
            elif 'load' in op:
                self.src = flat(R) + [('x', 'm0')]; self.dma = True
            elif 'atomic' in op:
                self.src = flat(R)
                if ' sc0' in rest: self.dst = R[0]
            else:
                self.src = flat(R)
                self.store = True
                self.sdata = R[0] if op.startswith('buffer_') else R[1]
        elif op.startswith('s_'):
            self.kind = 'salu'
            if op.startswith('s_cmp') or op.startswith('s_cbranch') or op in ('s_branch', 's_nop', 's_waitcnt', 's_barrier', 's_endpgm', 's_sleep', 's_setprio') or op.startswith('s_bitcmp'):
                self.src = flat(R)
            else:
                self.dst = R[0] if R else []; self.src = flat(R[1:])
                if 'saveexec' in op: self.dst = self.dst + [('x', 'exec')]
        self.isdpp = self.kind == 'valu' and ('dpp' in op or 'row_' in rest or 'quad_perm' in rest or 'wave_' in rest)

    def states(self):
        if self.kind in ('label', 'none'): return 0
        if self.op == 's_nop': return int(self.text.split()[1], 0) + 1
        return 1

def need(p, c):
    n = 0
    ov = lambda a, b: bool(set(a) & set(b))
    vd = [r for r in p.dst if r[0] in 'va']
    sd = [r for r in p.dst if r[0] == 's' or r == ('x', 'vcc')]
    if p.kind == 'valu':
        if c.kind == 'mfma' and ov(vd, c.src): n = max(n, 2)
        if c.kind == 'valu':
            if c.isdpp and ov(vd, c.src): n = max(n, 2)
            if c.op.startswith('v_permlane') and ov(vd, c.src): n = max(n, 2)
            if getattr(c, 'rl', False) and ov(vd, c.src): n = max(n, 1)
            if p.op.split('_e')[0] in TRANS and ov(vd, c.src) : n = max(n, 1)
            if ov(sd, c.src): n = max(n, 4 if getattr(c, 'rl', False) or c.op.startswith('v_writelane') else 2)
            if ('sdwa' in p.op or 'op_sel' in p.mods and not p.op.startswith('v_pk')) and ov(vd, c.src + c.dst): n = max(n, 1)
            if p.op.startswith('v_dot') and ov(vd, c.src + c.dst) and not (c.op == p.op): n = max(n, 3)
        if p.op.split('_e')[0] in TRANS and c.kind in ('ds', 'vmem', 'mfma') and ov(vd, c.src): n = max(n, 2)
        if c.kind == 'vmem' and ov(sd, c.src): n = max(n, 5)
        if c.kind == 'salu' and ov(sd, c.src): n = max(n, 1)
        if ('x', 'exec') in p.dst:
            if c.kind == 'mfma': n = max(n, 4)
            if c.kind == 'valu' and (c.isdpp): n = max(n, 5)
            if c.kind == 'valu' and (getattr(c, 'rl', False) or c.op.startswith('v_permlane')): n = max(n, 4)
    if p.kind == 'salu':
        if ('x', 'm0') in p.dst and (getattr(c, 'dma', False) or 'addtid' in c.op): n = max(n, 1)
    if p.kind == 'mfma':
        P = p.passes
        if c.kind == 'mfma':
            if ov(p.dst, c.srcab): n = max(n, {4: 8, 8: 12}[P])
            if ov(p.dst, c.srcc) and not (c.srcc == p.dst and c.passes == P): n = max(n, {4: 6, 8: 10}[P])
            if ov(p.dst, c.dst) and not (c.srcc == p.dst and c.passes == P): n = max(n, {4: 8, 8: 12}[P])
        elif c.kind in ('valu', 'ds', 'vmem'):
            if ov(p.dst, c.src + c.dst): n = max(n, {4: 8, 8: 12}[P])
            if c.kind == 'valu' and ov(p.srcc, c.dst): n = max(n, {4: 3, 8: 7}[P])
    if p.kind == 'vmem' and getattr(p, 'store', False) and len(p.sdata) >= 3:
        if ov(p.sdata, c.dst): n = max(n, 2 if c.kind == 'valu' else 1)
    return n

class Asm:
    def __init__(self):
        self.lines = []
    def __call__(self, text):
        for l in text.split('\n'):
            l = l.strip()
            if l: self.lines.append(l)
    def label(self, name): self.lines.append(name + ':')
    def fix_hazards(self, verbose=False):
        ins = [Ins(l) for l in self.lines]
        changed = True
        total = 0
        while changed:
            changed = False
            labels = {x.text[:-1]: i for i, x in enumerate(ins) if x.kind == 'label'}
            i = 0
            while i < len(ins):
                c = ins[i]
                if c.kind in ('label', 'none'):
                    i += 1; continue
                worst = 0
                stack = [(i - 1, 0)]
                seen = set()
                while stack:
                    j, dist = stack.pop()
                    if j < 0 or dist >= 12 or (j, dist) in seen: continue
                    seen.add((j, dist))
                    p = ins[j]
                    if p.kind == 'label':
                        nm = p.text[:-1]
                        for k, q in enumerate(ins):
                            if q.kind == 'salu' and (q.op.startswith('s_cbranch') or q.op == 's_branch') and q.text.split()[-1] == nm:
                                stack.append((k, dist))
                        k = j - 1
                        while k >= 0 and ins[k].kind in ('none',): k -= 1
                        if k >= 0 and not (ins[k].op in ('s_branch', 's_endpgm')):
                            stack.append((j - 1, dist))
                        continue
                    if p.kind == 'none':
                        stack.append((j - 1, dist)); continue
                    nd = need(p, c)
                    if nd > dist: worst = max(worst, nd - dist)
                    stack.append((j - 1, dist + p.states()))
                if worst > 0:
                    if verbose: print("hazard pad", worst, "before", c.text)
                    ins.insert(i, Ins(f"s_nop {worst - 1}"))
                    total += 1
                    changed = True
                    labels = None
                    i += 1
                i += 1
        self.lines = [x.text for x in ins]
        return total
    def text(self):
        out = []
        for l in self.lines:
            out.append(l if l.endswith(':') or l.startswith('.') or l.startswith(';') else '    ' + l)
        return '\n'.join(out) + '\n'
```

```python
from layout import *

sQ, sW, sTAG = 's4', 's5', 's6'
pX, pLA, pAI, pCR, pCI, pLDT, pDSK = 's[8:9]', 's[10:11]', 's[12:13]', 's[14:15]', 's[16:17]', 's[18:19]', 's[20:21]'
WS = 's[24:27]'
sLDT, sDSK = 's28', 's29'
TROW = 528
KREV_SZ = 4576
L_KREV = 0
L_TAB = 2 * KREV_SZ
L_LN = L_KREV
LNROW = 1088
CPY = 4160
L_U = L_TAB
L_PART = L_U + 8 * CPY
C_LDS = L_TAB + 4 * 32 * TROW

vLANE = 'v1'

def c_prologue(A, sid):
    A(f"s_load_dwordx16 s[8:23], s[0:1], 0")
    A(f"s_load_dwordx2 s[24:25], s[0:1], 112")
    A(f"s_and_b32 s3, {sid}, 7")
    A(f"s_lshr_b32 {sQ}, {sid}, 3")
    A(f"s_lshl_b32 s3, s3, 5")
    A(f"s_add_u32 {sQ}, {sQ}, s3")
    A(f"v_lshrrev_b32 v2, 6, v0")
    A(f"v_and_b32 {vLANE}, 63, v0")
    A(f"v_readfirstlane_b32 {sW}, v2")
    A(f"s_mov_b32 s26, {WS_SIZE}")
    A(f"s_mov_b32 s27, 0x20000")

def ln_load(A):
    A(f"s_lshl_b32 s3, {sQ}, 13")
    A(f"v_lshlrev_b32 v3, 11, v2")
    A(f"v_lshl_add_u32 v3, {vLANE}, 4, v3")
    A(f"v_add_u32 v3, s3, v3")
    A(f"s_waitcnt lgkmcnt(0)")
    A(f"global_load_dwordx4 v[8:11], v3, {pX}")
    A(f"global_load_dwordx4 v[12:15], v3, {pX} offset:1024")

def kgen_load(A):
    A(f"s_and_b32 s3, {sW}, 1")
    A(f"s_lshl_b32 s30, {sQ}, 1")
    A(f"s_add_u32 s3, s3, s30")
    A(f"s_lshl_b32 s3, s3, 8")
    A(f"v_lshl_add_u32 v16, {vLANE}, 2, s3")
    A(f"s_lshl_b32 s30, {sQ}, 2")
    A(f"s_waitcnt lgkmcnt(0)")
    A(f"global_load_dword v4, v16, {pLA}")
    A(f"global_load_dword v5, v16, {pAI}")
    A(f"global_load_dword v6, v16, {pCR}")
    A(f"global_load_dword v7, v16, {pCI}")
    A(f"s_load_dword {sLDT}, {pLDT}, s30")
    A(f"s_load_dword {sDSK}, {pDSK}, s30")

def ln_compute(A, nvm_after, sc=''):
    A(f"s_waitcnt vmcnt({nvm_after})")
    for r in range(2):
        for i in range(4):
            A(f"v_lshlrev_b32 v{20+8*r+2*i}, 16, v{8+4*r+i}")
            A(f"v_and_b32 v{21+8*r+2*i}, 0xffff0000, v{8+4*r+i}")
    for r in range(2):
        b = 20 + 8 * r
        A(f"v_pk_add_f32 v[{36+4*r}:{37+4*r}], v[{b}:{b+1}], v[{b+2}:{b+3}]")
        A(f"v_pk_mul_f32 v[{38+4*r}:{39+4*r}], v[{b}:{b+1}], v[{b}:{b+1}]")
    for i in (1, 2, 3):
        for r in range(2):
            b = 20 + 8 * r + 2 * i
            if i >= 2:
                A(f"v_pk_add_f32 v[{36+4*r}:{37+4*r}], v[{36+4*r}:{37+4*r}], v[{b}:{b+1}]")
            A(f"v_pk_fma_f32 v[{38+4*r}:{39+4*r}], v[{b}:{b+1}], v[{b}:{b+1}], v[{38+4*r}:{39+4*r}]")
    for k in range(4):
        A(f"v_add_f32 v{44+k}, v{36+2*k}, v{37+2*k}")
    for ctl in ("row_shr:1 row_mask:0xf bank_mask:0xf bound_ctrl:0", "row_shr:2 row_mask:0xf bank_mask:0xf bound_ctrl:0",
                "row_shr:4 row_mask:0xf bank_mask:0xf bound_ctrl:0", "row_shr:8 row_mask:0xf bank_mask:0xf bound_ctrl:0",
                "row_bcast:15 row_mask:0xa bank_mask:0xf", "row_bcast:31 row_mask:0xc bank_mask:0xf"):
        for k in range(4):
            A(f"v_add_f32_dpp v{44+k}, v{44+k}, v{44+k} {ctl}")
    for k in range(4):
        A(f"v_readlane_b32 s{32+k}, v{44+k}, 63")
    A(f"v_mov_b32 v48, 0x3b000000")
    for r in range(2):
        A(f"v_mul_f32 v{36+r}, s{32+2*r}, v48")
        A(f"v_mul_f32 v{38+r}, s{33+2*r}, v48")
    for r in range(2):
        A(f"v_fma_f32 v{38+r}, -v{36+r}, v{36+r}, v{38+r}")
    for r in range(2):
        A(f"v_max_f32 v{38+r}, 0, v{38+r}")
    for r in range(2):
        A(f"v_cvt_pk_bf16_f32 v{40+r}, v{36+r}, v{38+r}")
    for r in range(2):
        A(f"v_and_b32 v{38+r}, 0xffff0000, v{40+r}")
    for r in range(2):
        A(f"v_add_f32 v{38+r}, 0x3727c5ac, v{38+r}")
    A(f"v_cvt_pk_bf16_f32 v42, v38, v39")
    A(f"v_lshlrev_b32 v38, 16, v42")
    A(f"v_and_b32 v39, 0xffff0000, v42")
    for r in range(2):
        A(f"v_sqrt_f32 v{38+r}, v{38+r}")
    for r in range(2):
        A(f"v_lshlrev_b32 v{36+r}, 16, v{40+r}")
    for r in range(2):
        A(f"v_cvt_pk_bf16_f32 v{44+2*r}, v{36+r}, v{38+r}")
        A(f"v_mov_b32 v{45+2*r}, {sTAG}")
    for r in range(2):
        A(f"v_and_b32 v{38+r}, 0xffff0000, v{44+2*r}")
    for r in range(2):
        A(f"v_rcp_f32 v{50+2*r}, v{38+r}")
    A(f"s_lshl_b32 s3, {sQ}, 6")
    A(f"s_lshl_b32 s30, {sW}, 4")
    A(f"s_add_u32 s3, s3, s30")
    A(f"s_add_u32 s3, s3, {WS_ST}")
    A(f"v_mov_b32 v49, 0")
    for r in range(2):
        A(f"v_mul_f32 v{51+2*r}, -v{36+r}, v{50+2*r}".replace("v_mul_f32", "v_mul_f32_e64"))
    A(f"s_mov_b64 exec, 1")
    A(f"buffer_store_dwordx4 v[44:47], v49, {WS}, s3 offen {sc}")
    A(f"s_mov_b64 exec, -1")
    for r in range(2):
        for i in range(4):
            b = 20 + 8 * r + 2 * i
            A(f"v_pk_fma_f32 v[{b}:{b+1}], v[{b}:{b+1}], v[{50+2*r}:{51+2*r}], v[{50+2*r}:{51+2*r}] op_sel:[0,0,1] op_sel_hi:[1,0,1]")
    for r in range(2):
        for i in range(4):
            b = 20 + 8 * r + 2 * i
            A(f"v_cvt_pk_bf16_f32 v{8+4*r+i}, v{b}, v{b+1}")
    A(f"s_mul_i32 s3, {sW}, {2*LNROW}")
    A(f"v_lshl_add_u32 v36, {vLANE}, 4, s3")
    A(f"ds_write_b128 v36, v[8:11] offset:{L_LN}")
    A(f"ds_write_b128 v36, v[12:15] offset:{L_LN+LNROW}")
    A(f"v_bfe_u32 v37, {vLANE}, 2, 2")
    A(f"v_mul_u32_u24 v37, {LNROW}, v37")
    A(f"v_lshrrev_b32 v38, 4, {vLANE}")
    A(f"v_lshl_add_u32 v37, v38, 5, v37")
    A(f"v_and_b32 v38, 3, {vLANE}")
    A(f"v_lshl_add_u32 v37, v38, 3, v37")
    A(f"s_lshl_b32 s3, {sW}, 8")
    A(f"v_add_u32 v37, s3, v37")
    A(f"s_waitcnt lgkmcnt(0)")
    A(f"s_barrier")
    for i in range(2):
        A(f"ds_read_b64_tr_b16 v[{8+4*i}:{9+4*i}], v37 offset:{L_LN+128*i}")
        A(f"ds_read_b64_tr_b16 v[{10+4*i}:{11+4*i}], v37 offset:{L_LN+128*i+4*LNROW}")
    A(f"s_waitcnt lgkmcnt(0)")
    A(f"buffer_store_dwordx4 v[8:11], v3, {WS}, 0 offen {sc}")
    A(f"buffer_store_dwordx4 v[12:15], v3, {WS}, 0 offen offset:1024 {sc}")

HINC = [1]*8 + [248] + [2]*4 + [248, 4, 4, 248, 4, 4, 248, 8, 248, 8, 248, 8, 248, 8] + [8]*4
assert len(HINC) == 31

def kgen(A, vm_wait):
    LOG2E = '0x3fb8aa3b'
    A(f"s_waitcnt lgkmcnt(0)")
    A(f"s_and_b32 s3, {sW}, 1")
    A(f"s_lshl_b32 s30, {sLDT}, 16")
    A(f"s_and_b32 s31, {sLDT}, 0xffff0000")
    A(f"s_cmp_eq_u32 s3, 0")
    A(f"s_cselect_b32 {sLDT}, s30, s31")
    A(f"s_lshl_b32 s30, {sDSK}, 16")
    A(f"s_and_b32 s31, {sDSK}, 0xffff0000")
    A(f"s_cmp_eq_u32 s3, 0")
    A(f"s_cselect_b32 {sDSK}, s30, s31")
    A(f"v_mov_b32 v16, {LOG2E}")
    A(f"v_mul_f32 v17, {sLDT}, v16")
    A(f"v_exp_f32 v17, v17")
    A(f"s_cmp_lt_u32 {sW}, 2")
    A(f"s_cselect_b32 s32, 1.0, 0x41000000")
    A(f"s_cselect_b32 s33, 0x43780000, s32")
    A(f"s_cselect_b32 s34, 0xbe22f983, 0.15915494")
    A(f"v_cvt_pk_bf16_f32 v17, v17, v17")
    A(f"v_lshlrev_b32 v17, 16, v17")
    A(f"s_waitcnt vmcnt({vm_wait})")
    A(f"v_lshlrev_b32 v20, 16, v4")
    A(f"v_and_b32 v21, 0xffff0000, v4")
    A(f"v_mul_f32 v20, v20, v16")
    A(f"v_mul_f32 v21, v21, v16")
    A(f"v_exp_f32 v20, v20")
    A(f"v_exp_f32 v21, v21")
    A(f"v_lshlrev_b32 v22, 16, v5")
    A(f"v_and_b32 v23, 0xffff0000, v5")
    A(f"v_cvt_pk_bf16_f32 v18, v20, v21")
    A(f"v_mul_f32 v22, v22, v17")
    A(f"v_mul_f32 v23, v23, v17")
    A(f"v_lshlrev_b32 v20, 16, v18")
    A(f"v_and_b32 v21, 0xffff0000, v18")
    A(f"v_mul_f32 v22, s34, v22")
    A(f"v_mul_f32 v23, s34, v23")
    A(f"v_mul_f32 v20, v20, v17")
    A(f"v_mul_f32 v21, v21, v17")
    A(f"v_mul_f32_e64 v20, -v20, v16")
    A(f"v_mul_f32_e64 v21, -v21, v16")
    MR = {1: 24, 248: 28, 2: 32, 4: 36, 8: 40}
    for (inc, sreg) in ((1, 's32'), (248, 's33')):
        for i in range(2):
            A(f"v_mul_f32 v{44+i}, {sreg}, v{20+i}")
            A(f"v_mul_f32 v{46+i}, {sreg}, v{22+i}")
        for i in range(2):
            A(f"v_exp_f32 v{44+i}, v{44+i}")
            A(f"v_fract_f32 v{46+i}, v{46+i}")
        for i in range(2):
            m = MR[inc] + 2 * i
            A(f"v_cos_f32 v{m}, v{46+i}")
            A(f"v_sin_f32 v{m+1}, v{46+i}")
        for i in range(2):
            m = MR[inc] + 2 * i
            A(f"v_mul_f32 v{m}, v{m}, v{44+i}")
            A(f"v_mul_f32 v{m+1}, v{m+1}, v{44+i}")
    def cmul(dst, a, m):
        A(f"v_pk_mul_f32 v[{dst}:{dst+1}], v[{a}:{a+1}], v[{m}:{m+1}] op_sel:[0,0] op_sel_hi:[1,0]")
        return f"v_pk_fma_f32 v[{dst}:{dst+1}], v[{a}:{a+1}], v[{m}:{m+1}], v[{dst}:{dst+1}] op_sel:[1,1,0] op_sel_hi:[0,1,1] neg_lo:[1,0,0]"
    A(f"s_cbranch_scc1 Lkg_h")
    for r in range(32, 44, 2):
        src = 24 + (r & 2)
        A(f"v_mov_b64 v[{r}:{r+1}], v[{src}:{src+1}]")
    A(f"v_mov_b32 v48, 1.0")
    A(f"v_mov_b32 v49, 0")
    A(f"v_mov_b32 v50, 1.0")
    A(f"v_mov_b32 v51, 0")
    A(f"s_branch Lkg_go")
    A.label("Lkg_h")
    for (d, s) in ((2, 1), (4, 2), (8, 4)):
        f = [cmul(MR[d] + 2 * i, MR[s] + 2 * i, MR[s] + 2 * i) for i in range(2)]
        for x in f: A(x)
    A(f"v_add_f32 v17, v17, v17")
    A(f"v_lshlrev_b32 v48, 16, v6")
    A(f"v_lshlrev_b32 v49, 16, v7")
    A(f"v_and_b32 v50, 0xffff0000, v6")
    A(f"v_and_b32 v51, 0xffff0000, v7")
    A(f"v_mul_f32 v48, v48, v17")
    A(f"v_mul_f32_e64 v49, -v49, v17")
    A(f"v_mul_f32 v50, v50, v17")
    A(f"v_mul_f32_e64 v51, -v51, v17")
    A.label("Lkg_go")
    A(f"s_and_b32 s3, {sW}, 1")
    A(f"s_lshl_b32 s3, s3, 1")
    A(f"s_lshr_b32 s30, {sW}, 1")
    A(f"s_add_u32 s31, s3, s30")
    A(f"s_mul_i32 s31, s31, {32*TROW}")
    A(f"v_lshl_add_u32 v19, {vLANE}, 3, s31")
    cur, nxt = 48, 52
    for step in range(32):
        pk = 56 + 2 * (step & 1)
        A(f"v_cvt_pk_bf16_f32 v{pk}, v{cur}, v{cur+1}")
        A(f"v_cvt_pk_bf16_f32 v{pk+1}, v{cur+2}, v{cur+3}")
        if step < 31:
            m = MR[HINC[step]]
            f = [cmul(nxt + 2 * i, cur + 2 * i, m + 2 * i) for i in range(2)]
        A(f"ds_write_b64 v19, v[{pk}:{pk+1}] offset:{L_TAB + step*TROW}")
        if step < 31:
            for x in f: A(x)
        cur, nxt = nxt, cur
    A(f"v_and_b32 v20, 7, {vLANE}")
    A(f"v_lshlrev_b32 v20, 2, v20")
    A(f"v_bfe_u32 v21, {vLANE}, 3, 2")
    def nibp(lst):
        return sum(lst[7 - p] << (4 * p) for p in range(8))
    N0 = nibp(list(range(8))); N1 = nibp([0,0,1,2,2,2,3,4]); N2 = nibp([0,0,0,1,1,1,2,2]); N4 = nibp([0,0,0,0,0,1,1,1])
    A(f"s_cmp_lt_u32 {sW}, 2")
    A(f"s_mov_b32 s35, {N4:#x}")
    A(f"s_cselect_b32 s32, {N0:#x}, s35")
    A(f"s_cselect_b32 s33, {N1:#x}, s35")
    A(f"s_cselect_b32 s34, {N2:#x}, s35")
    A(f"s_mov_b32 s35, {(26<<24)|(24<<16)|(22<<8)|20:#x}")
    A(f"s_cselect_b32 s35, {(17<<24)|(14<<16)|(9<<8)|0:#x}, s35")
    A(f"s_cselect_b32 s36, 0, 0xaaaaaaaa")
    A(f"s_mov_b32 s37, 0")
    A(f"v_mov_b32 v22, s34")
    A(f"v_mov_b32 v23, s33")
    A(f"v_cmp_eq_u32 vcc, 1, v21")
    A(f"v_cndmask_b32 v22, v22, v23, vcc")
    A(f"v_mov_b32 v23, s32")
    A(f"v_cmp_eq_u32 vcc, 0, v21")
    A(f"v_cndmask_b32 v22, v22, v23, vcc")
    A(f"v_bfe_u32 v22, v22, v20, 4")
    A(f"v_lshlrev_b32 v21, 3, v21")
    A(f"v_bfe_u32 v23, s35, v21, 8")
    A(f"v_add_u32 v22, v22, v23")
    A(f"v_lshrrev_b32 v23, 5, {vLANE}")
    A(f"s_mul_i32 s31, s3, {32*TROW}")
    A(f"v_lshl_add_u32 v24, v23, 4, s31")
    A(f"s_movk_i32 s30, {TROW}")
    A(f"v_mad_u32_u24 v20, v22, s30, v24")
    A(f"v_and_b32 v22, 31, {vLANE}")
    A(f"v_mad_u32_u24 v21, v22, s30, v24")
    A(f"s_mul_i32 s31, s3, {KREV_SZ//2}")
    A(f"s_lshr_b32 s30, {sW}, 1")
    A(f"s_lshl_b32 s30, s30, 11")
    A(f"s_sub_u32 s31, s31, s30")
    A(f"s_add_u32 s31, s31, {L_KREV + 4080 - 1536}")
    A(f"v_lshlrev_b32 v22, 4, v22")
    A(f"v_sub_u32 v22, s31, v22")
    A(f"v_lshl_add_u32 v22, v23, 3, v22")
    A(f"s_waitcnt lgkmcnt(0)")
    A(f"s_barrier")
    def rd(b):
        for k in range(4):
            r = 64 + 32 * (b & 1) + 8 * k
            A(f"ds_read_b128 v[{r}:{r+3}], v20 offset:{L_TAB + 32*(4*b+k)}")
            A(f"ds_read_b128 v[{r+4}:{r+7}], v21 offset:{L_TAB + 32*TROW + 32*(4*b+k)}")
    rd(0)
    A(f"v_mov_b32 v24, 0")
    A(f"v_mov_b32 v25, 0")
    A(f"v_mov_b32 v26, 0")
    A(f"v_mov_b32 v27, 0")
    A(f"s_mul_i32 s31, s3, {KREV_SZ//2}")
    A(f"v_lshl_add_u32 v23, {vLANE}, 4, s31")
    for b in range(4):
        if b < 3:
            A(f"s_waitcnt lgkmcnt(0)")
            rd(b + 1)
        else:
            A(f"s_waitcnt lgkmcnt(0)")
        for k in range(4):
            r = 64 + 32 * (b & 1) + 8 * k
            c = '0' if (b == 0 and k == 0) else 'v[32:47]'
            A(f"v_mfma_f32_32x32x16_bf16 v[32:47], v[{r}:{r+3}], v[{r+4}:{r+7}], {c}")
    A(f"s_mov_b64 exec, 0x3fffffff")
    A(f"ds_write_b128 v23, v[24:27] offset:{L_KREV + 4096}")
    A(f"s_mov_b64 exec, -1")
    for q in range(4):
        A(f"v_cndmask_b32 v{32+4*q+3}, v{32+4*q+3}, v{32+4*q+2}, s[36:37]")
    for q in range(4):
        A(f"v_cvt_pk_bf16_f32 v{48+2*q}, v{32+4*q}, v{33+4*q}")
        A(f"v_cvt_pk_bf16_f32 v{49+2*q}, v{34+4*q}, v{35+4*q}")
    for q in range(4):
        A(f"ds_write_b64 v22, v[{48+2*q}:{49+2*q}] offset:{512*(3-q)}")

def conv_load(A, sc=''):
    A(f"v_lshrrev_b32 v60, 1, v0")
    A(f"v_and_b32 v61, 1, v0")
    A(f"s_lshl_b32 s3, {sQ}, 5")
    A(f"s_sub_u32 s3, s3, 16384")
    A(f"v_lshlrev_b32 v62, 13, v60")
    A(f"v_lshl_add_u32 v62, v61, 4, v62")
    A(f"v_add_u32 v62, s3, v62")
    A(f"v_add_u32 v63, 8192, v62")
    A(f"s_mov_b32 s26, {UB_SIZE}")
    A(f"buffer_load_dwordx4 v[128:131], v62, {WS}, 0 offen {sc}")
    A(f"buffer_load_dwordx2 v[132:133], v63, {WS}, 0 offen {sc}")
    for i in (1, 2):
        A(f"v_add_u32 v62, {128*8192}, v62")
        A(f"v_add_u32 v63, {128*8192}, v63")
        A(f"buffer_load_dwordx4 v[{128+8*i}:{131+8*i}], v62, {WS}, 0 offen {sc}")
        A(f"buffer_load_dwordx2 v[{132+8*i}:{133+8*i}], v63, {WS}, 0 offen {sc}")
    A(f"s_mov_b32 s26, {WS_SIZE}")

def conv_build(A):
    A(f"v_mul_u32_u24 v61, {4*CPY}, v61")
    A(f"v_lshl_add_u32 v61, v60, 4, v61")
    for i in range(3):
        w = 128 + 8 * i
        A(f"s_waitcnt vmcnt({4 - 2*i})")
        if i == 2:
            A(f"v_cmp_gt_u32 vcc, 4, v0")
            A(f"s_and_saveexec_b64 s[30:31], vcc")
        for j in range(4):
            A(f"v_alignbyte_b32 v{88+j}, v{w+j+1}, v{w+j}, 2")
        for j in range(4):
            A(f"v_mov_b32 v{92+j}, v{w+j+1}")
        for j in range(4):
            A(f"v_alignbyte_b32 v{96+j}, v{w+j+2}, v{w+j+1}, 2")
        off = L_U + 2048 * i
        A(f"ds_write_b128 v61, v[88:91] offset:{off}")
        A(f"ds_write_b128 v61, v[92:95] offset:{off + CPY}")
        A(f"ds_write_b128 v61, v[96:99] offset:{off + 2*CPY}")
        A(f"ds_write_b128 v61, v[{w+2}:{w+5}] offset:{off + 3*CPY}")
        if i < 2:
            A(f"s_waitcnt lgkmcnt(0)")
    A(f"s_mov_b64 exec, -1")
    A(f"s_waitcnt lgkmcnt(0)")
    A(f"s_barrier")

def conv_main(A, sc=''):
    A(f"s_and_b32 s3, {sW}, 1")
    A(f"s_lshr_b32 s30, {sW}, 1")
    A(f"v_and_b32 v20, 15, {vLANE}")
    A(f"v_lshrrev_b32 v21, 4, {vLANE}")
    A(f"s_mul_i32 s31, s3, {KREV_SZ}")
    A(f"s_lshl_b32 s32, s30, 8")
    A(f"s_add_u32 s31, s31, s32")
    A(f"s_add_u32 s31, s31, {L_KREV + 480}")
    A(f"v_lshlrev_b32 v22, 5, v20")
    A(f"v_sub_u32 v22, s31, v22")
    A(f"v_lshl_add_u32 v22, v21, 4, v22")
    A(f"s_mul_i32 s31, s3, {4*CPY}")
    A(f"s_add_u32 s33, s31, s32")
    A(f"v_bfe_u32 v23, {vLANE}, 2, 2")
    A(f"v_mul_u32_u24 v23, {CPY}, v23")
    A(f"v_lshl_add_u32 v23, v21, 4, v23")
    A(f"v_and_b32 v24, 3, {vLANE}")
    A(f"v_lshl_add_u32 v23, v24, 3, v23")
    A(f"v_add_u32 v23, s33, v23")
    for r in range(32, 64): A(f"v_mov_b32 v{r}, 0")
    A(f"s_mov_b32 s34, 4")
    A.label("Lconv")
    def rdfrag(i):
        A(f"ds_read_b128 v[{64+4*i}:{67+4*i}], v22 offset:{512*(7-i)}")
        A(f"ds_read_b64_tr_b16 v[{96+4*i}:{97+4*i}], v23 offset:{L_U + 512*i}")
        A(f"ds_read_b64_tr_b16 v[{98+4*i}:{99+4*i}], v23 offset:{L_U + 512*i + 8}")
    for i in range(4): rdfrag(i)
    issued = 12
    for n in range(8):
        A(f"s_waitcnt lgkmcnt({issued - 3*(n+1)})")
        pairs = [(s_, d) for s_ in range(8) for d in range(8) if s_ + d <= 7 and max(s_, d) == n]
        for k, (s_, d) in enumerate(pairs):
            a = 32 + 4 * (s_ + d)
            A(f"v_mfma_f32_16x16x32_bf16 v[{a}:{a+3}], v[{96+4*s_}:{99+4*s_}], v[{64+4*d}:{67+4*d}], v[{a}:{a+3}]")
            if k == 0 and n + 4 < 8:
                rdfrag(n + 4); issued += 3
    A(f"v_add_u32 v22, 64, v22")
    A(f"v_add_u32 v23, 64, v23")
    A(f"s_sub_u32 s34, s34, 1")
    A(f"s_cmp_lg_u32 s34, 0")
    A(f"s_cbranch_scc1 Lconv")
    A(f"s_lshl_b32 s32, s3, 13")
    A(f"v_lshl_add_u32 v24, {vLANE}, 4, s32")
    A(f"s_cmp_eq_u32 s30, 0")
    A(f"s_cbranch_scc1 Lconv_own")
    for a in range(8):
        A(f"ds_write_b128 v24, v[{32+4*a}:{35+4*a}] offset:{L_PART + 1024*a}")
    A(f"s_waitcnt lgkmcnt(0)")
    A(f"s_barrier")
    A(f"s_branch Lconv_done")
    A.label("Lconv_own")
    A(f"v_lshlrev_b32 v25, 5, v20")
    A(f"v_lshl_add_u32 v25, v21, 3, v25")
    A(f"v_add_u32 v26, s31, v25")
    for a in range(8):
        A(f"ds_read_b64 v[{96+2*a}:{97+2*a}], v26 offset:{L_U + 3*CPY + 24 + 512*a}")
    A(f"s_lshl_b32 s32, {sQ}, 1")
    A(f"s_add_u32 s32, s32, s3")
    A(f"s_lshl_b32 s32, s32, 12")
    A(f"s_add_u32 s32, s32, {WS_YT}")
    A(f"s_waitcnt lgkmcnt(0)")
    for a in range(8):
        for e in range(4):
            src = 96 + 2 * a + (e >> 1)
            if e & 1: A(f"v_and_b32 v27, 0xffff0000, v{src}")
            else: A(f"v_lshlrev_b32 v27, 16, v{src}")
            A(f"v_fmac_f32 v{32+4*a+e}, {sDSK}, v27")
    A(f"s_barrier")
    for a in range(8):
        A(f"ds_read_b128 v[{64+4*a}:{67+4*a}], v24 offset:{L_PART + 1024*a}")
    for a in range(8):
        A(f"s_waitcnt lgkmcnt({7-a})")
        A(f"v_pk_add_f32 v[{32+4*a}:{33+4*a}], v[{32+4*a}:{33+4*a}], v[{64+4*a}:{65+4*a}]")
        A(f"v_pk_add_f32 v[{34+4*a}:{35+4*a}], v[{34+4*a}:{35+4*a}], v[{66+4*a}:{67+4*a}]")
        A(f"v_cvt_pk_bf16_f32 v{96+2*a}, v{32+4*a}, v{33+4*a}")
        A(f"v_cvt_pk_bf16_f32 v{97+2*a}, v{34+4*a}, v{35+4*a}")
        A(f"buffer_store_dwordx2 v[{96+2*a}:{97+2*a}], v25, {WS}, s32 offen offset:{512*a} {sc}")
    A.label("Lconv_done")
```

```python
from layout import *

sID, sW, sTAG = 's4', 's5', 's6'
X, W1, W2, WS, OUT, B1 = 's[8:11]', 's[12:15]', 's[16:19]', 's[20:23]', 's[24:27]', 's[28:31]'
pB2 = 's[32:33]'
vLANE = 'v1'
G_LDS = 81920
WSLOT = 12288
L_X = 4 * WSLOT
W1_SIZE = 512 * 1376 * 2

def g_prologue(A, sid):
    A(f"s_load_dwordx2 s[8:9], s[0:1], 0")
    A(f"s_load_dwordx2 s[12:13], s[0:1], 64")
    A(f"s_load_dwordx2 s[28:29], s[0:1], 72")
    A(f"s_load_dwordx2 s[16:17], s[0:1], 80")
    A(f"s_load_dwordx2 s[32:33], s[0:1], 88")
    A(f"s_load_dwordx2 s[24:25], s[0:1], 96")
    A(f"s_load_dwordx2 s[20:21], s[0:1], 112")
    A(f"s_mov_b32 {sID}, {sid}")
    A(f"v_lshrrev_b32 v2, 6, v0")
    A(f"v_and_b32 {vLANE}, 63, v0")
    A(f"v_readfirstlane_b32 {sW}, v2")
    for base, size in ((8, 0x200000), (12, W1_SIZE), (16, W1_SIZE), (20, WS_SIZE), (24, 0x200000), (28, 2752)):
        A(f"s_mov_b32 s{base+2}, {size}")
        A(f"s_mov_b32 s{base+3}, 0x20000")

vXS = 4
vWS_ = 8
vXA = 12
vWA = 16
vONE = 20
vSA = 24
vB1 = 28
vACC = 32
vWB = 80
vXR = 104
sRB, sCB = 's34', 's35'
sPERM = 's[36:37]'
sKX, sKW, sMX, sMW, sIT = 's38', 's39', 's40', 's41', 's42'

def g1_next_k(A):
    A(f"s_and_b32 s3, s36, 7")
    A(f"s_lshr_b32 s36, s36, 4")
    A(f"s_lshl_b32 {sKX}, s3, 7")
    A(f"s_mul_i32 {sKW}, s3, {64*2752}")

def g1_dma_x(A, slot):
    A(f"s_add_u32 m0, {sMX}, {slot*4096}")
    for i in range(4):
        A(f"buffer_load_dwordx4 v{vXS+i}, {X}, {sKX} offen offset:{1024*i} lds")

def g1_dma_w(A, m0expr):
    A(m0expr)
    for i in range(3):
        A(f"buffer_load_dwordx4 v{vWS_+i}, {W1}, {sKW} offen offset:{1024*i} lds")

def gemm1(A, perm_a, perm_b, wait_stats, sc=''):
    A(f"s_and_b32 s3, {sID}, 7")
    A(f"s_bfe_u32 {sRB}, {sID}, 0x10003")
    A(f"s_lshl_b32 s3, s3, 1")
    A(f"s_add_u32 {sRB}, {sRB}, s3")
    A(f"s_lshr_b32 {sCB}, {sID}, 4")
    A(f"s_cmp_eq_u32 {sCB}, 15")
    A(f"s_cbranch_scc1 Lg1_end")
    A(f"s_bitcmp1_b32 {sID}, 3")
    A(f"s_mov_b32 s36, {perm_a:#x}")
    A(f"s_cselect_b32 s36, {perm_b:#x}, s36")
    A(f"s_and_b32 s3, {sCB}, 7")
    A(f"s_mul_i32 s3, s3, 0x11111111")
    A(f"s_add_u32 s36, s36, s3")
    A(f"v_lshrrev_b32 v3, 3, {vLANE}")
    A(f"v_lshrrev_b32 v30, 4, {vLANE}")
    A(f"v_and_b32 v31, 7, {vLANE}")
    A(f"v_xor_b32 v31, v31, v30")
    A(f"v_lshlrev_b32 v31, 4, v31")
    A(f"v_lshl_add_u32 v31, v3, 10, v31")
    A(f"s_lshl_b32 s3, {sRB}, 17")
    A(f"s_lshl_b32 s43, {sW}, 15")
    A(f"s_add_u32 s3, s3, s43")
    A(f"v_add_u32 v{vXS}, s3, v31")
    A(f"v_xor_b32 v{vXS+1}, 64, v{vXS}")
    A(f"v_add_u32 v{vXS+1}, {8192-1024}, v{vXS+1}")
    A(f"v_add_u32 v{vXS+2}, {2*(8192-1024)}, v{vXS}")
    A(f"v_add_u32 v{vXS+3}, {2*(8192-1024)}, v{vXS+1}")
    A(f"s_mul_i32 s3, {sW}, {16*2752}")
    A(f"s_mul_i32 s43, {sCB}, 192")
    A(f"s_add_u32 s3, s3, s43")
    A(f"s_movk_i32 s43, {2752 - 192}")
    for i in range(3):
        A(f"v_add_u32 v31, {64*i}, {vLANE}")
        A(f"v_mul_u32_u24 v3, 0x5556, v31")
        A(f"v_lshrrev_b32 v3, 18, v3")
        A(f"v_lshl_add_u32 v31, {vLANE}, 4, s3")
        A(f"v_mad_u32_u24 v{vWS_+i}, v3, s43, v31")
    A(f"s_lshl_b32 {sMX}, {sW}, 13")
    A(f"s_add_u32 {sMX}, {sMX}, {L_X}")
    A(f"s_mul_i32 {sMW}, {sW}, 3072")
    A(f"s_waitcnt lgkmcnt(0)")
    g1_next_k(A)
    g1_dma_x(A, 0)
    g1_dma_w(A, f"s_mov_b32 m0, {sMW}")
    g1_next_k(A)
    g1_dma_x(A, 1)
    g1_dma_w(A, f"s_add_u32 m0, {sMW}, {WSLOT}")
    g1_next_k(A)
    g1_dma_w(A, f"s_add_u32 m0, {sMW}, {2*WSLOT}")
    A(f"s_cmp_eq_u32 {sW}, 3")
    A(f"s_cselect_b32 s44, 0, {sW}")
    A(f"s_add_u32 s45, s44, 1")
    A(f"s_cmp_eq_u32 s45, 3")
    A(f"s_cselect_b32 s45, 0, s45")
    A(f"s_add_u32 s46, s45, 1")
    A(f"s_cmp_eq_u32 s46, 3")
    A(f"s_cselect_b32 s46, 0, s46")
    A(f"v_and_b32 v3, 1, {vLANE}")
    A(f"v_lshlrev_b32 v31, 3, v30")
    A(f"v_lshl_add_u32 v19, v3, 5, v31")
    A(f"s_mul_i32 s3, {sCB}, 192")
    A(f"s_lshl_b32 s43, s44, 6")
    A(f"s_add_u32 s3, s3, s43")
    A(f"buffer_load_dwordx2 v[{vB1}:{vB1+1}], v19, {B1}, s3 offen")
    A(f"v_xor_b32 v3, v3, v30")
    A(f"v_and_b32 v3, 1, v3")
    A(f"v_cmp_eq_u32 vcc, 0, v3")
    A(f"v_mov_b32 v31, 0x3f803f80")
    for i in range(4):
        A(f"v_cndmask_b32 v{vONE+i}, 0, v31, vcc")
    A(f"v_and_b32 v3, 31, {vLANE}")
    A(f"v_bfe_u32 v31, {vLANE}, 1, 3")
    A(f"v_lshrrev_b32 v11, 5, {vLANE}")
    A(f"v_xor_b32 v31, v31, v11")
    A(f"v_lshlrev_b32 v31, 4, v31")
    A(f"v_lshl_add_u32 v31, v3, 7, v31")
    A(f"v_add_u32 v{vXA}, {sMX}, v31")
    for k in (1, 2, 3):
        A(f"v_xor_b32 v{vXA+k}, {32*k}, v{vXA}")
    A(f"v_bfe_u32 v3, {vLANE}, 2, 2")
    A(f"v_lshl_add_u32 v3, v11, 3, v3")
    A(f"v_mul_u32_u24 v3, 192, v3")
    A(f"v_and_b32 v31, 1, v30")
    A(f"v_lshl_add_u32 v3, v31, 5, v3")
    A(f"v_and_b32 v31, 3, {vLANE}")
    A(f"v_lshl_add_u32 v3, v31, 3, v3")
    for i in range(3):
        A(f"v_lshl_add_u32 v{vWA+i}, s{44+i}, 6, v3")
    for r in range(vACC, vACC + 48): A(f"v_mov_b32 v{r}, 0")
    for r in range(vSA, vSA + 4): A(f"v_mov_b32 v{r}, 0")
    def rd_w(buf, off):
        for i in range(3):
            r = vWB + 12 * buf + 4 * i
            A(f"ds_read_b64_tr_b16 v[{r}:{r+1}], v{vWA+i} offset:{off}")
            A(f"ds_read_b64_tr_b16 v[{r+2}:{r+3}], v{vWA+i} offset:{off+768}")
    def rd_x(buf):
        for k in range(4):
            r = vXR + 16 * buf + 4 * k
            A(f"ds_read_b128 v[{r}:{r+3}], v{vXA+k} offset:{4096*buf}")
    def mm(buf, xb, ks):
        x = vXR + 16 * xb + 4 * ks
        for i in range(3):
            r = vWB + 12 * buf + 4 * i
            a = vACC + 16 * i
            A(f"v_mfma_f32_32x32x16_bf16 v[{a}:{a+15}], v[{r}:{r+3}], v[{x}:{x+3}], v[{a}:{a+15}]")
        r = vWB + 12 * buf
        A(f"v_mfma_f32_16x16x32_bf16 v[{vSA}:{vSA+3}], v[{r}:{r+3}], v[{vONE}:{vONE+3}], v[{vSA}:{vSA+3}]")
    A(f"s_waitcnt vmcnt(11)")
    A(f"s_barrier")
    rd_x(0)
    rd_w(0, 0)
    A(f"s_waitcnt lgkmcnt(6)")
    g1_dma_x(A, 0)
    A(f"s_mov_b32 {sIT}, 0")
    A(f"s_add_u32 {sMW}, {sMW}, {3*WSLOT}")
    A.label("Lg1_loop")
    for par in range(2):
        base = par * WSLOT
        rd_w(1, base + 3072)
        A(f"s_waitcnt lgkmcnt(6)")
        mm(0, par, 0)
        rd_w(0, base + 2 * 3072)
        A(f"s_waitcnt lgkmcnt(6)")
        mm(1, par, 1)
        g1_next_k(A)
        A(f"s_cmp_lt_u32 {sIT}, {6 - par}")
        A(f"s_cbranch_scc1 Lg1_w{par}")
        A(f"s_waitcnt vmcnt(0)")
        A.label(f"Lg1_w{par}")
        A(f"s_waitcnt vmcnt(7) lgkmcnt(0)")
        A(f"s_barrier")
        rd_x(1 - par)
        rd_w(1, base + 3 * 3072)
        A(f"s_cmp_ge_u32 {sIT}, {5 - par}")
        A(f"s_cbranch_scc1 Lg1_nw{par}")
        g1_dma_w(A, f"s_mov_b32 m0, {sMW}")
        A.label(f"Lg1_nw{par}")
        mm(0, par, 2)
        if par == 1:
            for i in range(3):
                A(f"v_xor_b32 v{vWA+i}, {2*WSLOT}, v{vWA+i}")
        A(f"s_waitcnt lgkmcnt(0)")
        rd_w(0, (1 - par) * WSLOT)
        A(f"s_cbranch_scc1 Lg1_nx{par}")
        g1_dma_x(A, 1 - par)
        A.label(f"Lg1_nx{par}")
        mm(1, par, 3)
        A(f"s_add_u32 {sMW}, {sMW}, {WSLOT}")
        A(f"s_cmp_ge_u32 {sMW}, {4*WSLOT}")
        A(f"s_cselect_b32 s3, {4*WSLOT}, 0")
        A(f"s_sub_u32 {sMW}, {sMW}, s3")
    A(f"s_add_u32 {sIT}, {sIT}, 2")
    A(f"s_cmp_lt_u32 {sIT}, 8")
    A(f"s_cbranch_scc1 Lg1_loop")
    A(f"v_and_b32 v3, 31, {vLANE}")
    A(f"v_lshlrev_b32 v3, 3, v3")
    A(f"s_lshl_b32 s3, {sRB}, 10")
    A(f"s_lshl_b32 s43, {sW}, 8")
    A(f"s_add_u32 s47, s3, s43")
    A(f"s_add_u32 s47, s47, {WS_ST}")
    A(f"buffer_load_dwordx2 v[4:5], v3, {WS}, s47 offen {sc}")
    SB = WSLOT
    A(f"v_lshlrev_b32 v8, 16, v{vB1}")
    A(f"v_and_b32 v9, 0xffff0000, v{vB1}")
    A(f"v_lshlrev_b32 v10, 16, v{vB1+1}")
    A(f"v_and_b32 v11, 0xffff0000, v{vB1+1}")
    A(f"s_lshl_b32 s3, s44, 7")
    A(f"v_lshl_add_u32 v19, v19, 1, s3")
    A(f"s_mov_b32 exec_lo, 0x00030003")
    A(f"s_mov_b32 exec_hi, 0x00030003")
    A(f"ds_write_b128 v19, v[8:11] offset:{SB+384}")
    A(f"ds_write_b128 v19, v[{vSA}:{vSA+3}] offset:{SB}")
    A(f"s_mov_b64 exec, -1")
    A(f"v_lshrrev_b32 v6, 5, {vLANE}")
    A(f"v_lshlrev_b32 v6, 4, v6")
    for i in range(3):
        A(f"v_lshl_add_u32 v{vWA+i}, s{44+i}, 7, v6")
    A(f"s_lshl_b32 s3, {sRB}, 2")
    A(f"s_add_u32 s3, s3, {sW}")
    A(f"s_mul_i32 s3, s3, {HK}")
    A(f"s_mul_i32 s43, {sCB}, 6")
    A(f"s_add_u32 s3, s3, s43")
    A(f"s_lshl_b32 s3, s3, 10")
    A(f"s_add_u32 s3, s3, {WS_H}")
    for i in range(3):
        A(f"s_lshl_b32 s{44+i}, s{44+i}, 11")
        A(f"s_add_u32 s{44+i}, s{44+i}, s3")
    A(f"v_lshlrev_b32 v7, 4, {vLANE}")
    A(f"s_waitcnt lgkmcnt(0)")
    A(f"s_barrier")
    def rd_sb(i):
        r = 80 + 32 * (i & 1)
        for q in range(4):
            A(f"ds_read_b128 v[{r+4*q}:{r+4*q+3}], v{vWA+i} offset:{SB+32*q}")
            A(f"ds_read_b128 v[{r+16+4*q}:{r+16+4*q+3}], v{vWA+i} offset:{SB+384+32*q}")
    rd_sb(0)
    wait_stats(A)
    A(f"v_and_b32 v8, 0xffff0000, v4")
    A(f"v_rcp_f32 v8, v8")
    A(f"v_lshlrev_b32 v9, 16, v4")
    A(f"v_mul_f32_e64 v9, -v9, v8")
    for i in range(3):
        A(f"s_waitcnt lgkmcnt(0)")
        if i < 2: rd_sb(i + 1)
        r = 80 + 32 * (i & 1)
        a = vACC + 16 * i
        for p in range(8):
            A(f"v_pk_fma_f32 v[{r+16+2*p}:{r+17+2*p}], v[{r+2*p}:{r+2*p+1}], v[8:9], v[{r+16+2*p}:{r+17+2*p}] op_sel:[0,1,0] op_sel_hi:[1,1,1]")
        for p in range(8):
            A(f"v_pk_fma_f32 v[{a+2*p}:{a+2*p+1}], v[{a+2*p}:{a+2*p+1}], v[8:9], v[{r+16+2*p}:{r+17+2*p}] op_sel:[0,0,0] op_sel_hi:[1,0,1]")
        for p in range(16):
            A(f"v_max_f32 v{a+p}, 0, v{a+p}")
        for p in range(8):
            A(f"v_pk_mul_f32 v[{a+2*p}:{a+2*p+1}], v[{a+2*p}:{a+2*p+1}], v[{a+2*p}:{a+2*p+1}]")
        for p in range(8):
            A(f"v_cvt_pk_bf16_f32 v{a+p}, v{a+2*p}, v{a+2*p+1}")
        A(f"buffer_store_dwordx4 v[{a}:{a+3}], v7, {WS}, s{44+i} offen {sc}")
        A(f"buffer_store_dwordx4 v[{a+4}:{a+7}], v7, {WS}, s{44+i} offen offset:1024 {sc}")
    A.label("Lg1_end")

NST = 11
RING = 5
def gemm2(A, wait_h, wait_y, sc=''):
    vDS = 4
    vRA = 8
    vH0, vH1 = 10, 11
    vA2 = 32
    vWF = 96
    vHF = 112
    vP = 176
    HD = 4
    sRB2, sDB, sWO, sHO, sMB = 's34', 's35', 's38', 's39', 's40'
    A(f"s_and_b32 s3, {sID}, 7")
    A(f"s_bfe_u32 {sRB2}, {sID}, 0x20003")
    A(f"s_lshl_b32 s3, s3, 2")
    A(f"s_add_u32 {sRB2}, {sRB2}, s3")
    A(f"s_lshr_b32 {sDB}, {sID}, 5")
    A(f"v_lshrrev_b32 v3, 3, {vLANE}")
    A(f"v_and_b32 v30, 7, {vLANE}")
    A(f"v_bfe_u32 v31, {vLANE}, 4, 1")
    A(f"v_lshlrev_b32 v31, 2, v31")
    A(f"v_xor_b32 v30, v30, v31")
    A(f"v_lshlrev_b32 v30, 4, v30")
    A(f"v_lshl_add_u32 v30, v3, 10, v30")
    A(f"s_lshl_b32 s3, {sDB}, 7")
    A(f"v_add_u32 v{vDS}, s3, v30")
    for i in (1, 2, 3):
        A(f"v_add_u32 v{vDS+i}, {7168*i}, v{vDS}")
    A(f"s_mul_i32 {sWO}, {sW}, {NST*32768}")
    A(f"s_mul_i32 {sMB}, {sW}, {RING*4096}")
    A(f"v_lshlrev_b32 v{vH0}, 4, {vLANE}")
    A(f"v_add_u32 v{vH1}, {HK*1024}, v{vH0}")
    A(f"s_mul_i32 {sHO}, {sRB2}, {2*HK*1024}")
    A(f"s_mul_i32 s3, {sW}, {NST*2048}")
    A(f"s_add_u32 {sHO}, {sHO}, s3")
    A(f"s_add_u32 {sHO}, {sHO}, {WS_H}")
    A(f"s_waitcnt lgkmcnt(0)")
    def dma_w(st):
        A(f"s_add_u32 m0, {sMB}, {(st % RING)*4096}")
        A(f"s_add_u32 s3, {sWO}, {st*32768}")
        for i in range(4):
            A(f"buffer_load_dwordx4 v{vDS+i}, {W2}, s3 offen offset:{1024*i} lds")
    def ld_h(st):
        r = vHF + 16 * (st % HD)
        A(f"s_add_u32 s43, {sHO}, {st*2048}")
        for kk in range(2):
            A(f"buffer_load_dwordx4 v[{r+8*kk}:{r+8*kk+3}], v{vH0}, {WS}, s43 offen offset:{1024*kk} {sc}")
            A(f"buffer_load_dwordx4 v[{r+8*kk+4}:{r+8*kk+7}], v{vH1}, {WS}, s43 offen offset:{1024*kk} {sc}")
    for st in range(HD): dma_w(st)
    A(f"v_and_b32 v3, 31, {vLANE}")
    A(f"v_lshrrev_b32 v31, 5, {vLANE}")
    A(f"v_lshlrev_b32 v12, 10, v3")
    A(f"v_lshl_add_u32 v12, v31, 4, v12")
    A(f"s_lshl_b32 s3, {sRB2}, 16")
    A(f"s_lshl_b32 s43, {sDB}, 7")
    A(f"s_lshl_b32 s44, {sW}, 5")
    A(f"s_add_u32 s43, s43, s44")
    A(f"s_add_u32 s3, s3, s43")
    A(f"v_add_u32 v12, s3, v12")
    A(f"v_add_u32 v13, 32768, v12")
    A(f"buffer_load_dwordx4 v[16:19], v12, {X}, 0 offen")
    A(f"buffer_load_dwordx4 v[20:23], v13, {X}, 0 offen")
    A(f"v_lshl_add_u32 v14, v31, 3, s43")
    A(f"global_load_dwordx2 v[24:25], v14, {pB2}")
    A(f"global_load_dwordx2 v[26:27], v14, {pB2} offset:16")
    A(f"v_bfe_u32 v3, {vLANE}, 2, 2")
    A(f"v_lshl_add_u32 v30, v31, 2, v3")
    A(f"v_lshlrev_b32 v30, 7, v30")
    A(f"v_bfe_u32 v15, {vLANE}, 4, 1")
    A(f"v_xor_b32 v15, {sW}, v15")
    A(f"v_and_b32 v3, 2, v3")
    A(f"v_xor_b32 v15, v15, v3")
    A(f"v_lshl_add_u32 v30, v15, 5, v30")
    A(f"v_and_b32 v3, 3, {vLANE}")
    A(f"v_lshl_add_u32 v30, v3, 3, v30")
    A(f"v_add_u32 v{vRA}, {sMB}, v30")
    A(f"v_xor_b32 v{vRA+1}, 64, v{vRA}")
    wait_h(A)
    for st in range(HD): ld_h(st)
    def rd_w(buf, st, kk):
        off = (st % RING) * 4096 + kk * 2048
        for dt in range(2):
            r = vWF + 8 * buf + 4 * dt
            A(f"ds_read_b64_tr_b16 v[{r}:{r+1}], v{vRA+dt} offset:{off}")
            A(f"ds_read_b64_tr_b16 v[{r+2}:{r+3}], v{vRA+dt} offset:{off+1024}")
    def mm(buf, st, kk):
        for dt in range(2):
            for tt in range(2):
                a = vA2 + 32 * dt + 16 * tt
                w = vWF + 8 * buf + 4 * dt
                h = vHF + 16 * (st % HD) + 8 * kk + 4 * tt
                c = '0' if (st == 0 and kk == 0) else f"v[{a}:{a+15}]"
                A(f"v_mfma_f32_32x32x16_bf16 v[{a}:{a+15}], v[{w}:{w+3}], v[{h}:{h+3}], {c}")
    q = [('h', s) for s in range(HD)]
    def wait_for(st):
        idx = q.index(('h', st))
        A(f"s_waitcnt vmcnt({4*(len(q) - 1 - idx)})")
    wait_for(0)
    rd_w(0, 0, 0)
    for st in range(NST):
        rd_w(1, st, 1)
        if st + HD < NST:
            dma_w(st + HD); q.append(('w', st + HD))
        A(f"s_waitcnt lgkmcnt(4)")
        mm(0, st, 0)
        if st + 1 < NST:
            wait_for(st + 1)
            rd_w(0, st + 1, 0)
            A(f"s_waitcnt lgkmcnt(4)")
        else:
            A(f"s_waitcnt lgkmcnt(0)")
        mm(1, st, 1)
        if st + HD < NST:
            ld_h(st + HD); q.append(('h', st + HD))
    wait_y(A)
    YS = 144
    A(f"v_lshrrev_b32 v3, 3, {vLANE}")
    A(f"v_and_b32 v30, 7, {vLANE}")
    A(f"v_lshlrev_b32 v28, 12, v3")
    A(f"v_lshl_add_u32 v28, v30, 4, v28")
    A(f"s_lshl_b32 s3, {sDB}, 18")
    A(f"s_lshl_b32 s44, {sW}, 16")
    A(f"s_add_u32 s3, s3, s44")
    A(f"s_lshl_b32 s44, {sRB2}, 7")
    A(f"s_add_u32 s3, s3, s44")
    A(f"s_add_u32 s3, s3, {WS_YT}")
    A(f"s_add_u32 s44, s3, 32768")
    A(f"buffer_load_dwordx4 v[{vHF}:{vHF+3}], v28, {WS}, s3 offen {sc}")
    A(f"buffer_load_dwordx4 v[{vHF+4}:{vHF+7}], v28, {WS}, s44 offen {sc}")
    A(f"v_add_u32 v29, {sMB}, v{vH0}")
    for i in (1, 2, 3):
        for tt in range(2):
            for qq in range(2):
                a = vA2 + 32 * (i >> 1) + 16 * tt + 8 * (i & 1) + 4 * qq
                A(f"ds_write_b128 v29, v[{a}:{a+3}] offset:{(i-1)*4096 + tt*2048 + qq*1024}")
    for tt in range(2):
        b = 16 + 4 * tt
        A(f"v_permlane32_swap_b32 v{b}, v{b+2}")
        A(f"v_permlane32_swap_b32 v{b+1}, v{b+3}")
    for tt in range(2):
        for j in range(4):
            A(f"v_lshlrev_b32 v{vP+8*tt+2*j}, 16, v{16+4*tt+j}")
            A(f"v_and_b32 v{vP+8*tt+2*j+1}, 0xffff0000, v{16+4*tt+j}")
    for j in range(4):
        A(f"v_lshlrev_b32 v{16+2*j}, 16, v{24+j}")
        A(f"v_and_b32 v{17+2*j}, 0xffff0000, v{24+j}")
    for tt in range(2):
        for j in range(4):
            a = vA2 + 16 * tt + 2 * j
            A(f"v_pk_add_f32 v[{vP+8*tt+2*j}:{vP+8*tt+2*j+1}], v[{vP+8*tt+2*j}:{vP+8*tt+2*j+1}], v[{16+2*j}:{17+2*j}]")
            A(f"v_pk_add_f32 v[{a}:{a+1}], v[{a}:{a+1}], v[{vP+8*tt+2*j}:{vP+8*tt+2*j+1}]")
    A(f"v_mul_u32_u24 v3, {YS}, v3")
    A(f"v_lshl_add_u32 v3, v30, 4, v3")
    A(f"v_add_u32 v3, {sMB}, v3")
    A(f"v_bfe_u32 v30, {vLANE}, 2, 2")
    A(f"v_lshl_add_u32 v30, v31, 2, v30")
    A(f"v_mul_u32_u24 v30, {YS}, v30")
    A(f"v_bfe_u32 v15, {vLANE}, 4, 1")
    A(f"v_lshl_add_u32 v30, v15, 5, v30")
    A(f"v_and_b32 v15, 3, {vLANE}")
    A(f"v_lshl_add_u32 v30, v15, 3, v30")
    A(f"v_add_u32 v30, {sMB}, v30")
    A(f"s_waitcnt vmcnt(0)")
    A(f"ds_write_b128 v3, v[{vHF}:{vHF+3}] offset:12288")
    A(f"ds_write_b128 v3, v[{vHF+4}:{vHF+7}] offset:{12288 + 8*YS}")
    A(f"s_waitcnt lgkmcnt(0)")
    for tt in range(2):
        for qq in range(2):
            A(f"ds_read_b64_tr_b16 v[{16+4*tt+2*qq}:{17+4*tt+2*qq}], v30 offset:{12288 + 64*tt + 8*YS*qq}")
    A(f"s_barrier")
    A(f"s_waitcnt lgkmcnt(0)")
    for i in (1, 2, 3):
        A(f"s_xor_b32 s3, {sW}, {i}")
        A(f"s_mul_i32 s3, s3, {RING*4096}")
        A(f"v_add_u32 v29, s3, v{vH0}")
        for k in range(4):
            r = vHF + 16 * (i - 1) + 4 * k
            A(f"ds_read_b128 v[{r}:{r+3}], v29 offset:{(i-1)*4096 + k*1024}")
    for tt in range(2):
        for j in range(4):
            A(f"v_lshlrev_b32 v{vP+8*tt+2*j}, 16, v{16+4*tt+j}")
            A(f"v_and_b32 v{vP+8*tt+2*j+1}, 0xffff0000, v{16+4*tt+j}")
    for tt in range(2):
        for j in range(4):
            a = vA2 + 16 * tt + 2 * j
            A(f"v_pk_add_f32 v[{a}:{a+1}], v[{a}:{a+1}], v[{vP+8*tt+2*j}:{vP+8*tt+2*j+1}]")
    for i in (1, 2, 3):
        A(f"s_waitcnt lgkmcnt({12 - 4*i})")
        for tt in range(2):
            for j in range(4):
                a = vA2 + 16 * tt + 2 * j
                r = vHF + 16 * (i - 1) + 8 * tt + 2 * j
                A(f"v_pk_add_f32 v[{a}:{a+1}], v[{a}:{a+1}], v[{r}:{r+1}]")
    for tt in range(2):
        for j in range(4):
            a = vA2 + 16 * tt + 2 * j
            A(f"v_cvt_pk_bf16_f32 v{16+4*tt+j}, v{a}, v{a+1}")
    for tt in range(2):
        b = 16 + 4 * tt
        A(f"v_permlane32_swap_b32 v{b}, v{b+2}")
        A(f"v_permlane32_swap_b32 v{b+1}, v{b+3}")
    A(f"buffer_store_dwordx4 v[16:19], v12, {OUT}, 0 offen")
    A(f"buffer_store_dwordx4 v[20:23], v13, {OUT}, 0 offen")
```

```python
import sys
from asmlib import Asm
import blocks_c as C, blocks_g as G
from layout import *

HDR = open("parallel_sum__ssm_conv_s4d__dense_activation_squared_relu__prompt.s.ref").read().split("; Override launch")[0]

def kd(name, vgpr, sgpr=64):
    return f""".amdhsa_kernel {name}
  .amdhsa_next_free_vgpr {vgpr}
  .amdhsa_next_free_sgpr {sgpr}
  .amdhsa_accum_offset {(vgpr+3)//4*4}
  .amdhsa_group_segment_fixed_size 0
  .amdhsa_kernarg_size 120
  .amdhsa_user_sgpr_count 2
  .amdhsa_user_sgpr_kernarg_segment_ptr 1
  .amdhsa_system_sgpr_workgroup_id_x 1
.end_amdhsa_kernel
"""

def begin(A, name, nwg):
    A(f".globl {name}\n.p2align 8\n.type {name},@function")
    A.label(name)
    A(f"s_cmp_ge_u32 s2, {nwg}")
    A(f"s_cbranch_scc1 L{name}_exit")
def end(A, name):
    A.label(f"L{name}_exit")
    A("s_endpgm")

def nib(l): return sum(v << (4 * i) for i, v in enumerate(l))

A = Asm()
begin(A, "ln_kernel", 256)
C.c_prologue(A, 's2')
A(f"s_mov_b32 {C.sTAG}, 0")
C.ln_load(A)
C.ln_compute(A, 0)
end(A, "ln_kernel")
begin(A, "g1_kernel", 256)
G.g_prologue(A, 's2')
G.gemm1(A, nib([0,1,2,3,4,5,6,7]), nib([4,5,6,7,0,1,2,3]), lambda A: A("s_waitcnt vmcnt(0)"))
end(A, "g1_kernel")
begin(A, "cv_kernel", 256)
C.c_prologue(A, 's2')
C.kgen_load(A)
C.conv_load(A)
C.kgen(A, 6)
A("s_waitcnt lgkmcnt(0)")
A("s_barrier")
C.conv_build(A)
C.conv_main(A)
end(A, "cv_kernel")
begin(A, "g2_kernel", 256)
G.g_prologue(A, 's2')
G.gemm2(A, lambda A: None, lambda A: None)
end(A, "g2_kernel")
n = A.fix_hazards(verbose='-v' in sys.argv)
print("hazard pads:", n)
out = HDR
out += f"; @launch kernel=ln_kernel grid=(256,1,1) block=(256,1,1) lds={C.C_LDS}\n"
out += f"; @launch kernel=g1_kernel grid=(256,1,1) block=(256,1,1) lds={G.G_LDS}\n"
out += f"; @launch kernel=cv_kernel grid=(256,1,1) block=(256,1,1) lds={C.C_LDS}\n"
out += f"; @launch kernel=g2_kernel grid=(256,1,1) block=(256,1,1) lds={G.G_LDS}\n"
out += '.amdgcn_target "amdgcn-amd-amdhsa--gfx950"\n.text\n' + A.text()
out += '.section .rodata,"a"\n'
for nm, vg in (("ln_kernel", 64), ("g1_kernel", 144), ("cv_kernel", 152), ("g2_kernel", 192)):
    out += ".p2align 6\n" + kd(nm, vg)
open(sys.argv[1], "w").write(out)
```

```python
import re

def _regs(tok):
    tok = tok.strip()
    tok = tok.lstrip('-')
    m = re.match(r'^abs\((.*)\)$', tok)
    if m: tok = m.group(1)
    tok = tok.strip('|')
    m = re.match(r'^([vsa])\[(\d+):(\d+)\]$', tok)
    if m: return [(m.group(1), i) for i in range(int(m.group(2)), int(m.group(3)) + 1)]
    m = re.match(r'^([vsa])(\d+)$', tok)
    if m: return [(m.group(1), int(m.group(2)))]
    if tok in ('vcc', 'vcc_lo', 'vcc_hi'): return [('x', 'vcc')]
    if tok in ('exec', 'exec_lo', 'exec_hi'): return [('x', 'exec')]
    if tok == 'm0': return [('x', 'm0')]
    return []

TRANS = ('v_exp_f32', 'v_log_f32', 'v_rcp_f32', 'v_rsq_f32', 'v_sqrt_f32', 'v_sin_f32', 'v_cos_f32')

class Ins:
    def __init__(self, text):
        self.text = text
        t = text.split(';')[0].strip()
        self.is_label = t.endswith(':')
        self.op = ''
        self.dst = []; self.src = []
        self.kind = 'other'
        if self.is_label or not t or t.startswith('.'):
            self.kind = 'label' if self.is_label else 'none'
            return
        parts = t.split(None, 1)
        self.op = op = parts[0]
        rest = parts[1] if len(parts) > 1 else ''
        ops = []; cur = ''; depth = 0
        for ch in rest:
            if ch == '[': depth += 1
            if ch == ']': depth -= 1
            if ch == ',' and depth == 0: ops.append(cur); cur = ''
            else: cur += ch
        if cur: ops.append(cur)
        clean = []
        for o in ops:
            o = o.strip()
            clean.append(o.split()[0] if o else o)
        self.mods = rest
        R = [_regs(o) for o in clean]
        flat = lambda L: [r for x in L for r in x]
        if op.startswith('v_mfma'):
            self.kind = 'mfma'; self.dst = R[0]; self.srcab = R[1] + R[2]; self.srcc = R[3]; self.src = flat(R[1:])
            self.passes = 8 if '32x32' in op else 4
        elif op.startswith('v_cmp'):
            self.kind = 'valu'; self.dst = R[0]; self.src = flat(R[1:])
            if op.startswith('v_cmpx'): self.dst = self.dst + [('x', 'exec')]
        elif op.startswith('v_readfirstlane') or op.startswith('v_readlane'):
            self.kind = 'valu'; self.dst = R[0]; self.src = flat(R[1:]); self.rl = True
        elif op.startswith('v_permlane') or op.startswith('v_swap'):
            self.kind = 'valu'; self.dst = R[0] + R[1]; self.src = R[0] + R[1]
        elif op.startswith('v_'):
            self.kind = 'valu'
            nd = 1
            if '_co_' in op or op.startswith('v_div_scale') or op.startswith('v_mad_u64'): nd = 2
            self.dst = flat(R[:nd]); self.src = flat(R[nd:])
            if op.startswith('v_fmac') or op.startswith('v_dot2c') or op.startswith('v_pk_fmac') or 'dpp' in op or 'row_' in rest or 'quad_perm' in rest or 'wave_' in rest or 'sdwa' in op:
                self.src = self.src + R[0]
            if op.startswith('v_cndmask') and len(R) == 3: self.src = self.src + [('x', 'vcc')]
        elif op.startswith('ds_'):
            self.kind = 'ds'
            if op.startswith('ds_read') or op.startswith('ds_bpermute') or op.startswith('ds_permute') or op.startswith('ds_swizzle') or '_rtn' in op:
                self.dst = R[0]; self.src = flat(R[1:])
            else:
                self.src = flat(R)
        elif op.startswith('buffer_') or op.startswith('global_'):
            self.kind = 'vmem'
            if op in ('buffer_inv', 'buffer_wbl2'):
                pass
            elif 'load' in op and ' lds' not in (' ' + rest) and 'load_lds' not in op:
                self.dst = R[0]; self.src = flat(R[1:])
            elif 'load' in op:
                self.src = flat(R) + [('x', 'm0')]; self.dma = True
            elif 'atomic' in op:
                self.src = flat(R)
                if ' sc0' in rest: self.dst = R[0]
            else:
                self.src = flat(R)
                self.store = True
                self.sdata = R[0] if op.startswith('buffer_') else R[1]
        elif op.startswith('s_'):
            self.kind = 'salu'
            if op.startswith('s_cmp') or op.startswith('s_cbranch') or op in ('s_branch', 's_nop', 's_waitcnt', 's_barrier', 's_endpgm', 's_sleep', 's_setprio') or op.startswith('s_bitcmp'):
                self.src = flat(R)
            else:
                self.dst = R[0] if R else []; self.src = flat(R[1:])
                if 'saveexec' in op: self.dst = self.dst + [('x', 'exec')]
        self.isdpp = self.kind == 'valu' and ('dpp' in op or 'row_' in rest or 'quad_perm' in rest or 'wave_' in rest)

    def states(self):
        if self.kind in ('label', 'none'): return 0
        if self.op == 's_nop': return int(self.text.split()[1], 0) + 1
        return 1

def need(p, c):
    n = 0
    ov = lambda a, b: bool(set(a) & set(b))
    vd = [r for r in p.dst if r[0] in 'va']
    sd = [r for r in p.dst if r[0] == 's' or r == ('x', 'vcc')]
    if p.kind == 'valu':
        if c.kind == 'mfma' and ov(vd, c.src): n = max(n, 2)
        if c.kind == 'valu':
            if c.isdpp and ov(vd, c.src): n = max(n, 2)
            if c.op.startswith('v_permlane') and ov(vd, c.src): n = max(n, 2)
            if getattr(c, 'rl', False) and ov(vd, c.src): n = max(n, 1)
            if p.op.split('_e')[0] in TRANS and ov(vd, c.src) : n = max(n, 1)
            if ov(sd, c.src): n = max(n, 4 if getattr(c, 'rl', False) or c.op.startswith('v_writelane') else 2)
            if ('sdwa' in p.op or 'op_sel' in p.mods and not p.op.startswith('v_pk')) and ov(vd, c.src + c.dst): n = max(n, 1)
            if p.op.startswith('v_dot') and ov(vd, c.src + c.dst) and not (c.op == p.op): n = max(n, 3)
        if p.op.split('_e')[0] in TRANS and c.kind in ('ds', 'vmem', 'mfma') and ov(vd, c.src): n = max(n, 2)
        if c.kind == 'vmem' and ov(sd, c.src): n = max(n, 5)
        if c.kind == 'salu' and ov(sd, c.src): n = max(n, 1)
        if ('x', 'exec') in p.dst:
            if c.kind == 'mfma': n = max(n, 4)
            if c.kind == 'valu' and (c.isdpp): n = max(n, 5)
            if c.kind == 'valu' and (getattr(c, 'rl', False) or c.op.startswith('v_permlane')): n = max(n, 4)
    if p.kind == 'salu':
        if ('x', 'm0') in p.dst and (getattr(c, 'dma', False) or 'addtid' in c.op): n = max(n, 1)
    if p.kind == 'mfma':
        P = p.passes
        if c.kind == 'mfma':
            if ov(p.dst, c.srcab): n = max(n, {4: 8, 8: 12}[P])
            if ov(p.dst, c.srcc) and not (c.srcc == p.dst and c.passes == P): n = max(n, {4: 6, 8: 10}[P])
            if ov(p.dst, c.dst) and not (c.srcc == p.dst and c.passes == P): n = max(n, {4: 8, 8: 12}[P])
        elif c.kind in ('valu', 'ds', 'vmem'):
            if ov(p.dst, c.src + c.dst): n = max(n, {4: 8, 8: 12}[P])
            if c.kind == 'valu' and ov(p.srcc, c.dst): n = max(n, {4: 3, 8: 7}[P])
    if p.kind == 'vmem' and getattr(p, 'store', False) and len(p.sdata) >= 3:
        if ov(p.sdata, c.dst): n = max(n, 2 if c.kind == 'valu' else 1)
    return n

class Asm:
    def __init__(self):
        self.lines = []
    def __call__(self, text):
        for l in text.split('\n'):
            l = l.strip()
            if l: self.lines.append(l)
    def label(self, name): self.lines.append(name + ':')
    stamps = False
    nstamp = 0
    def stamp(self, name=''):
        if not self.stamps: return
        k = self.nstamp; self.nstamp += 1
        self.stamp_names = getattr(self, 'stamp_names', []) + [name]
        self(f"s_memtime s[{64+2*k}:{65+2*k}]")
    def stamp_begin(self):
        if not self.stamps: return
        self.nstamp = 0; self.stamp_names = []
        self("s_memrealtime s[98:99]")
        for k in range(16): self(f"s_mov_b32 s{64+2*k}, 0")
        self.stamp('start')
    def stamp_end(self, srd, base, sid, swave):
        if not self.stamps: return
        self("s_waitcnt vmcnt(0)")
        self.stamp('end')
        self("s_memrealtime s[100:101]")
        self("s_waitcnt lgkmcnt(0)")
        self(f"s_lshl_b32 s3, {sid}, 2")
        self(f"s_add_u32 s3, s3, {swave}")
        self(f"s_lshl_b32 s3, s3, 7")
        self(f"s_add_u32 s3, s3, {base}")
        self("v_mov_b32 v2, 0")
        self("s_mov_b64 exec, 1")
        for k in range(16):
            self(f"v_mov_b32 v3, s{64+2*k}")
            self(f"buffer_store_dword v3, v2, {srd}, s3 offen offset:{4*k}")
        self("v_mov_b32 v3, s98")
        self(f"buffer_store_dword v3, v2, {srd}, s3 offen offset:64")
        self("v_mov_b32 v3, s100")
        self(f"buffer_store_dword v3, v2, {srd}, s3 offen offset:68")
        print("stamps:", self.stamp_names)
    def fix_hazards(self, verbose=False):
        ins = [Ins(l) for l in self.lines]
        changed = True
        total = 0
        while changed:
            changed = False
            labels = {x.text[:-1]: i for i, x in enumerate(ins) if x.kind == 'label'}
            i = 0
            while i < len(ins):
                c = ins[i]
                if c.kind in ('label', 'none'):
                    i += 1; continue
                worst = 0
                stack = [(i - 1, 0)]
                seen = set()
                while stack:
                    j, dist = stack.pop()
                    if j < 0 or dist >= 12 or (j, dist) in seen: continue
                    seen.add((j, dist))
                    p = ins[j]
                    if p.kind == 'label':
                        nm = p.text[:-1]
                        for k, q in enumerate(ins):
                            if q.kind == 'salu' and (q.op.startswith('s_cbranch') or q.op == 's_branch') and q.text.split()[-1] == nm:
                                stack.append((k, dist))
                        k = j - 1
                        while k >= 0 and ins[k].kind in ('none',): k -= 1
                        if k >= 0 and not (ins[k].op in ('s_branch', 's_endpgm')):
                            stack.append((j - 1, dist))
                        continue
                    if p.kind == 'none':
                        stack.append((j - 1, dist)); continue
                    nd = need(p, c)
                    if nd > dist: worst = max(worst, nd - dist)
                    stack.append((j - 1, dist + p.states()))
                if worst > 0:
                    if verbose: print("hazard pad", worst, "before", c.text)
                    ins.insert(i, Ins(f"s_nop {worst - 1}"))
                    total += 1
                    changed = True
                    labels = None
                    i += 1
                i += 1
        self.lines = [x.text for x in ins]
        return total
    def text(self):
        out = []
        for l in self.lines:
            out.append(l if l.endswith(':') or l.startswith('.') or l.startswith(';') else '    ' + l)
        return '\n'.join(out) + '\n'

class Queue:
    def __init__(self, A, name, maxn):
        self.A = A; self.name = name; self.maxn = maxn
        self.q = []
    def push(self, tag):
        self.q.append(tag); self.seen = getattr(self, 'seen', set()); self.seen.add(tag)
    def count_for(self, tags):
        if isinstance(tags, (str, tuple)): tags = [tags]
        last = -1
        for i, t in enumerate(self.q):
            if t in tags: last = i
        if last < 0: return None
        return len(self.q) - 1 - last
    def need(self, tags, emit=True):
        n = self.count_for(tags)
        if n is None: return None
        n = min(n, self.maxn)
        self.q = self.q[len(self.q) - n:] if n else []
        if emit: self.A(f"s_waitcnt {self.name}({n})")
        return n
    def drain(self, emit=True):
        if self.q and emit: self.A(f"s_waitcnt {self.name}(0)")
        self.q = []
```

```python
from layout import *
from asmlib import Queue

sQ, sW, sTAG = 's4', 's5', 's6'
pX, pLA, pAI, pCR, pCI, pLDT, pDSK = 's[8:9]', 's[10:11]', 's[12:13]', 's[14:15]', 's[16:17]', 's[18:19]', 's[20:21]'
WS = 's[24:27]'
UBS = 's[40:43]'
sLDT, sDSK = 's28', 's29'
sCH, sHW = 's22', 's23'
TROW = 528
KREV_SZ = 4576
L_KREV = 0
L_TAB = 2 * KREV_SZ
L_LN = L_KREV
LNROW = 1088
L_STS = 8 * LNROW
CPY = 4160
L_U = L_TAB
L_PART = L_U + 8 * CPY
C_LDS = L_TAB + 4 * 32 * TROW
vLANE = 'v1'
SPIN = 200000
POLL_SLEEP = 4
HINC = [1]*8 + [248] + [2]*4 + [248, 4, 4, 248, 4, 4, 248, 8, 248, 8, 248, 8, 248, 8] + [8]*4

class C:
    flag_step = 14
    hi_prio = 0
    def __init__(self, A):
        self.A = A
        self.vm = Queue(A, 'vmcnt', 63); self.lg = Queue(A, 'lgkmcnt', 15)
    def V(self, line, tag): self.A(line); self.vm.push(tag)
    def L(self, line, tag): self.A(line); self.lg.push(tag)
    def prio(self, hi):
        if self.hi_prio: self.A(f"s_setprio {self.hi_prio if hi else 0}")

    def post_flag(self, name, base):
        A = self.A
        A(f"s_cmp_lg_u32 {sW}, 0")
        A(f"s_cbranch_scc1 L{name}")
        A(f"s_lshl_b32 s3, {sQ}, 7")
        A(f"s_add_u32 s3, s3, {base}")
        A(f"v_mov_b32 v62, {sTAG}")
        A(f"v_mov_b32 v63, 0")
        A(f"s_mov_b64 exec, 1")
        self.prio(1)
        A(f"buffer_store_dword v62, v63, {WS}, s3 offen sc1")
        self.prio(0)
        A(f"s_mov_b64 exec, -1")
        A.label(f"L{name}")

    def run(self, sid):
        A = self.A; vm = self.vm; lg = self.lg; V = self.V; L = self.L
        self.prio(1)
        A(f"s_load_dwordx16 s[8:23], s[0:1], 0")
        A(f"s_load_dwordx2 s[24:25], s[0:1], 112")
        A(f"s_and_b32 s3, {sid}, 7")
        A(f"s_lshr_b32 {sQ}, {sid}, 3")
        A(f"s_lshl_b32 s3, s3, 5")
        A(f"s_add_u32 {sQ}, {sQ}, s3")
        A(f"v_lshrrev_b32 v2, 6, v0")
        A(f"v_and_b32 {vLANE}, 63, v0")
        A(f"v_readfirstlane_b32 {sW}, v2")
        A(f"s_mov_b32 s26, {WS_SIZE}")
        A(f"s_mov_b32 s27, 0x20000")
        A(f"s_lshl_b32 s3, {sQ}, 13")
        A(f"v_lshlrev_b32 v3, 11, v2")
        A(f"v_lshl_add_u32 v3, {vLANE}, 4, v3")
        A(f"v_add_u32 v3, s3, v3")
        A(f"v_mov_b32 v59, {WS_EP}")
        A(f"s_and_b32 s31, {sW}, 1")
        A(f"s_lshl_b32 s30, {sQ}, 1")
        A(f"s_add_u32 s3, s31, s30")
        A(f"s_lshl_b32 s3, s3, 8")
        A(f"v_lshl_add_u32 v16, {vLANE}, 2, s3")
        A(f"s_lshl_b32 s30, {sQ}, 2")
        A(f"s_waitcnt lgkmcnt(0)")
        V(f"global_load_dwordx4 v[8:11], v3, {pX}", 'x')
        V(f"global_load_dwordx4 v[12:15], v3, {pX} offset:1024", 'x')
        V(f"buffer_load_dword v59, v59, {WS}, 0 offen sc1", 'ep')
        V(f"global_load_dword v4, v16, {pLA}", 'par')
        V(f"global_load_dword v5, v16, {pAI}", 'par')
        V(f"global_load_dword v6, v16, {pCR}", 'par')
        V(f"global_load_dword v7, v16, {pCI}", 'par')
        A(f"s_load_dword {sLDT}, {pLDT}, s30")
        A(f"s_load_dword {sDSK}, {pDSK}, s30")
        self.prio(0)
        A(f"s_mov_b32 {sCH}, s31")
        A(f"s_lshr_b32 {sHW}, {sW}, 1")
        A(f"s_mov_b32 s40, s24")
        A(f"s_mov_b32 s41, s25")
        A(f"s_mov_b32 s42, {UB_SIZE}")
        A(f"s_mov_b32 s43, 0x20000")
        vKA, vKB, vKW, vKZ, vTW, vLW, vLR, vCT, vCH, vUA, vUB, vUL, vPW, vPR, vUD, vPO = range(240, 256)
        def nibp(lst): return sum(lst[7 - p] << (4 * p) for p in range(8))
        N0 = nibp(list(range(8))); N1 = nibp([0,0,1,2,2,2,3,4]); N2 = nibp([0,0,0,1,1,1,2,2]); N4 = nibp([0,0,0,0,0,1,1,1])
        A(f"v_and_b32 v20, 7, {vLANE}")
        A(f"v_lshlrev_b32 v20, 2, v20")
        A(f"v_bfe_u32 v21, {vLANE}, 3, 2")
        A(f"s_cmp_lt_u32 {sW}, 2")
        A(f"s_mov_b32 s35, {N4:#x}")
        A(f"s_cselect_b32 s32, {N0:#x}, s35")
        A(f"s_cselect_b32 s33, {N1:#x}, s35")
        A(f"s_cselect_b32 s34, {N2:#x}, s35")
        A(f"s_mov_b32 s35, {(26<<24)|(24<<16)|(22<<8)|20:#x}")
        A(f"s_cselect_b32 s35, {(17<<24)|(14<<16)|(9<<8)|0:#x}, s35")
        A(f"s_cselect_b32 s36, 0, 0xaaaaaaaa")
        A(f"s_mov_b32 s37, 0")
        A(f"v_cmp_eq_u32 vcc, 1, v21")
        A(f"v_mov_b32 v22, s34")
        A(f"v_mov_b32 v23, s33")
        A(f"v_cndmask_b32 v22, v22, v23, vcc")
        A(f"v_cmp_eq_u32 vcc, 0, v21")
        A(f"v_mov_b32 v23, s32")
        A(f"v_lshlrev_b32 v21, 3, v21")
        A(f"v_cndmask_b32 v22, v22, v23, vcc")
        A(f"v_bfe_u32 v22, v22, v20, 4")
        A(f"v_bfe_u32 v23, s35, v21, 8")
        A(f"v_add_u32 v22, v22, v23")
        A(f"v_lshrrev_b32 v23, 5, {vLANE}")
        A(f"s_mul_i32 s31, {sCH}, {64*TROW}")
        A(f"v_lshl_add_u32 v24, v23, 4, s31")
        A(f"s_movk_i32 s30, {TROW}")
        A(f"v_mad_u32_u24 v{vKA}, v22, s30, v24")
        A(f"v_and_b32 v22, 31, {vLANE}")
        A(f"v_mad_u32_u24 v{vKB}, v22, s30, v24")
        A(f"s_mul_i32 s30, {sHW}, {32*TROW}")
        A(f"s_add_u32 s31, s31, s30")
        A(f"v_lshl_add_u32 v{vTW}, {vLANE}, 3, s31")
        A(f"s_mul_i32 s31, {sCH}, {KREV_SZ}")
        A(f"v_lshl_add_u32 v{vKZ}, {vLANE}, 4, s31")
        A(f"s_lshl_b32 s30, {sHW}, 11")
        A(f"s_sub_u32 s32, s31, s30")
        A(f"s_add_u32 s32, s32, {L_KREV + 4080 - 1536}")
        A(f"v_lshlrev_b32 v22, 4, v22")
        A(f"v_sub_u32 v22, s32, v22")
        A(f"v_lshl_add_u32 v{vKW}, v23, 3, v22")
        A(f"v_and_b32 v20, 15, {vLANE}")
        A(f"v_lshrrev_b32 v21, 4, {vLANE}")
        A(f"s_lshl_b32 s32, {sHW}, 8")
        A(f"s_add_u32 s31, s31, s32")
        A(f"s_add_u32 s31, s31, {L_KREV + 480}")
        A(f"v_lshlrev_b32 v22, 5, v20")
        A(f"v_sub_u32 v22, s31, v22")
        A(f"v_lshl_add_u32 v{vCT}, v21, 4, v22")
        A(f"s_mul_i32 s31, {sCH}, {4*CPY}")
        A(f"s_add_u32 s33, s31, s32")
        A(f"v_bfe_u32 v22, {vLANE}, 2, 2")
        A(f"v_and_b32 v24, 3, {vLANE}")
        A(f"v_mul_u32_u24 v25, {CPY}, v22")
        A(f"v_lshl_add_u32 v25, v21, 4, v25")
        A(f"v_lshl_add_u32 v25, v24, 3, v25")
        A(f"v_add_u32 v{vCH}, s33, v25")
        A(f"s_mul_i32 s3, {sW}, {2*LNROW}")
        A(f"v_lshl_add_u32 v{vLW}, {vLANE}, 4, s3")
        A(f"v_mul_u32_u24 v25, {LNROW}, v22")
        A(f"v_lshl_add_u32 v25, v21, 5, v25")
        A(f"v_lshl_add_u32 v25, v24, 3, v25")
        A(f"s_lshl_b32 s3, {sW}, 8")
        A(f"v_add_u32 v{vLR}, s3, v25")
        A(f"v_lshlrev_b32 v25, 3, v23")
        A(f"v_xor_b32 v25, v25, {vLANE}")
        A(f"s_lshl_b32 s3, {sW}, 13")
        A(f"v_lshl_add_u32 v{vPW}, v25, 4, s3")
        A(f"v_and_b32 v24, 1, {vLANE}")
        A(f"v_bfe_u32 v25, {vLANE}, 1, 4")
        A(f"v_lshlrev_b32 v26, 3, v24")
        A(f"v_xor_b32 v25, v25, v26")
        A(f"v_lshlrev_b32 v25, 4, v25")
        A(f"v_lshl_add_u32 v25, v24, 9, v25")
        A(f"v_lshl_add_u32 v25, v23, 10, v25")
        A(f"s_lshl_b32 s3, {sCH}, 13")
        A(f"s_lshl_b32 s30, {sHW}, 12")
        A(f"s_add_u32 s3, s3, s30")
        A(f"v_add_u32 v{vPR}, s3, v25")
        A(f"s_lshl_b32 s30, {sHW}, 11")
        A(f"s_add_u32 s31, s31, s30")
        A(f"v_lshl_add_u32 v{vUD}, {vLANE}, 4, s31")
        A(f"v_lshrrev_b32 v25, 1, {vLANE}")
        A(f"v_lshl_add_u32 v25, v2, 6, v25")
        A(f"s_lshl_b32 s3, {sQ}, 5")
        A(f"s_sub_u32 s3, s3, 16384")
        A(f"v_lshlrev_b32 v26, 13, v25")
        A(f"v_lshl_add_u32 v26, v24, 4, v26")
        A(f"v_add_u32 v{vUA}, s3, v26")
        A(f"v_add_u32 v{vUB}, 8192, v{vUA}")
        A(f"v_mul_u32_u24 v26, {4*CPY}, v24")
        A(f"v_lshl_add_u32 v{vUL}, v25, 4, v26")
        A(f"v_lshl_add_u32 v25, v2, 6, {vLANE}")
        A(f"v_subrev_u32 v25, 2, v25")
        A(f"v_max_i32 v25, 0, v25")
        A(f"v_lshlrev_b32 v{vPO}, 7, v25")
        vm.need(['x', 'ep'])
        A.stamp('ln loaded')
        A(f"v_readfirstlane_b32 {sTAG}, v59")
        for r in range(2):
            for i in range(4):
                A(f"v_lshlrev_b32 v{20+8*r+2*i}, 16, v{8+4*r+i}")
                A(f"v_and_b32 v{21+8*r+2*i}, 0xffff0000, v{8+4*r+i}")
        A(f"s_add_u32 {sTAG}, {sTAG}, {TAG_INC:#x}")
        for r in range(2):
            b = 20 + 8 * r
            A(f"v_add_f32 v{44+2*r}, v{b}, v{b+1}")
            A(f"v_mul_f32 v{45+2*r}, v{b}, v{b}")
        for i in range(1, 8):
            for r in range(2):
                b = 20 + 8 * r + i
                if i >= 2: A(f"v_add_f32 v{44+2*r}, v{44+2*r}, v{b}")
                A(f"v_fmac_f32 v{45+2*r}, v{b}, v{b}")
        for ctl in ("row_shr:1 row_mask:0xf bank_mask:0xf bound_ctrl:0", "row_shr:2 row_mask:0xf bank_mask:0xf bound_ctrl:0",
                    "row_shr:4 row_mask:0xf bank_mask:0xf bound_ctrl:0", "row_shr:8 row_mask:0xf bank_mask:0xf bound_ctrl:0",
                    "row_bcast:15 row_mask:0xa bank_mask:0xf", "row_bcast:31 row_mask:0xc bank_mask:0xf"):
            for k in range(4):
                A(f"v_add_f32_dpp v{44+k}, v{44+k}, v{44+k} {ctl}")
        for k in range(4):
            A(f"v_readlane_b32 s{32+k}, v{44+k}, 63")
        A(f"v_mov_b32 v48, 0x3b000000")
        for r in range(2):
            A(f"v_mul_f32 v{36+r}, s{32+2*r}, v48")
            A(f"v_mul_f32 v{38+r}, s{33+2*r}, v48")
        for r in range(2): A(f"v_fma_f32 v{38+r}, -v{36+r}, v{36+r}, v{38+r}")
        for r in range(2): A(f"v_max_f32 v{38+r}, 0, v{38+r}")
        for r in range(2): A(f"v_cvt_pk_bf16_f32 v{40+r}, v{36+r}, v{38+r}")
        for r in range(2): A(f"v_and_b32 v{38+r}, 0xffff0000, v{40+r}")
        for r in range(2): A(f"v_add_f32 v{38+r}, 0x3727c5ac, v{38+r}")
        A(f"v_cvt_pk_bf16_f32 v42, v38, v39")
        A(f"v_lshlrev_b32 v38, 16, v42")
        A(f"v_and_b32 v39, 0xffff0000, v42")
        for r in range(2): A(f"v_sqrt_f32 v{38+r}, v{38+r}")
        for r in range(2): A(f"v_lshlrev_b32 v{36+r}, 16, v{40+r}")
        for r in range(2):
            A(f"v_cvt_pk_bf16_f32 v{44+2*r}, v{36+r}, v{38+r}")
            A(f"v_mov_b32 v{45+2*r}, {sTAG}")
        for r in range(2): A(f"v_and_b32 v{38+r}, 0xffff0000, v{44+2*r}")
        for r in range(2): A(f"v_rcp_f32 v{50+2*r}, v{38+r}")
        A(f"v_lshlrev_b32 v49, 4, v2")
        A(f"s_mov_b64 exec, 1")
        L(f"ds_write_b128 v49, v[44:47] offset:{L_STS}", 'w')
        A(f"s_mov_b64 exec, -1")
        for r in range(2): A(f"v_mul_f32_e64 v{51+2*r}, -v{36+r}, v{50+2*r}")
        for r in range(2):
            for i in range(8):
                b = 20 + 8 * r + i
                A(f"v_fma_f32 v{b}, v{b}, v{50+2*r}, v{51+2*r}")
            for i in range(4):
                b = 20 + 8 * r + 2 * i
                A(f"v_cvt_pk_bf16_f32 v{8+4*r+i}, v{b}, v{b+1}")
            L(f"ds_write_b128 v{vLW}, v[{8+4*r}:{11+4*r}] offset:{L_LN+LNROW*r}", 'w')
        A(f"v_lshlrev_b32 v49, 4, {vLANE}")
        A(f"s_lshl_b32 s3, {sQ}, 7")
        A(f"s_add_u32 s3, s3, {WS_ST}")
        lg.drain()
        A(f"s_barrier")
        for i in range(2):
            L(f"ds_read_b64_tr_b16 v[{8+4*i}:{9+4*i}], v{vLR} offset:{L_LN+128*i}", 'r')
            L(f"ds_read_b64_tr_b16 v[{10+4*i}:{11+4*i}], v{vLR} offset:{L_LN+128*i+4*LNROW}", 'r')
        L(f"ds_read_b128 v[44:47], v49 offset:{L_STS}", 'r')
        LOG2E = '0x3fb8aa3b'
        A(f"s_lshl_b32 s30, {sLDT}, 16")
        A(f"s_and_b32 s31, {sLDT}, 0xffff0000")
        A(f"s_cmp_eq_u32 {sCH}, 0")
        A(f"s_cselect_b32 {sLDT}, s30, s31")
        A(f"s_lshl_b32 s30, {sDSK}, 16")
        A(f"s_and_b32 s31, {sDSK}, 0xffff0000")
        A(f"s_cmp_eq_u32 {sCH}, 0")
        A(f"s_cselect_b32 {sDSK}, s30, s31")
        A(f"v_mov_b32 v16, {LOG2E}")
        A(f"v_mul_f32 v17, {sLDT}, v16")
        A(f"v_exp_f32 v17, v17")
        A(f"s_cmp_eq_u32 {sW}, 0")
        vm.need('par')
        lg.drain()
        self.prio(1)
        A(f"s_cbranch_scc0 Lc_nost")
        A(f"s_mov_b64 exec, 15")
        A(f"buffer_store_dwordx4 v[44:47], v49, {WS}, s3 offen sc1")
        A(f"s_mov_b64 exec, -1")
        A.label("Lc_nost")
        V(f"buffer_store_dwordx4 v[8:11], v3, {WS}, 0 offen sc1", 'ust')
        V(f"buffer_store_dwordx4 v[12:15], v3, {WS}, 0 offen offset:1024 sc1", 'ust')
        self.prio(0)
        A.stamp('ln done')
        A(f"s_cmp_lt_u32 {sW}, 2")
        A(f"s_cselect_b32 s32, 1.0, 0x41000000")
        A(f"s_cselect_b32 s33, 0x43780000, s32")
        A(f"s_cselect_b32 s34, 0xbe22f983, 0.15915494")
        A(f"v_cvt_pk_bf16_f32 v17, v17, v17")
        A(f"v_lshlrev_b32 v17, 16, v17")
        A(f"v_lshlrev_b32 v20, 16, v4")
        A(f"v_and_b32 v21, 0xffff0000, v4")
        A(f"v_mul_f32 v20, v20, v16")
        A(f"v_mul_f32 v21, v21, v16")
        A(f"v_exp_f32 v20, v20")
        A(f"v_exp_f32 v21, v21")
        A(f"v_lshlrev_b32 v22, 16, v5")
        A(f"v_and_b32 v23, 0xffff0000, v5")
        A(f"v_cvt_pk_bf16_f32 v18, v20, v21")
        A(f"v_mul_f32 v22, v22, v17")
        A(f"v_mul_f32 v23, v23, v17")
        A(f"v_lshlrev_b32 v20, 16, v18")
        A(f"v_and_b32 v21, 0xffff0000, v18")
        A(f"v_mul_f32 v22, s34, v22")
        A(f"v_mul_f32 v23, s34, v23")
        A(f"v_mul_f32 v20, v20, v17")
        A(f"v_mul_f32 v21, v21, v17")
        A(f"v_mul_f32_e64 v20, -v20, v16")
        A(f"v_mul_f32_e64 v21, -v21, v16")
        MR = {1: 24, 248: 28, 2: 32, 4: 36, 8: 40}
        for (inc, sreg, tb) in ((1, 's32', 64), (248, 's33', 68)):
            for i in range(2):
                A(f"v_mul_f32 v{tb+i}, {sreg}, v{20+i}")
                A(f"v_mul_f32 v{tb+2+i}, {sreg}, v{22+i}")
        for tb in (64, 68):
            for i in range(2):
                A(f"v_exp_f32 v{tb+i}, v{tb+i}")
                A(f"v_fract_f32 v{tb+2+i}, v{tb+2+i}")
        for (inc, tb) in ((1, 64), (248, 68)):
            for i in range(2):
                m = MR[inc] + 2 * i
                A(f"v_cos_f32 v{m}, v{tb+2+i}")
                A(f"v_sin_f32 v{m+1}, v{tb+2+i}")
        for (inc, tb) in ((1, 64), (248, 68)):
            for i in range(2):
                m = MR[inc] + 2 * i
                A(f"v_mul_f32 v{m}, v{m}, v{tb+i}")
                A(f"v_mul_f32 v{m+1}, v{m+1}, v{tb+i}")
        def cmul2(dst, a, m):
            l1 = []; l2 = []
            for i in range(2):
                d, x, y = dst + 2 * i, a + 2 * i, m + 2 * i
                l1.append(f"v_mul_f32_e64 v{d}, -v{x+1}, v{y+1}")
                l1.append(f"v_mul_f32 v{d+1}, v{x}, v{y+1}")
                l2.append(f"v_fmac_f32 v{d}, v{x}, v{y}")
                l2.append(f"v_fmac_f32 v{d+1}, v{x+1}, v{y}")
            return l1, l2
        A(f"s_cbranch_scc1 Lkg_h")
        for r in range(32, 44):
            A(f"v_mov_b32 v{r}, v{24 + (r & 3)}")
        A(f"v_mov_b32 v48, 1.0")
        A(f"v_mov_b32 v49, 0")
        A(f"v_mov_b32 v50, 1.0")
        A(f"v_mov_b32 v51, 0")
        A(f"s_branch Lkg_go")
        A.label("Lkg_h")
        A(f"v_add_f32 v17, v17, v17")
        A(f"v_lshlrev_b32 v48, 16, v6")
        A(f"v_lshlrev_b32 v49, 16, v7")
        A(f"v_and_b32 v50, 0xffff0000, v6")
        A(f"v_and_b32 v51, 0xffff0000, v7")
        for (d, s) in ((2, 1), (4, 2), (8, 4)):
            l1, l2 = cmul2(MR[d], MR[s], MR[s])
            for x in l1 + l2: A(x)
        A(f"v_mul_f32 v48, v48, v17")
        A(f"v_mul_f32_e64 v49, -v49, v17")
        A(f"v_mul_f32 v50, v50, v17")
        A(f"v_mul_f32_e64 v51, -v51, v17")
        A.label("Lkg_go")
        cur, nxt = 48, 52
        for step in range(32):
            pk = 56 + 2 * (step & 1)
            if step < 31:
                l1, l2 = cmul2(nxt, cur, MR[HINC[step]])
                for x in l1: A(x)
            A(f"v_cvt_pk_bf16_f32 v{pk}, v{cur}, v{cur+1}")
            A(f"v_cvt_pk_bf16_f32 v{pk+1}, v{cur+2}, v{cur+3}")
            if step < 31:
                for x in l2: A(x)
            A(f"ds_write_b64 v{vTW}, v[{pk}:{pk+1}] offset:{L_TAB + step*TROW}")
            cur, nxt = nxt, cur
            if step == self.flag_step:
                A(f"s_waitcnt vmcnt(0)")
                A(f"s_barrier")
                self.post_flag("c_pu", WS_FU)
                A.stamp('u flag')
        vm.q = []
        A.stamp('kg chain')
        A(f"s_mov_b32 s38, {WS_FU}")
        def poll_issue():
            self.prio(1)
            A(f"buffer_load_dword v60, v{vPO}, {WS}, s38 offen sc1")
            A(f"s_mov_b64 exec, 12")
            A(f"buffer_load_dword v61, v{vPO}, {WS}, s39 offen offset:0 sc1")
            A(f"s_mov_b64 exec, -1")
            self.prio(0)
        A(f"s_mov_b32 s39, {WS_FU + 62*128}")
        A(f"v_mov_b32 v61, {sTAG}")
        poll_issue()
        A(f"s_waitcnt lgkmcnt(0)")
        A(f"s_barrier")
        lg.q = []
        def rdk(k):
            r = 64 + 8 * (k % 8)
            L(f"ds_read_b128 v[{r}:{r+3}], v{vKA} offset:{L_TAB + 32*k}", ('k', k))
            L(f"ds_read_b128 v[{r+4}:{r+7}], v{vKB} offset:{L_TAB + 32*TROW + 32*k}", ('k', k))
        for k in range(7): rdk(k)
        for r in range(24, 28): A(f"v_mov_b32 v{r}, 0")
        for k in range(16):
            lg.need(('k', k))
            r = 64 + 8 * (k % 8)
            c = '0' if k == 0 else 'v[32:47]'
            A(f"v_mfma_f32_32x32x16_bf16 v[32:47], v[{r}:{r+3}], v[{r+4}:{r+7}], {c}")
            if k + 7 < 16: rdk(k + 7)
        A(f"s_mov_b64 exec, 0x3fffffff")
        L(f"ds_write_b128 v{vKZ}, v[24:27] offset:{L_KREV + 4096}", 'w')
        A(f"s_mov_b64 exec, -1")
        A(f"s_mov_b32 s30, {SPIN}")
        A.label("Lc_poll")
        A(f"s_waitcnt vmcnt(0)")
        A(f"v_xor_b32 v62, {sTAG}, v60")
        A(f"v_xor_b32 v63, {sTAG}, v61")
        A(f"v_or_b32 v62, v62, v63")
        A(f"v_cmp_ne_u32 vcc, 0, v62")
        A(f"s_sub_u32 s30, s30, 1")
        A(f"s_cbranch_scc1 Lc_poll_ok")
        A(f"s_cbranch_vccz Lc_poll_ok")
        A(f"s_sleep {POLL_SLEEP}")
        poll_issue()
        A(f"s_branch Lc_poll")
        A.label("Lc_poll_ok")
        A.stamp('u ok')
        self.prio(1)
        A(f"s_mov_b32 s30, {32*8192}")
        A(f"v_add_u32 v62, s30, v{vUA}")
        A(f"v_add_u32 v63, s30, v{vUB}")
        A(f"s_cmp_lg_u32 {sW}, 3")
        A(f"s_cbranch_scc1 Lc_no3")
        A(f"s_mov_b64 exec, 15")
        A(f"buffer_load_dwordx4 v[144:147], v62, {UBS}, s30 offen sc1")
        A(f"buffer_load_dwordx2 v[148:149], v63, {UBS}, s30 offen sc1")
        A(f"s_mov_b64 exec, -1")
        A.label("Lc_no3")
        V(f"buffer_load_dwordx4 v[128:131], v{vUA}, {UBS}, 0 offen sc1", ('u', 0))
        V(f"buffer_load_dwordx2 v[132:133], v{vUB}, {UBS}, 0 offen sc1", ('u', 0))
        V(f"buffer_load_dwordx4 v[136:139], v62, {UBS}, 0 offen sc1", ('u', 1))
        V(f"buffer_load_dwordx2 v[140:141], v63, {UBS}, 0 offen sc1", ('u', 1))
        self.prio(0)
        for q in range(4): A(f"v_cndmask_b32 v{32+4*q+3}, v{32+4*q+3}, v{32+4*q+2}, s[36:37]")
        for q in range(4):
            A(f"v_cvt_pk_bf16_f32 v{48+2*q}, v{32+4*q}, v{33+4*q}")
            A(f"v_cvt_pk_bf16_f32 v{49+2*q}, v{34+4*q}, v{35+4*q}")
        for q in range(4): L(f"ds_write_b64 v{vKW}, v[{48+2*q}:{49+2*q}] offset:{512*(3-q)}", 'w')
        lg.drain()
        A(f"s_barrier")
        A.stamp('kg done')
        for r in range(32, 64): A(f"v_mov_b32 v{r}, 0")
        for i in range(3):
            w = 128 + 8 * i; t = 64 + 12 * i
            vm.need(('u', i))
            if i == 2:
                A(f"s_cmp_lg_u32 {sW}, 3")
                A(f"s_cbranch_scc1 Lc_nob")
                A(f"s_mov_b64 exec, 15")
            for j in range(4): A(f"v_alignbyte_b32 v{t+j}, v{w+j+1}, v{w+j}, 2")
            off = L_U + 512 * i
            A(f"ds_write_b128 v{vUL}, v[{w+2}:{w+5}] offset:{off + 3*CPY}")
            for j in range(4): A(f"v_mov_b32 v{t+4+j}, v{w+j+1}")
            A(f"ds_write_b128 v{vUL}, v[{t}:{t+3}] offset:{off}")
            for j in range(4): A(f"v_alignbyte_b32 v{t+8+j}, v{w+j+2}, v{w+j+1}, 2")
            A(f"ds_write_b128 v{vUL}, v[{t+4}:{t+7}] offset:{off + CPY}")
            A(f"ds_write_b128 v{vUL}, v[{t+8}:{t+11}] offset:{off + 2*CPY}")
        A(f"s_mov_b64 exec, -1")
        A.label("Lc_nob")
        A(f"s_waitcnt lgkmcnt(0)")
        A(f"s_barrier")
        lg.q = []
        A.stamp('cv built')
        def frag_ops(b, rho, i):
            T = 64 + 64 * b + 4 * i; H = 96 + 64 * b + 4 * i
            return [(f"ds_read_b128 v[{T}:{T+3}], v{vCT} offset:{512*(7-i) + 64*rho}", ('f', rho, i)),
                    (f"ds_read_b64_tr_b16 v[{H}:{H+1}], v{vCH} offset:{L_U + 512*i + 64*rho}", ('f', rho, i)),
                    (f"ds_read_b64_tr_b16 v[{H+2}:{H+3}], v{vCH} offset:{L_U + 512*i + 8 + 64*rho}", ('f', rho, i))]
        pend = [o for rho in range(4) for i in range(8) for o in frag_ops(rho & 1, rho, i)]
        for o in pend[:12]: L(*o)
        pend = pend[12:]
        for rho in range(4):
            b = rho & 1
            for n in range(8):
                lg.need(('f', rho, n))
                pairs = [(s_, d) for s_ in range(8) for d in range(8) if s_ + d <= 7 and max(s_, d) == n]
                for (s_, d) in pairs:
                    a = 32 + 4 * (s_ + d)
                    A(f"v_mfma_f32_16x16x32_bf16 v[{a}:{a+3}], v[{96+64*b+4*s_}:{99+64*b+4*s_}], v[{64+64*b+4*d}:{67+64*b+4*d}], v[{a}:{a+3}]")
                    k = 3 if (pend and pend[0][1][1] == rho) else 1
                    for _ in range(k):
                        if pend and pend[0][1][1] <= rho + 1:
                            if len(lg.q) >= 14:
                                A("s_waitcnt lgkmcnt(8)"); lg.q = lg.q[-8:]
                            L(*pend.pop(0))
        assert not pend
        A.stamp('cv loop')
        for p in range(2):
            L(f"ds_read_b64 v[{128+4*p}:{129+4*p}], v{vUD} offset:{L_U + 3*CPY + 24 + 1024*p}", 'ud')
            L(f"ds_read_b64 v[{130+4*p}:{131+4*p}], v{vUD} offset:{L_U + 3*CPY + 32 + 1024*p}", 'ud')
        for a in range(8):
            L(f"ds_write_b128 v{vPW}, v[{32+4*a}:{35+4*a}] offset:{L_PART + 1024*a}", 'w')
        A(f"s_lshl_b32 s32, {sQ}, 1")
        A(f"s_add_u32 s32, s32, {sCH}")
        A(f"s_lshl_b32 s32, s32, 12")
        A(f"s_lshl_b32 s30, {sHW}, 11")
        A(f"s_add_u32 s32, s32, s30")
        A(f"s_add_u32 s32, s32, {WS_YT}")
        A(f"v_lshlrev_b32 v20, 4, {vLANE}")
        lg.need('ud')
        for k in range(8):
            A(f"v_lshlrev_b32 v{136+2*k}, 16, v{128+k}")
            A(f"v_and_b32 v{137+2*k}, 0xffff0000, v{128+k}")
        lg.drain()
        A(f"s_barrier")
        for p in range(2):
            for part in range(2):
                for hf in range(2):
                    r = 64 + 16 * p + 8 * part + 4 * hf
                    L(f"ds_read_b128 v[{r}:{r+3}], v{vPR} offset:{L_PART + 2048*p + 16384*part + 256*hf}", ('pr', p))
        for p in range(2):
            lg.need(('pr', p))
            r = 64 + 16 * p
            for e in range(8): A(f"v_add_f32 v{r+e}, v{r+e}, v{r+8+e}")
            for e in range(8): A(f"v_fmac_f32 v{r+e}, {sDSK}, v{136+8*p+e}")
            for e in range(4): A(f"v_cvt_pk_bf16_f32 v{r+8+e}, v{r+2*e}, v{r+2*e+1}")
            self.prio(1)
            A(f"buffer_store_dwordx4 v[{r+8}:{r+11}], v20, {WS}, s32 offen offset:{1024*p} sc1")
        A.stamp('y stored')
        A(f"s_waitcnt vmcnt(0)")
        A(f"s_barrier")
        self.post_flag("c_py", WS_FY)
```

```python
from layout import *
from asmlib import Queue

sID, sW, sTAG = 's4', 's5', 's6'
X, W1, W2, WS, OUT, B1 = 's[8:11]', 's[12:15]', 's[16:19]', 's[20:23]', 's[24:27]', 's[28:31]'
pB2 = 's[32:33]'
vLANE = 'v1'
G_LDS = 81920
WSLOT = 12288
L_X = 4 * WSLOT
W1_SIZE = 512 * 1376 * 2
SB = 32768
SPIN = 200000
POLL_SLEEP = 4

vXS = 4
vWS_ = 8
vXA = 12
vWA = 16
vONE = 20
vSA = 24
vB1 = 28
vACC = 32
vWB = 80
vXR = 104
vDS = 136
vRA = 140
vST = 144
vEX = 148
vWR = 160
sRB, sCB = 's34', 's35'
sKX, sKW, sMX, sMW = 's38', 's39', 's40', 's41'
sRB2, sDB, sWO, sHO, sM2 = 's48', 's49', 's50', 's51', 's52'
NST = 11
W2J = {0: 3, 1: 0, 2: 4, 3: 1, 4: 3, 5: 0, 6: 4, 7: 1, 8: 2, 9: 3, 10: 0}

class G:
    def __init__(self, A, perm_a, perm_b, sc='sc1'):
        self.A = A; self.sc = sc; self.pa = perm_a; self.pb = perm_b
        self.vm = Queue(A, 'vmcnt', 63); self.lg = Queue(A, 'lgkmcnt', 15)

    def emit(self, op):
        lines, q, tag = op
        for l in lines: self.A(l)
        if q is not None: q.push(tag)
    def x_ops(self, s):
        return [([f"s_add_u32 m0, {sMX}, {(s&1)*16384}", f"s_bfe_u32 s3, s36, {(4*s) | (3<<16):#x}", f"s_lshl_b32 {sKX}, s3, 7"][:3 if force else 0]
                 + [f"buffer_load_dwordx4 v{vXS+i}, {X}, {sKX} offen offset:{1024*i} lds"], self.vm, ('x', s)) for i, force in enumerate([1, 0, 0, 0])]
    def w_ops(self, s):
        return [([f"s_add_u32 m0, {sMW}, {(s&3)*WSLOT}", f"s_bfe_u32 s3, s36, {(4*s) | (3<<16):#x}", f"s_mul_i32 {sKW}, s3, {64*2752}"][:3 if force else 0]
                 + [f"buffer_load_dwordx4 v{vWS_+i}, {W1}, {sKW} offen offset:{1024*i} lds"], self.vm, ('w', s)) for i, force in enumerate([1, 0, 0])]
    def w2_ops(self, st):
        return [([f"s_add_u32 m0, {sM2}, {W2J[st]*16384}", f"s_add_u32 s53, {sWO}, {st*32768}"][:2 if force else 0]
                 + [f"buffer_load_dwordx4 v{vDS+i}, {W2}, s53 offen offset:{1024*i} lds"], self.vm, ('w2', st)) for i, force in enumerate([1, 0, 0, 0])]
    def rd2_ops(self, dst, st, kk, tag):
        j = W2J[st]; ops = []
        for dt in range(2):
            r = dst + 4 * dt
            a, off = (vRA + dt, j * 16384) if j < 4 else (vRA + 2 + dt, 0)
            off += kk * 2048
            ops.append(([f"ds_read_b64_tr_b16 v[{r}:{r+1}], v{a} offset:{off}"], self.lg, tag))
            ops.append(([f"ds_read_b64_tr_b16 v[{r+2}:{r+3}], v{a} offset:{off+1024}"], self.lg, tag))
        return ops
    def rdstep_ops(self, st):
        return self.rd2_ops(vWR + 16 * st, st, 0, ('r2', st)) + self.rd2_ops(vWR + 16 * st + 8, st, 1, ('r2', st))

    def prologue(self, sid):
        A = self.A
        A(f"s_load_dwordx2 s[8:9], s[0:1], 0")
        A(f"s_load_dwordx2 s[12:13], s[0:1], 64")
        A(f"s_load_dwordx2 s[20:21], s[0:1], 112")
        A(f"s_load_dwordx2 s[28:29], s[0:1], 72")
        A(f"s_load_dwordx2 s[16:17], s[0:1], 80")
        A(f"s_load_dwordx2 s[32:33], s[0:1], 88")
        A(f"s_load_dwordx2 s[24:25], s[0:1], 96")
        A(f"s_mov_b32 {sID}, {sid}")
        A(f"v_lshrrev_b32 v2, 6, v0")
        A(f"v_and_b32 {vLANE}, 63, v0")
        A(f"v_readfirstlane_b32 {sW}, v2")
        for base, size in ((8, 0x200000), (12, W1_SIZE), (16, W1_SIZE), (20, WS_SIZE), (24, 0x200000), (28, 2752)):
            A(f"s_mov_b32 s{base+2}, {size}")
            A(f"s_mov_b32 s{base+3}, 0x20000")

    def w2_setup(self):
        A = self.A
        A(f"s_and_b32 s3, {sID}, 7")
        A(f"s_bfe_u32 {sRB2}, {sID}, 0x20003")
        A(f"s_lshl_b32 s3, s3, 2")
        A(f"s_add_u32 {sRB2}, {sRB2}, s3")
        A(f"s_lshr_b32 {sDB}, {sID}, 5")
        A(f"v_lshrrev_b32 v3, 3, {vLANE}")
        A(f"v_and_b32 v29, 7, {vLANE}")
        A(f"v_bfe_u32 v31, {vLANE}, 4, 1")
        A(f"v_lshlrev_b32 v2, 2, v31")
        A(f"v_xor_b32 v29, v29, v2")
        A(f"v_lshlrev_b32 v29, 4, v29")
        A(f"v_lshl_add_u32 v29, v3, 10, v29")
        A(f"s_lshl_b32 s3, {sDB}, 7")
        A(f"v_add_u32 v{vDS}, s3, v29")
        for i in (1, 2, 3):
            A(f"v_add_u32 v{vDS+i}, {7168*i}, v{vDS}")
        A(f"s_mul_i32 {sWO}, {sW}, {NST*32768}")
        A(f"s_lshl_b32 {sM2}, {sW}, 12")
        A(f"v_lshrrev_b32 v2, 5, {vLANE}")
        A(f"v_bfe_u32 v3, {vLANE}, 2, 2")
        A(f"v_lshl_add_u32 v29, v2, 2, v3")
        A(f"v_lshlrev_b32 v29, 7, v29")
        A(f"v_xor_b32 v31, {sW}, v31")
        A(f"v_and_b32 v3, 2, v3")
        A(f"v_xor_b32 v31, v31, v3")
        A(f"v_lshl_add_u32 v29, v31, 5, v29")
        A(f"v_and_b32 v3, 3, {vLANE}")
        A(f"v_lshl_add_u32 v29, v3, 3, v29")
        A(f"v_add_u32 v{vRA}, {sM2}, v29")
        A(f"v_xor_b32 v{vRA+1}, 64, v{vRA}")
        A(f"v_add_u32 v{vRA+2}, 65536, v{vRA}")
        A(f"v_add_u32 v{vRA+3}, 65536, v{vRA+1}")

    def gemm1(self):
        A = self.A; vm = self.vm; lg = self.lg; sc = self.sc; E = self.emit
        A(f"s_and_b32 s3, {sID}, 7")
        A(f"s_bfe_u32 {sRB}, {sID}, 0x10003")
        A(f"s_lshl_b32 s3, s3, 1")
        A(f"s_add_u32 {sRB}, {sRB}, s3")
        A(f"s_lshr_b32 {sCB}, {sID}, 4")
        A(f"s_bitcmp1_b32 {sID}, 3")
        A(f"s_mov_b32 s36, {self.pa:#x}")
        A(f"s_cselect_b32 s36, {self.pb:#x}, s36")
        A(f"s_and_b32 s3, {sCB}, 7")
        A(f"s_mul_i32 s3, s3, 0x11111111")
        A(f"s_add_u32 s36, s36, s3")
        A(f"v_lshrrev_b32 v3, 3, {vLANE}")
        A(f"v_lshrrev_b32 v30, 4, {vLANE}")
        A(f"v_and_b32 v31, 7, {vLANE}")
        A(f"v_xor_b32 v31, v31, v30")
        A(f"v_lshlrev_b32 v31, 4, v31")
        A(f"v_lshl_add_u32 v31, v3, 10, v31")
        A(f"s_lshl_b32 s3, {sRB}, 17")
        A(f"s_lshl_b32 s43, {sW}, 15")
        A(f"s_add_u32 s3, s3, s43")
        A(f"v_add_u32 v{vXS}, s3, v31")
        A(f"v_xor_b32 v{vXS+1}, 64, v{vXS}")
        A(f"v_add_u32 v{vXS+1}, {8192-1024}, v{vXS+1}")
        A(f"v_add_u32 v{vXS+2}, {2*(8192-1024)}, v{vXS}")
        A(f"v_add_u32 v{vXS+3}, {2*(8192-1024)}, v{vXS+1}")
        A(f"s_mul_i32 s3, {sW}, {16*2752}")
        A(f"s_mul_i32 s43, {sCB}, 192")
        A(f"s_add_u32 s3, s3, s43")
        A(f"s_movk_i32 s43, {2752 - 192}")
        A(f"v_lshl_add_u32 v31, {vLANE}, 4, s3")
        for i in range(3):
            A(f"v_add_u32 v3, {64*i}, {vLANE}")
            A(f"v_mul_u32_u24 v3, 0x5556, v3")
            A(f"v_lshrrev_b32 v3, 18, v3")
            A(f"v_mad_u32_u24 v{vWS_+i}, v3, s43, v31")
        A(f"s_lshl_b32 {sMX}, {sW}, 12")
        A(f"s_add_u32 {sMX}, {sMX}, {L_X}")
        A(f"s_mul_i32 {sMW}, {sW}, 3072")
        A(f"v_mov_b32 v{vST+3}, {WS_EP}")
        A(f"s_cmp_eq_u32 {sCB}, 15")
        A(f"s_waitcnt lgkmcnt(0)")
        A(f"s_cbranch_scc1 Lg1_skip")
        for o in self.x_ops(0) + self.w_ops(0): E(o)
        E(([f"buffer_load_dword v{vST+3}, v{vST+3}, {WS}, 0 offen sc1"], vm, 'ep'))
        pro = self.x_ops(1) + self.w_ops(1) + self.w_ops(2)
        setup = []
        S = setup.append
        S(f"s_cmp_eq_u32 {sW}, 3")
        S(f"s_cselect_b32 s44, 0, {sW}")
        S(f"s_add_u32 s45, s44, 1")
        S(f"s_cmp_eq_u32 s45, 3")
        S(f"s_cselect_b32 s45, 0, s45")
        S(f"s_add_u32 s46, s45, 1")
        S(f"s_cmp_eq_u32 s46, 3")
        S(f"s_cselect_b32 s46, 0, s46")
        for l in setup: A(l)
        setup = []; S = setup.append
        S(f"v_and_b32 v19, 31, {vLANE}")
        S(f"v_bfe_u32 v31, {vLANE}, 1, 3")
        S(f"v_lshrrev_b32 v11, 5, {vLANE}")
        S(f"v_xor_b32 v31, v31, v11")
        S(f"v_lshlrev_b32 v31, 4, v31")
        S(f"v_lshl_add_u32 v31, v19, 7, v31")
        S(f"v_add_u32 v{vXA}, {sMX}, v31")
        for k in (1, 2, 3):
            S(f"v_xor_b32 v{vXA+k}, {32*k}, v{vXA}")
        S(f"v_bfe_u32 v3, {vLANE}, 2, 2")
        S(f"v_lshl_add_u32 v2, v11, 3, v3")
        S(f"v_mul_u32_u24 v2, 192, v2")
        S(f"v_and_b32 v31, 1, v30")
        S(f"v_lshl_add_u32 v2, v31, 5, v2")
        S(f"v_and_b32 v29, 3, {vLANE}")
        S(f"v_lshl_add_u32 v2, v29, 3, v2")
        for i in range(3):
            S(f"v_lshl_add_u32 v{vWA+i}, s{44+i}, 6, v2")
        S(f"v_xor_b32 v3, v3, v30")
        S(f"v_and_b32 v3, 1, v3")
        S(f"v_cmp_eq_u32 vcc, 0, v3")
        S(f"v_mov_b32 v31, 0x3f803f80")
        S(f"v_lshlrev_b32 v29, 1, v19")
        for i in range(4):
            S(f"v_cndmask_b32 v{vONE+i}, 0, v31, vcc")
        per = (len(setup) + len(pro) - 1) // len(pro)
        for o in pro:
            E(o)
            for l in setup[:per]: A(l)
            setup = setup[per:]
        A(f"s_mul_i32 s3, {sCB}, 192")
        A(f"s_lshl_b32 s43, s44, 6")
        A(f"s_add_u32 s3, s3, s43")
        E(([f"buffer_load_ushort v{vB1}, v29, {B1}, s3 offen"], vm, 'b1'))
        def rdw_ops(i):
            s, ks = i >> 2, i & 3
            off = (s & 3) * WSLOT + ks * 3072
            ops = []
            for t in range(3):
                r = vWB + 12 * (i & 1) + 4 * t
                ops.append(([f"ds_read_b64_tr_b16 v[{r}:{r+1}], v{vWA+t} offset:{off}"], lg, ('f', i, t)))
                ops.append(([f"ds_read_b64_tr_b16 v[{r+2}:{r+3}], v{vWA+t} offset:{off+768}"], lg, ('f', i, t)))
            return ops
        def rdx_ops(s):
            return [([f"ds_read_b128 v[{vXR+16*(s&1)+4*k}:{vXR+16*(s&1)+4*k+3}], v{vXA+k} offset:{16384*(s&1)}"], lg, ('xf', s, k)) for k in range(4)]
        A.stamp('g1 issued')
        vm.need([('x', 0), ('w', 0)])
        A(f"s_barrier")
        A.stamp('g1 st0')
        for o in rdx_ops(0) + rdw_ops(0): E(o)
        self.w2_setup()
        dma = []
        dma += [(('xf', 0, 3), o) for o in self.x_ops(2)] + [(None, o) for o in self.w_ops(3)]
        extra = []
        def do_dma(n=1):
            for _ in range(n):
                if not dma: return
                if dma[0][0] is not None and dma[0][0] not in lg.seen: return
                pre, o = dma.pop(0)
                if pre is not None:
                    if pre[0] == 'vm': vm.need(pre[1])
                    else: lg.need(pre)
                E(o)
        do_dma()
        for i in range(32):
            s, ks = i >> 2, i & 3
            nxt = rdw_ops(i + 1) if i < 31 else []
            x = vXR + 16 * (s & 1) + 4 * ks
            for t in range(3):
                lg.need([('f', i, t), ('xf', s, ks)])
                r = vWB + 12 * (i & 1) + 4 * t
                a = vACC + 16 * t
                c = '0' if i == 0 else f"v[{a}:{a+15}]"
                A(f"v_mfma_f32_32x32x16_bf16 v[{a}:{a+15}], v[{r}:{r+3}], v[{x}:{x+3}], {c}")
                if t == 0 and ks == 3:
                    n1 = vm.need([('x', s + 1), ('w', s + 1)], emit=False) if s < 7 else None
                    lg.drain(emit=False)
                    A(f"s_waitcnt lgkmcnt(0)" + (f" vmcnt({n1})" if n1 is not None else ""))
                    A(f"s_barrier")
                    if s < 7:
                        xo = rdx_ops(s + 1)
                        E(xo[0])
                        extra = xo[1:]
                    assert not dma, (s, dma)
                    if s + 4 <= 7: dma += [(None, o) for o in self.w_ops(s + 4)]
                    if s + 3 <= 7: dma += [(('xf', s + 1, 3), o) for o in self.x_ops(s + 3)]
                    if s == 0:
                        A(f"v_readfirstlane_b32 {sTAG}, v{vST+3}")
                        A(f"v_and_b32 v{vST+2}, 24, v19")
                        A(f"v_add_lshl_u32 v{vST+2}, v{vST+2}, v19, 3")
                        A(f"s_lshl_b32 s3, {sRB}, 11")
                        A(f"s_lshl_b32 s43, {sW}, 9")
                        A(f"s_add_u32 s47, s3, s43")
                        A(f"s_add_u32 s47, s47, {WS_ST}")
                        A(f"s_add_u32 {sTAG}, {sTAG}, {TAG_INC:#x}")
                    if s == 4:
                        dma += [(None, ([f"buffer_load_dwordx2 v[{vST}:{vST+1}], v{vST+2}, {WS}, s47 offen {sc}"], vm, 'st'))]
                    if s == 5:
                        dma += [(None, o) for o in self.w2_ops(1)] + [(('xf', 6, 3), o) for o in self.w2_ops(0)]
                    if s == 6:
                        dma += [(None, o) for o in self.w2_ops(3)] + [(('xf', 7, 3), o) for o in self.w2_ops(2)]
                for o in nxt[2 * t: 2 * t + 2]: E(o)
                if extra: E(extra.pop(0))
                if t == 1: do_dma()
            r = vWB + 12 * (i & 1)
            c = '0' if i == 0 else f"v[{vSA}:{vSA+3}]"
            A(f"v_mfma_f32_16x16x32_bf16 v[{vSA}:{vSA+3}], v[{vONE}:{vONE+3}], v[{r}:{r+3}], {c}")
            do_dma()
            if i == 29:
                vm.need(['st', 'b1'])
                A(f"s_lshl_b32 s3, {sRB}, 2")
                A(f"s_add_u32 s3, s3, {sW}")
                A(f"s_mul_i32 s3, s3, {HK}")
                A(f"s_mul_i32 s43, {sCB}, 6")
                A(f"s_add_u32 s3, s3, s43")
                A(f"s_lshl_b32 s3, s3, 10")
                A(f"s_add_u32 s3, s3, {WS_H}")
                A(f"v_lshlrev_b32 v7, 4, {vLANE}")
                A(f"v_lshlrev_b32 v6, 3, v19")
                for k in range(3):
                    A(f"v_lshl_add_u32 v{8+k}, s{44+k}, 8, v6")
                for k in range(3):
                    A(f"s_lshl_b32 s{44+k}, s{44+k}, 11")
                    A(f"s_add_u32 s{44+k}, s{44+k}, s3")
                for k in range(12): A(f"v_mov_b32 v{vEX+k}, 0")
            if i == 30:
                A(f"s_mov_b32 s42, {SPIN}")
                A.label("Lg1_st")
                A(f"v_cmp_ne_u32 vcc, {sTAG}, v{vST+1}")
                A(f"s_sub_u32 s42, s42, 1")
                A(f"s_cbranch_scc1 Lg1_st_ok")
                A(f"s_cbranch_vccz Lg1_st_ok")
                A(f"s_sleep {POLL_SLEEP}")
                A(f"buffer_load_dwordx2 v[{vST}:{vST+1}], v{vST+2}, {WS}, s47 offen {sc}")
                A(f"s_waitcnt vmcnt(0)")
                A(f"s_branch Lg1_st")
                A.label("Lg1_st_ok")
                A(f"v_xor_b32 v13, 0x8000, v{vST}")
                A(f"v_alignbit_b32 v12, v13, v13, 16")
                A(f"v_and_b32 v13, 0xffff, v13")
                A(f"v_mov_b32 v14, 0")
                A(f"v_mov_b32 v15, 0")
        assert not dma
        A.stamp('g1 loop end')
        stage = self.rdstep_ops(1) + self.rdstep_ops(0)
        vm.need([('w2', 0), ('w2', 1)])
        for o in stage[:8]: E(o)
        A(f"v_cvt_pk_bf16_f32 v2, v{vSA}, v{vSA}")
        A(f"v_and_b32 v2, 0xffff0000, v2")
        A(f"v_sub_f32 v3, v{vSA}, v2")
        A(f"s_mov_b32 exec_hi, 0")
        A(f"v_cvt_pk_bf16_f32 v{vEX+1}, v3, v14")
        A(f"v_or_b32 v{vEX}, v2, v{vB1}")
        E(([f"ds_write_b64 v8, v[{vEX}:{vEX+1}] offset:{SB}"], lg, 'exw'))
        A(f"s_mov_b32 exec_hi, -1")
        A(f"v_mfma_f32_32x32x16_bf16 v[{vACC}:{vACC+15}], v[{vEX}:{vEX+3}], v[12:15], v[{vACC}:{vACC+15}]")
        lg.drain()
        A(f"s_barrier")
        A(f"s_mov_b32 exec_hi, 0")
        for k in (1, 2):
            E(([f"ds_read_b64 v[{vEX+4*k}:{vEX+4*k+1}], v{8+k} offset:{SB}"], lg, ('exr', k)))
        A(f"s_mov_b32 exec_hi, -1")
        for o in stage[8:]: E(o)
        A.stamp('g1 epi bar')
        dma = [(None, o) for o in self.w2_ops(5)] + [(('r2', 0), o) for o in self.w2_ops(4)]
        def tile(k):
            a = vACC + 16 * k
            for half in range(2):
                for p in range(8 * half, 8 * half + 8):
                    A(f"v_mul_f32_e64 v{a+p}, v{a+p}, |v{a+p}|")
                do_dma()
                for p in range(4 * half, 4 * half + 4):
                    A(f"v_cvt_pk_bf16_f32 v{a+p}, v{a+2*p}, v{a+2*p+1}")
                for p in range(4 * half, 4 * half + 4):
                    A(f"v_pk_max_i16 v{a+p}, v{a+p}, 0")
                E(([f"buffer_store_dwordx4 v[{a+4*half}:{a+4*half+3}], v7, {WS}, s{44+k} offen offset:{1024*half} {sc}"], vm, 'hst'))
        for k in (1, 2):
            lg.need(('exr', k))
            a = vACC + 16 * k
            A(f"v_mfma_f32_32x32x16_bf16 v[{a}:{a+15}], v[{vEX+4*k}:{vEX+4*k+3}], v[12:15], v[{a}:{a+15}]")
        A(f"s_barrier")
        for k in range(3): tile(k)
        do_dma(2)
        A.stamp('g1 stored')
        self.q_main = (list(vm.q), list(lg.q))
        A(f"s_branch Lg1_end")
        A.label("Lg1_skip")
        vm.q = []; lg.q = []
        E(([f"buffer_load_dword v{vST+3}, v{vST+3}, {WS}, 0 offen sc1"], vm, 'ep'))
        self.w2_setup()
        A(f"v_and_b32 v19, 31, {vLANE}")
        A(f"v_lshlrev_b32 v7, 4, {vLANE}")
        for st in (1, 0, 3, 2):
            for o in self.w2_ops(st): E(o)
        vm.need([('w2', 0)])
        A(f"v_readfirstlane_b32 {sTAG}, v{vST+3}")
        for o in self.rdstep_ops(1): E(o)
        lg.drain()
        for o in self.rdstep_ops(0): E(o)
        A(f"s_add_u32 {sTAG}, {sTAG}, {TAG_INC:#x}")
        lg.drain()
        for st in (5, 4):
            for o in self.w2_ops(st): E(o)
        vm.drain()
        A.label("Lg1_end")
        vm.q, lg.q = self.q_main

    def poll(self, name, vreg, vaddr, soff, smask):
        A = self.A
        A(f"s_mov_b32 s42, {SPIN}")
        A.label(f"L{name}")
        A(f"v_cmp_ne_u32 vcc, {sTAG}, v{vreg}")
        A(f"s_sub_u32 s42, s42, 1")
        A(f"s_cbranch_scc1 L{name}_ok")
        A(f"s_and_b32 s3, vcc_lo, {smask}")
        A(f"s_cbranch_scc0 L{name}_ok")
        A(f"s_sleep {POLL_SLEEP}")
        A(f"s_mov_b32 exec_lo, s3")
        A(f"s_mov_b32 exec_hi, 0")
        A(f"buffer_load_dword v{vreg}, v{vaddr}, {WS}, {soff} offen sc1")
        A(f"s_mov_b64 exec, -1")
        A(f"s_waitcnt vmcnt(0)")
        A(f"s_branch L{name}")
        A.label(f"L{name}_ok")

    def gemm2(self):
        A = self.A; vm = self.vm; lg = self.lg; sc = self.sc; E = self.emit
        vH0, vH1 = 7, 6
        vA2 = 32
        vHF = 96
        HD = 4
        global vDS, vRA
        oDS, oRA = vDS, vRA
        for i in range(4):
            A(f"v_mov_b32 v{8+i}, v{oRA+i}")
            A(f"v_mov_b32 v{12+i}, v{oDS+i}")
        vRA, vDS = 8, 12
        vm.need([('w2', 3), ('w2', 2)])
        for o in self.rdstep_ops(3): E(o)
        for o in self.w2_ops(8): E(o)
        A(f"s_lshl_b32 s3, {sRB}, 1")
        A(f"s_lshr_b32 s43, {sW}, 1")
        A(f"s_add_u32 s3, s3, s43")
        A(f"s_lshl_b32 s3, s3, 7")
        A(f"s_lshl_b32 s43, {sCB}, 3")
        A(f"s_add_u32 s3, s3, s43")
        A(f"s_and_b32 s43, {sW}, 1")
        A(f"s_lshl_b32 s43, s43, 2")
        A(f"s_add_u32 s3, s3, s43")
        A(f"s_lshl_b32 s3, s3, 5")
        A(f"s_add_u32 s44, s3, {WS_FH}")
        A(f"v_mov_b32 v4, {sTAG}")
        A(f"v_mov_b32 v5, 0")
        lg.drain()
        for o in self.rdstep_ops(2): E(o)
        vm.need('hst')
        A(f"s_mov_b64 exec, 1")
        E(([f"buffer_store_dword v4, v5, {WS}, s44 offen sc1"], vm, 'flag'))
        A(f"s_mov_b64 exec, -1")
        A.stamp('g2 flag')
        for o in self.w2_ops(7): E(o)
        lg.drain()
        vm.need([('w2', 5), ('w2', 4)])
        for o in self.rdstep_ops(5): E(o)
        for o in self.w2_ops(6): E(o)
        A(f"v_lshrrev_b32 v31, 5, {vLANE}")
        A(f"v_add_u32 v{vH1}, {HK*1024}, v{vH0}")
        A(f"s_mul_i32 {sHO}, {sRB2}, {2*HK*1024}")
        A(f"s_mul_i32 s3, {sW}, {NST*2048}")
        A(f"s_add_u32 {sHO}, {sHO}, s3")
        A(f"s_add_u32 {sHO}, {sHO}, {WS_H}")
        A(f"v_lshlrev_b32 v4, 10, v19")
        A(f"v_lshl_add_u32 v4, v31, 4, v4")
        A(f"s_lshl_b32 s3, {sRB2}, 16")
        A(f"s_lshl_b32 s43, {sDB}, 7")
        A(f"s_lshl_b32 s44, {sW}, 5")
        A(f"s_add_u32 s43, s43, s44")
        A(f"s_add_u32 s3, s3, s43")
        A(f"v_add_u32 v4, s3, v4")
        A(f"v_add_u32 v5, 32768, v4")
        A(f"v_lshl_add_u32 v28, v31, 3, s43")
        A(f"v_lshlrev_b32 v29, 7, v19")
        A(f"v_and_b32 v3, 24, v19")
        A(f"v_add_lshl_u32 v3, v3, v19, 3")
        lg.drain()
        for o in self.rdstep_ops(4): E(o)
        E(([f"buffer_load_dwordx4 v[16:19], v4, {X}, 0 offen"], vm, 'misc'))
        E(([f"buffer_load_dwordx4 v[20:23], v5, {X}, 0 offen"], vm, 'misc'))
        E(([f"global_load_dwordx2 v[24:25], v28, {pB2}"], vm, 'misc'))
        E(([f"global_load_dwordx2 v[26:27], v28, {pB2} offset:16"], vm, 'misc'))
        A(f"s_lshl_b32 s45, {sRB2}, 12")
        A(f"s_add_u32 s45, s45, {WS_FH}")
        def msk(w):
            lo = (22 * w) // 6; hi = min((22 * w + 21) // 6, 14)
            return sum(3 << (2 * c) for c in range(lo, hi + 1))
        A(f"s_mov_b32 s46, {msk(0):#x}")
        for w in (1, 2, 3):
            A(f"s_cmp_eq_u32 {sW}, {w}")
            A(f"s_cselect_b32 s46, {msk(w):#x}, s46")
        for o in self.w2_ops(10): E(o)
        E(([f"s_mov_b32 exec_lo, s46", f"s_mov_b32 exec_hi, 0", f"buffer_load_dword v30, v29, {WS}, s45 offen sc1", f"s_mov_b64 exec, -1"], vm, 'poll'))
        lg.drain()
        for o in self.w2_ops(9): E(o)
        vm.need('poll')
        self.poll("g2_ph", 30, 29, 's45', 's46')
        A.stamp('g2 h ok')
        def ldh_ops(st, kk):
            r = vHF + 16 * (st % HD) + 8 * kk
            return [([f"s_add_u32 s43, {sHO}, {st*2048}"][:1 - tt] +
                     [f"buffer_load_dwordx4 v[{r+4*tt}:{r+4*tt+3}], v{[vH0, vH1][tt]}, {WS}, s43 offen offset:{1024*kk} {sc}"], vm, ('h', st, kk)) for tt in range(2)]
        for st in range(HD):
            for kk in range(2):
                for o in ldh_ops(st, kk): E(o)
        A(f"s_lshl_b32 s45, {sRB2}, 10")
        A(f"s_add_u32 s45, s45, {WS_ST}")
        E(([f"buffer_load_dword v2, v3, {WS}, s45 offen {sc}"], vm, 'misc'))
        E(([f"buffer_load_dword v3, v3, {WS}, s45 offen offset:512 {sc}"], vm, 'misc'))
        A.stamp('g2 issued')
        YS = 144
        vP = 192
        vY = 208
        vT = vWR
        fillers = {}
        def F(st, kk, lines, q=None, tag=None): fillers.setdefault((st, kk), []).append((lines, q, tag))
        sw = []
        for tt in range(2):
            b = 16 + 4 * tt
            sw += [f"v_permlane32_swap_b32 v{b}, v{b+2}", f"v_permlane32_swap_b32 v{b+1}, v{b+3}"]
        F(4, 0, sw)
        for tt in range(2):
            l = []
            for j in range(4):
                l += [f"v_lshlrev_b32 v{vP+8*tt+2*j}, 16, v{16+4*tt+j}", f"v_and_b32 v{vP+8*tt+2*j+1}, 0xffff0000, v{16+4*tt+j}"]
            F(4, 1, l[:4]); F(4, 1, l[4:]) if tt == 0 else None
            if tt == 1: F(5, 0, l[4:])
        l = []
        for j in range(4):
            l += [f"v_lshlrev_b32 v{16+2*j}, 16, v{24+j}", f"v_and_b32 v{17+2*j}, 0xffff0000, v{24+j}"]
        F(5, 0, l[:4]); F(5, 0, l[4:])
        l = [f"v_add_f32 v{vP+8*tt+j}, v{vP+8*tt+j}, v{16+j}" for tt in range(2) for j in range(8)]
        for k in range(4): F(5, 1, l[4*k:4*k+4])
        F(6, 0, [f"v_and_b32 v2, 0xffff0000, v2", f"v_and_b32 v3, 0xffff0000, v3", f"v_rcp_f32 v2, v2", f"v_rcp_f32 v3, v3"])
        F(6, 0, [f"v_mul_f32 v2, v2, v2", f"v_mul_f32 v3, v3, v3"])
        F(self.y_at - HD, 1, [f"s_lshl_b32 s45, {sDB}, 12", f"s_add_u32 s45, s45, {WS_FY}", f"s_lshl_b32 s3, {sW}, 10", f"s_add_u32 s45, s45, s3", f"s_mov_b32 s46, 0xff",
                 f"s_mov_b64 exec, 0xff", f"buffer_load_dword v30, v29, {WS}, s45 offen sc1", f"s_mov_b64 exec, -1"], vm, 'polly')
        F(6, 1, [f"v_lshrrev_b32 v16, 3, {vLANE}", f"v_and_b32 v17, 7, {vLANE}", f"v_lshlrev_b32 v28, 12, v16", f"v_lshl_add_u32 v28, v17, 4, v28"])
        F(6, 1, [f"v_mul_u32_u24 v16, {YS}, v16", f"v_lshl_add_u32 v16, v17, 4, v16", f"v_add_u32 v16, {sM2}, v16", f"v_add_u32 v16, 65536, v16"])
        F(7, 0, [f"v_bfe_u32 v17, {vLANE}, 2, 2", f"v_lshl_add_u32 v17, v31, 2, v17", f"v_mul_u32_u24 v17, {YS}, v17", f"v_bfe_u32 v18, {vLANE}, 4, 1"])
        F(7, 0, [f"v_lshl_add_u32 v17, v18, 5, v17", f"v_and_b32 v18, 3, {vLANE}", f"v_lshl_add_u32 v17, v18, 3, v17", f"v_add_u32 v17, {sM2}, v17", f"v_add_u32 v17, 65536, v17"])
        F(7, 0, [f"s_lshl_b32 s3, {sDB}, 18", f"s_lshl_b32 s44, {sW}, 16", f"s_add_u32 s3, s3, s44", f"s_lshl_b32 s44, {sRB2}, 7", f"s_add_u32 s3, s3, s44",
                 f"s_add_u32 s47, s3, {WS_YT}", f"s_add_u32 s44, s47, 32768"])
        for st in range(NST):
            for kk in range(2):
                nst, nkk = (st, 1) if kk == 0 else (st + 1, 0)
                rds = self.rd2_ops(vT + 8 * ((2 * nst + nkk) % 4), nst, nkk, ('t', nst, nkk)) if 6 <= nst < NST else []
                fill = list(fillers.get((st, kk), []))
                pst, pkk = (st, 0) if kk == 1 else (st - 1, 1)
                if pst >= 0 and pst + HD < NST: fill = ldh_ops(pst + HD, pkk) + fill
                vm.need(('h', st, kk))
                if st == 0 and kk == 0: A.stamp('g2 st0')
                if st >= 6:
                    lg.need(('t', st, kk)); w0 = vT + 8 * ((2 * st + kk) % 4)
                else:
                    w0 = vWR + 16 * st + 8 * kk
                last = (st == NST - 1 and kk == 1)
                n = 0
                for dt in ((1, 0) if last else (0, 1)):
                    for tt in range(2):
                        a = vA2 + 32 * dt + 16 * tt
                        w = w0 + 4 * dt
                        h = vHF + 16 * (st % HD) + 8 * kk + 4 * tt
                        c = '0' if (st == 0 and kk == 0) else f"v[{a}:{a+15}]"
                        A(f"v_mfma_f32_32x32x16_bf16 v[{a}:{a+15}], v[{w}:{w+3}], v[{h}:{h+3}], {c}")
                        if rds: E(rds.pop(0))
                        n += 1
                        k = (len(fill) + (4 - n)) // (5 - n)
                        for o in fill[:k]: E(o)
                        fill = fill[k:]
                if (st, kk) == (self.y_at, 1):
                    vm.need('polly')
                    self.poll("g2_py", 30, 29, 's45', 's46')
                    A.stamp('g2 y ok')
                    E(([f"buffer_load_dwordx4 v[{vY}:{vY+3}], v28, {WS}, s47 offen {sc}"], vm, 'y'))
                    E(([f"buffer_load_dwordx4 v[{vY+4}:{vY+7}], v28, {WS}, s44 offen {sc}"], vm, 'y'))
        A.stamp('g2 loop end')
        A(f"v_add_u32 v29, {sM2}, v{vH0}")
        for i in (2, 3, 1):
            for tt in range(2):
                for qq in range(2):
                    a = vA2 + 32 * (i >> 1) + 16 * tt + 8 * (i & 1) + 4 * qq
                    E(([f"ds_write_b128 v29, v[{a}:{a+3}] offset:{i*16384 + tt*2048 + qq*1024}"], lg, 'pw'))
        vm.need('y')
        E(([f"ds_write_b128 v16, v[{vY}:{vY+3}]"], lg, 'yw'))
        E(([f"ds_write_b128 v16, v[{vY+4}:{vY+7}] offset:{8*YS}"], lg, 'yw'))
        lg.drain()
        A.stamp('g2 pre bar')
        A(f"s_barrier")
        A.stamp('g2 bar')
        vR = 96
        for tt in range(2):
            for qq in range(2):
                E(([f"ds_read_b64_tr_b16 v[{20+4*tt+2*qq}:{21+4*tt+2*qq}], v17 offset:{64*tt + 8*YS*qq}"], lg, 'yr'))
        for i in (1, 2, 3):
            A(f"s_xor_b32 s3, {sW}, {i}")
            A(f"s_lshl_b32 s3, s3, 12")
            A(f"v_add_u32 v29, s3, v{vH0}")
            if i == 3: lg.need('yr')
            for k in range(4):
                r = vR + 16 * (i - 1) + 4 * k
                E(([f"ds_read_b128 v[{r}:{r+3}], v29 offset:{i*16384 + k*1024}"], lg, ('pr', i)))
        for tt in range(2):
            for j in range(4):
                A(f"v_lshlrev_b32 v{vY+8*tt+2*j}, 16, v{20+4*tt+j}")
                A(f"v_and_b32 v{vY+8*tt+2*j+1}, 0xffff0000, v{20+4*tt+j}")
        for k in range(8):
            A(f"v_pk_add_f32 v[{vP+2*k}:{vP+2*k+1}], v[{vP+2*k}:{vP+2*k+1}], v[{vY+2*k}:{vY+2*k+1}]")
        for i in (1, 2, 3):
            lg.need(('pr', i))
            for tt in range(2):
                for j in range(4):
                    a = vA2 + 16 * tt + 2 * j
                    r = vR + 16 * (i - 1) + 8 * tt + 2 * j
                    A(f"v_pk_add_f32 v[{a}:{a+1}], v[{a}:{a+1}], v[{r}:{r+1}]")
        for tt in range(2):
            for j in range(4):
                a = vA2 + 16 * tt + 2 * j
                A(f"v_pk_fma_f32 v[{a}:{a+1}], v[{a}:{a+1}], v[2:3], v[{vP+8*tt+2*j}:{vP+8*tt+2*j+1}] op_sel:[0,{tt},0] op_sel_hi:[1,{tt},1]")
            for j in range(4):
                a = vA2 + 16 * tt + 2 * j
                A(f"v_cvt_pk_bf16_f32 v{16+4*tt+j}, v{a}, v{a+1}")
            b = 16 + 4 * tt
            A(f"v_permlane32_swap_b32 v{b}, v{b+2}")
            A(f"v_permlane32_swap_b32 v{b+1}, v{b+3}")
            A(f"buffer_store_dwordx4 v[{b}:{b+3}], v{4+tt}, {OUT}, 0 offen")
        vDS, vRA = oDS, oRA

    y_at = 7

    def epoch_update(self):
        A = self.A
        A(f"s_cmp_lg_u32 {sID}, 255")
        A(f"s_cbranch_scc1 Lep_end")
        A(f"s_cmp_lg_u32 {sW}, 0")
        A(f"s_cbranch_scc1 Lep_end")
        A(f"s_mov_b32 s42, {SPIN}")
        A(f"s_mov_b32 s45, {WS_FH}")
        A(f"v_lshlrev_b32 v6, 7, {vLANE}")
        A.label("Lep_poll")
        for k in range(16):
            A(f"s_add_u32 s3, s45, {8192*k}")
            A(f"buffer_load_dword v{32+k}, v6, {WS}, s3 offen sc1")
        A(f"s_waitcnt vmcnt(0)")
        for k in range(16):
            A(f"v_xor_b32 v{32+k}, {sTAG}, v{32+k}")
        for k in range(1, 16, 2):
            if k < 15: A(f"v_or3_b32 v32, v32, v{32+k}, v{33+k}")
            else: A(f"v_or_b32 v32, v32, v{32+k}")
        A(f"v_cmp_ne_u32 vcc, 0, v32")
        A(f"s_sub_u32 s42, s42, 1")
        A(f"s_cbranch_scc1 Lep_ok")
        A(f"s_cbranch_vccnz Lep_poll")
        A.label("Lep_ok")
        A(f"v_mov_b32 v32, {sTAG}")
        A(f"v_mov_b32 v33, {WS_EP}")
        A(f"s_mov_b64 exec, 1")
        A(f"buffer_store_dword v32, v33, {WS}, 0 offen sc1")
        A(f"s_mov_b64 exec, -1")
        A.label("Lep_end")
```

```python
WS_UB = 0
UB_SIZE = 0x200000
WS_ST = 0x200000
WS_H = 0x400000
HK = 90
WS_YT = 0xA00000
WS_FL = 0xC00000
WS_EP = WS_FL
WS_FU = WS_FL + 0x8000
WS_FY = WS_FL + 0x10000
WS_FH = WS_FL + 0x20000
WS_STAMP = WS_FL + 0x80000
WS_SIZE = 0xD00000
TAG_INC = 0x9E3779B1
```

```python
import sys
from asmlib import Asm
import blocks_c2 as C, blocks_g3 as G
from layout import *
KN = "parallel_sum__ssm_conv_s4d__dense_activation_squared_relu__prompt_kernel"
HDR = open("parallel_sum__ssm_conv_s4d__dense_activation_squared_relu__prompt.s.ref").read().split("; Override launch")[0]
def nib(l): return sum(v << (4 * i) for i, v in enumerate(l))
opt = dict(a.split('=') for a in sys.argv[2:] if '=' in a)
A = Asm()
A.stamps = '-s' in sys.argv
if opt.get('spin'): G.SPIN = C.SPIN = int(opt['spin'])
if opt.get('sleep'): G.POLL_SLEEP = C.POLL_SLEEP = int(opt['sleep'])
A(f".globl {KN}\n.p2align 8\n.type {KN},@function")
A.label(KN)
A("s_cmp_ge_u32 s2, 256")
A("s_cbranch_scc1 Lrole_c")
if opt.get('nog'): A("s_endpgm")
A.stamp_begin()
if opt.get('gprio'): A(f"s_setprio {opt['gprio']}")
g = G.G(A, nib([0,1,2,3,4,5,6,7]), nib([4,5,6,7,0,1,2,3]))
if opt.get('yat'): g.y_at = int(opt['yat'])
g.prologue('s2')
g.gemm1()
g.gemm2()
g.epoch_update()
A.stamp_end(G.WS, WS_STAMP, 's2', 's5')
A("s_endpgm")
A.label("Lrole_c")
A("s_cmp_ge_u32 s2, %d" % (256 if opt.get('noc') else 512))
A("s_cbranch_scc1 Lexit")
A.stamp_begin()
A("s_sub_u32 s7, s2, 256")
c = C.C(A)
if opt.get('cprio'): c.hi_prio = int(opt['cprio'])
if opt.get('fstep'): c.flag_step = int(opt['fstep'])
c.run('s7')
A.stamp_end(C.WS, WS_STAMP + 0x20000, 's7', 's5')
A.label("Lexit")
A("s_endpgm")
if opt.get('cstop'):
    k = int(opt['cstop'])
    rc = A.lines.index("Lrole_c:")
    i = A.lines.index(f"s_memtime s[{64+2*k}:{65+2*k}]", rc)
    A.lines.insert(i + 1, "s_endpgm")
if opt.get('cdrop'):
    rc = A.lines.index("Lkg_go:"); e = A.lines.index("s_memtime s[72:73]", rc)
    keep = []
    for l in A.lines[rc:e]:
        if 'w' in opt['cdrop'] and l.startswith('ds_write_b64'): continue
        if 'v' in opt['cdrop'] and (l.startswith('v_mul_f32') or l.startswith('v_fmac') or l.startswith('v_cvt')): continue
        keep.append(l)
    A.lines[rc:e] = keep
n = A.fix_hazards(verbose='-v' in sys.argv)
print("hazard pads:", n)
out = HDR
out += f"; @launch grid=(512,1,1) block=(256,1,1) lds={G.G_LDS}\n"
out += '.amdgcn_target "amdgcn-amd-amdhsa--gfx950"\n.text\n' + A.text()
out += f'''.section .rodata,"a"
.p2align 6
.amdhsa_kernel {KN}
  .amdhsa_next_free_vgpr 256
  .amdhsa_next_free_sgpr {102 if A.stamps else 64}
  .amdhsa_accum_offset 256
  .amdhsa_group_segment_fixed_size 0
  .amdhsa_kernarg_size 120
  .amdhsa_user_sgpr_count 2
  .amdhsa_user_sgpr_kernarg_segment_ptr 1
  .amdhsa_system_sgpr_workgroup_id_x 1
.end_amdhsa_kernel
'''
open(sys.argv[1], "w").write(out)
```

```python
import re

def _regs(tok):
    tok = tok.strip()
    tok = tok.lstrip('-')
    m = re.match(r'^abs\((.*)\)$', tok)
    if m: tok = m.group(1)
    tok = tok.strip('|')
    m = re.match(r'^([vsa])\[(\d+):(\d+)\]$', tok)
    if m: return [(m.group(1), i) for i in range(int(m.group(2)), int(m.group(3)) + 1)]
    m = re.match(r'^([vsa])(\d+)$', tok)
    if m: return [(m.group(1), int(m.group(2)))]
    if tok in ('vcc', 'vcc_lo', 'vcc_hi'): return [('x', 'vcc')]
    if tok in ('exec', 'exec_lo', 'exec_hi'): return [('x', 'exec')]
    if tok == 'm0': return [('x', 'm0')]
    return []

TRANS = ('v_exp_f32', 'v_log_f32', 'v_rcp_f32', 'v_rsq_f32', 'v_sqrt_f32', 'v_sin_f32', 'v_cos_f32')

class Ins:
    def __init__(self, text):
        self.text = text
        t = text.split(';')[0].strip()
        self.is_label = t.endswith(':')
        self.op = ''
        self.dst = []; self.src = []
        self.kind = 'other'
        if self.is_label or not t or t.startswith('.'):
            self.kind = 'label' if self.is_label else 'none'
            return
        parts = t.split(None, 1)
        self.op = op = parts[0]
        rest = parts[1] if len(parts) > 1 else ''
        ops = []; cur = ''; depth = 0
        for ch in rest:
            if ch == '[': depth += 1
            if ch == ']': depth -= 1
            if ch == ',' and depth == 0: ops.append(cur); cur = ''
            else: cur += ch
        if cur: ops.append(cur)
        clean = []
        for o in ops:
            o = o.strip()
            clean.append(o.split()[0] if o else o)
        self.mods = rest
        R = [_regs(o) for o in clean]
        flat = lambda L: [r for x in L for r in x]
        if op.startswith('v_mfma'):
            self.kind = 'mfma'; self.dst = R[0]; self.srcab = R[1] + R[2]; self.srcc = R[3]; self.src = flat(R[1:])
            self.passes = 8 if '32x32' in op else 4
        elif op.startswith('v_cmp'):
            self.kind = 'valu'; self.dst = R[0]; self.src = flat(R[1:])
            if op.startswith('v_cmpx'): self.dst = self.dst + [('x', 'exec')]
        elif op.startswith('v_readfirstlane') or op.startswith('v_readlane'):
            self.kind = 'valu'; self.dst = R[0]; self.src = flat(R[1:]); self.rl = True
        elif op.startswith('v_permlane') or op.startswith('v_swap'):
            self.kind = 'valu'; self.dst = R[0] + R[1]; self.src = R[0] + R[1]
        elif op.startswith('v_'):
            self.kind = 'valu'
            nd = 1
            if '_co_' in op or op.startswith('v_div_scale') or op.startswith('v_mad_u64'): nd = 2
            self.dst = flat(R[:nd]); self.src = flat(R[nd:])
            if op.startswith('v_fmac') or op.startswith('v_dot2c') or op.startswith('v_pk_fmac') or 'dpp' in op or 'row_' in rest or 'quad_perm' in rest or 'wave_' in rest or 'sdwa' in op:
                self.src = self.src + R[0]
            if op.startswith('v_cndmask') and len(R) == 3: self.src = self.src + [('x', 'vcc')]
        elif op.startswith('ds_'):
            self.kind = 'ds'
            if op.startswith('ds_read') or op.startswith('ds_bpermute') or op.startswith('ds_permute') or op.startswith('ds_swizzle') or '_rtn' in op:
                self.dst = R[0]; self.src = flat(R[1:])
            else:
                self.src = flat(R)
        elif op.startswith('buffer_') or op.startswith('global_'):
            self.kind = 'vmem'
            if op in ('buffer_inv', 'buffer_wbl2'):
                pass
            elif 'load' in op and ' lds' not in (' ' + rest) and 'load_lds' not in op:
                self.dst = R[0]; self.src = flat(R[1:])
            elif 'load' in op:
                self.src = flat(R) + [('x', 'm0')]; self.dma = True
            elif 'atomic' in op:
                self.src = flat(R)
                if ' sc0' in rest: self.dst = R[0]
            else:
                self.src = flat(R)
                self.store = True
                self.sdata = R[0] if op.startswith('buffer_') else R[1]
        elif op.startswith('s_'):
            self.kind = 'salu'
            if op.startswith('s_cmp') or op.startswith('s_cbranch') or op in ('s_branch', 's_nop', 's_waitcnt', 's_barrier', 's_endpgm', 's_sleep', 's_setprio') or op.startswith('s_bitcmp'):
                self.src = flat(R)
            else:
                self.dst = R[0] if R else []; self.src = flat(R[1:])
                if 'saveexec' in op: self.dst = self.dst + [('x', 'exec')]
        self.isdpp = self.kind == 'valu' and ('dpp' in op or 'row_' in rest or 'quad_perm' in rest or 'wave_' in rest)

    def states(self):
        if self.kind in ('label', 'none'): return 0
        if self.op == 's_nop': return int(self.text.split()[1], 0) + 1
        return 1

def need(p, c):
    n = 0
    ov = lambda a, b: bool(set(a) & set(b))
    vd = [r for r in p.dst if r[0] in 'va']
    sd = [r for r in p.dst if r[0] == 's' or r == ('x', 'vcc')]
    if p.kind == 'valu':
        if c.kind == 'mfma' and ov(vd, c.src): n = max(n, 2)
        if c.kind == 'valu':
            if c.isdpp and ov(vd, c.src): n = max(n, 2)
            if c.op.startswith('v_permlane') and ov(vd, c.src): n = max(n, 2)
            if getattr(c, 'rl', False) and ov(vd, c.src): n = max(n, 1)
            if p.op.split('_e')[0] in TRANS and ov(vd, c.src) : n = max(n, 1)
            if ov(sd, c.src): n = max(n, 4 if getattr(c, 'rl', False) or c.op.startswith('v_writelane') else 2)
            if ('sdwa' in p.op or 'op_sel' in p.mods and not p.op.startswith('v_pk')) and ov(vd, c.src + c.dst): n = max(n, 1)
            if p.op.startswith('v_dot') and ov(vd, c.src + c.dst) and not (c.op == p.op): n = max(n, 3)
        if p.op.split('_e')[0] in TRANS and c.kind in ('ds', 'vmem', 'mfma') and ov(vd, c.src): n = max(n, 2)
        if c.kind == 'vmem' and ov(sd, c.src): n = max(n, 5)
        if c.kind == 'salu' and ov(sd, c.src): n = max(n, 1)
        if ('x', 'exec') in p.dst:
            if c.kind == 'mfma': n = max(n, 4)
            if c.kind == 'valu' and (c.isdpp): n = max(n, 5)
            if c.kind == 'valu' and (getattr(c, 'rl', False) or c.op.startswith('v_permlane')): n = max(n, 4)
    if p.kind == 'salu':
        if ('x', 'm0') in p.dst and (getattr(c, 'dma', False) or 'addtid' in c.op): n = max(n, 1)
    if p.kind == 'mfma':
        P = p.passes
        if c.kind == 'mfma':
            if ov(p.dst, c.srcab): n = max(n, {4: 8, 8: 12}[P])
            if ov(p.dst, c.srcc) and not (c.srcc == p.dst and c.passes == P): n = max(n, {4: 6, 8: 10}[P])
            if ov(p.dst, c.dst) and not (c.srcc == p.dst and c.passes == P): n = max(n, {4: 8, 8: 12}[P])
        elif c.kind in ('valu', 'ds', 'vmem'):
            if ov(p.dst, c.src + c.dst): n = max(n, {4: 8, 8: 12}[P])
            if c.kind == 'valu' and ov(p.srcc, c.dst): n = max(n, {4: 3, 8: 7}[P])
    if p.kind == 'vmem' and getattr(p, 'store', False) and len(p.sdata) >= 3:
        if ov(p.sdata, c.dst): n = max(n, 2 if c.kind == 'valu' else 1)
    return n

class Asm:
    def __init__(self):
        self.lines = []
    def __call__(self, text):
        for l in text.split('\n'):
            l = l.strip()
            if l: self.lines.append(l)
    def label(self, name): self.lines.append(name + ':')
    stamps = False
    stamp_filter = '^[^_]'
    nstamp = 0
    def stamp(self, name=''):
        if not self.stamps: return
        if name not in ('start', 'end') and not re.search(self.stamp_filter, name): return
        k = self.nstamp; self.nstamp += 1
        assert k < 16
        self.stamp_names = getattr(self, 'stamp_names', []) + [name]
        self(f"s_memrealtime s[{64+2*k}:{65+2*k}]")
    def stamp_begin(self):
        if not self.stamps: return
        self.nstamp = 0; self.stamp_names = []
        self("s_memrealtime s[98:99]")
        for k in range(16): self(f"s_mov_b32 s{64+2*k}, 0")
        self.stamp('start')
    def stamp_end(self, srd, base, sid, swave):
        if not self.stamps: return
        self("s_waitcnt vmcnt(0)")
        self.stamp('end')
        self("s_memrealtime s[100:101]")
        self("s_waitcnt lgkmcnt(0)")
        self(f"s_lshl_b32 s3, {sid}, 2")
        self(f"s_add_u32 s3, s3, {swave}")
        self(f"s_lshl_b32 s3, s3, 7")
        self(f"s_add_u32 s3, s3, {base}")
        self("v_mov_b32 v2, 0")
        self("s_mov_b64 exec, 1")
        for k in range(16):
            self(f"v_mov_b32 v3, s{64+2*k}")
            self(f"buffer_store_dword v3, v2, {srd}, s3 offen offset:{4*k}")
        self("v_mov_b32 v3, s98")
        self(f"buffer_store_dword v3, v2, {srd}, s3 offen offset:64")
        self("v_mov_b32 v3, s100")
        self(f"buffer_store_dword v3, v2, {srd}, s3 offen offset:68")
        print("stamps:", self.stamp_names)
    def fix_hazards(self, verbose=False):
        ins = [Ins(l) for l in self.lines]
        changed = True
        total = 0
        while changed:
            changed = False
            labels = {x.text[:-1]: i for i, x in enumerate(ins) if x.kind == 'label'}
            i = 0
            while i < len(ins):
                c = ins[i]
                if c.kind in ('label', 'none'):
                    i += 1; continue
                worst = 0
                stack = [(i - 1, 0)]
                seen = set()
                while stack:
                    j, dist = stack.pop()
                    if j < 0 or dist >= 12 or (j, dist) in seen: continue
                    seen.add((j, dist))
                    p = ins[j]
                    if p.kind == 'label':
                        nm = p.text[:-1]
                        for k, q in enumerate(ins):
                            if q.kind == 'salu' and (q.op.startswith('s_cbranch') or q.op == 's_branch') and q.text.split()[-1] == nm:
                                stack.append((k, dist))
                        k = j - 1
                        while k >= 0 and ins[k].kind in ('none',): k -= 1
                        if k >= 0 and not (ins[k].op in ('s_branch', 's_endpgm')):
                            stack.append((j - 1, dist))
                        continue
                    if p.kind == 'none':
                        stack.append((j - 1, dist)); continue
                    nd = need(p, c)
                    if nd > dist: worst = max(worst, nd - dist)
                    stack.append((j - 1, dist + p.states()))
                if worst > 0:
                    if verbose: print("hazard pad", worst, "before", c.text)
                    ins.insert(i, Ins(f"s_nop {worst - 1}"))
                    total += 1
                    changed = True
                    labels = None
                    i += 1
                i += 1
        self.lines = [x.text for x in ins]
        return total
    def text(self):
        out = []
        for l in self.lines:
            out.append(l if l.endswith(':') or l.startswith('.') or l.startswith(';') else '    ' + l)
        return '\n'.join(out) + '\n'

class Queue:
    def __init__(self, A, name, maxn):
        self.A = A; self.name = name; self.maxn = maxn
        self.q = []
    def push(self, tag):
        self.q.append(tag); self.seen = getattr(self, 'seen', set()); self.seen.add(tag); self.log = getattr(self, 'log', []); self.log.append(tag)
    def count_for(self, tags):
        if isinstance(tags, (str, tuple)): tags = [tags]
        last = -1
        for i, t in enumerate(self.q):
            if t in tags: last = i
        if last < 0: return None
        return len(self.q) - 1 - last
    def need(self, tags, emit=True):
        n = self.count_for(tags)
        if n is None: return None
        n = min(n, self.maxn)
        self.q = self.q[len(self.q) - n:] if n else []
        if emit: self.A(f"s_waitcnt {self.name}({n})")
        return n
    def drain(self, emit=True):
        if self.q and emit: self.A(f"s_waitcnt {self.name}(0)")
        self.q = []
```

```python
from layout import *
from asmlib import Queue

SPIN = 200000
W1_SIZE = 512 * 1376 * 2
OOB = 0x7ff00000
SLOT = 28672
XOFF = 12288
L_B = 3 * SLOT
KREV_SZ = 4576
TROW = 528
CPY = 4160
L_TAB = 0
L_U = L_B
L_PART = L_U
L_BX = L_U + 8 * CPY
L_MISC = L_BX + 32768
L_SB = L_MISC
L_CNT = L_MISC + 768
L_KREV = L_MISC + 1024
L_LN = L_KREV
LDS_TOTAL = 163840
def slot_of(s): return ((s + 1) % 3) * SLOT
NST = 11
W2AREA = {0: L_BX, 1: L_BX + 16384, 2: 65536, 3: 0, 4: 16384, 5: 32768, 6: 49152, 7: L_BX, 8: L_BX + 16384, 9: 65536, 10: 0}
HINC = [1]*8 + [248] + [2]*4 + [248, 4, 4, 248, 4, 4, 248, 8, 248, 8, 248, 8, 248, 8] + [8]*4
C_LN, C_EX, C_BUILT, C_CVD, C_PART, C_Y, C_TABW, C_TABF, C_U, C_FIN, C_TAG = range(0, 44, 4)
C_FULL, C_FREE = 64, 80
sID, sW, sTAG, sQ = 's4', 's5', 's6', 's7'
sRB, sCB, sRB2, sDB, sM2 = 's34', 's35', 's48', 's49', 's52'
vLANE = 'v1'

class Role:
    def __init__(self, A):
        self.A = A
        self.vm = Queue(A, 'vmcnt', 63); self.lg = Queue(A, 'lgkmcnt', 15)
        self.stubs = []
    def emit(self, op):
        lines, q, tag = op
        for l in lines: self.A(l)
        if q is not None: q.push(tag)
    def V(self, line, tag): self.A(line); self.vm.push(tag)
    def L(self, line, tag): self.A(line); self.lg.push(tag)
    def soft_arrive(self, off, vc, vt):
        A = self.A
        A(f"v_mov_b32 v{vt}, 1")
        A(f"s_mov_b64 exec, 1")
        self.L(f"ds_add_u32 v{vc}, v{vt} offset:{off}", 'sa')
        A(f"s_mov_b64 exec, -1")
    def soft_wait(self, name, off, target, vc, vt, slp=0):
        A = self.A
        A(f"s_mov_b32 s42, {SPIN*8}")
        A.label(f"L{name}")
        A(f"ds_read_b32 v{vt}, v{vc} offset:{off}")
        A(f"s_waitcnt lgkmcnt(0)")
        A(f"v_readfirstlane_b32 s3, v{vt}")
        A(f"s_sub_u32 s42, s42, 1")
        A(f"s_cbranch_scc1 L{name}_ok")
        A(f"s_cmp_ge_u32 s3, {target}")
        A(f"s_cbranch_scc1 L{name}_ok")
        if slp: A(f"s_sleep {slp}")
        A(f"s_branch L{name}")
        A.label(f"L{name}_ok")
        self.lg.q = []
    def post_word(self, vaddr, off, val, vt):
        A = self.A
        A(f"v_mov_b32 v{vt}, {val}")
        A(f"s_mov_b64 exec, 1")
        self.L(f"ds_write_b32 v{vaddr}, v{vt} offset:{off}", 'sa')
        A(f"s_mov_b64 exec, -1")
    def ids(self):
        A = self.A
        A(f"s_and_b32 s3, {sID}, 7")
        A(f"s_lshr_b32 {sQ}, {sID}, 3")
        A(f"s_lshl_b32 s43, s3, 5")
        A(f"s_add_u32 {sQ}, {sQ}, s43")
        A(f"s_bfe_u32 s34, {sID}, 0x10003")
        A(f"s_lshl_b32 s43, s3, 1")
        A(f"s_add_u32 s34, s34, s43")
        A(f"s_lshr_b32 s35, {sID}, 4")
        A(f"s_bfe_u32 s48, {sID}, 0x20003")
        A(f"s_lshl_b32 s43, s3, 2")
        A(f"s_add_u32 s48, s48, s43")
        A(f"s_lshr_b32 s49, {sID}, 5")
        A(f"s_lshl_b32 s52, {sW}, 12")

    def w2_src(self, vD, t0, t1, t2):
        A = self.A
        A(f"v_lshrrev_b32 v{t0}, 3, {vLANE}")
        A(f"v_and_b32 v{t1}, 7, {vLANE}")
        A(f"v_bfe_u32 v{t2}, {vLANE}, 4, 1")
        A(f"v_lshlrev_b32 v{t2}, 2, v{t2}")
        A(f"v_xor_b32 v{t1}, v{t1}, v{t2}")
        A(f"v_lshlrev_b32 v{t1}, 4, v{t1}")
        A(f"v_lshl_add_u32 v{t1}, v{t0}, 10, v{t1}")
        A(f"s_lshl_b32 s3, s49, 7")
        A(f"v_add_u32 v{vD}, s3, v{t1}")
        for i in (1, 2, 3): A(f"v_add_u32 v{vD+i}, {7168*i}, v{vD}")
        A(f"s_mul_i32 s50, {sW}, {NST*32768}")
    def w2_ops(self, st, vD, W2):
        return [([f"s_add_u32 m0, s52, {W2AREA[st]}", f"s_add_u32 s53, s50, {st*32768}"][:2 if i == 0 else 0]
                 + [f"buffer_load_dwordx4 v{vD+i}, {W2}, s53 offen offset:{1024*i} lds"], self.vm, ('w2', st)) for i in range(4)]

class M(Role):
    y_at = 8
    y_per = 4
    h_sleep = 2
    HD = 6
    h_first = 0
    w_pre = 1
    h_delay = 0
    x_at = 21
    def run(self):
        A = self.A; vm = self.vm; lg = self.lg; E = self.emit; V = self.V; L = self.L
        X, W2, WS, OUT, B1 = 's[8:11]', 's[16:19]', 's[20:23]', 's[24:27]', 's[28:31]'
        pB2 = 's[32:33]'
        sc = 'sc1'
        vXA, vWA, vONE, vSA, vB1, vACC, vWB, vXB = 12, 16, 20, 24, 28, 32, 80, 104
        vX, vS2, vOF = 192, 204, 208
        vST, vEX, vFU = 112, 116, 132
        vRA, vMS, vCN, vTM, vDS = 240, 246, 250, 251, 252
        A(f"s_load_dwordx2 s[8:9], s[0:1], 0")
        A(f"s_load_dwordx2 s[20:21], s[0:1], 112")
        A(f"s_load_dwordx2 s[28:29], s[0:1], 72")
        A(f"s_load_dwordx2 s[32:33], s[0:1], 88")
        A(f"s_load_dwordx2 s[16:17], s[0:1], 80")
        A(f"s_load_dwordx2 s[24:25], s[0:1], 96")
        self.ids()
        for base, size in ((8, 0x200000), (20, WS_SIZE), (16, W1_SIZE), (24, 0x200000), (28, 2752)):
            A(f"s_mov_b32 s{base+2}, {size}")
            A(f"s_mov_b32 s{base+3}, 0x20000")
        A(f"s_lshl_b32 s3, {sQ}, 13")
        A(f"s_lshl_b32 s43, {sW}, 11")
        A(f"s_add_u32 s3, s3, s43")
        vLO, vLW, vLR, vL3 = 136, 137, 138, 139
        R = 140; F = 32; T = 48
        A(f"v_lshl_add_u32 v{vLO}, {vLANE}, 4, s3")
        A(f"v_mov_b32 v{vST+3}, {WS_EP}")
        A(f"v_mov_b32 v{vCN}, {L_CNT}")
        A(f"v_mov_b32 v2, 0")
        A(f"v_lshl_add_u32 v3, {vLANE}, 2, v{vCN}")
        A(f"ds_write_b32 v3, v2")
        A(f"s_waitcnt lgkmcnt(0)")
        V(f"buffer_load_dwordx4 v[{R}:{R+3}], v{vLO}, {X}, 0 offen", 'lnx')
        V(f"buffer_load_dwordx4 v[{R+4}:{R+7}], v{vLO}, {X}, 0 offen offset:1024", 'lnx')
        V(f"buffer_load_dword v{vST+3}, v{vST+3}, {WS}, 0 offen sc1", 'ep')
        A(f"s_barrier")
        A(f"s_cmp_eq_u32 {sW}, 3")
        A(f"s_cselect_b32 s44, 0, {sW}")
        A(f"s_add_u32 s45, s44, 1")
        A(f"s_cmp_eq_u32 s45, 3")
        A(f"s_cselect_b32 s45, 0, s45")
        A(f"s_add_u32 s46, s45, 1")
        A(f"s_cmp_eq_u32 s46, 3")
        A(f"s_cselect_b32 s46, 0, s46")
        A(f"v_lshrrev_b32 v30, 4, {vLANE}")
        A(f"v_and_b32 v19, 31, {vLANE}")
        A(f"v_bfe_u32 v31, {vLANE}, 1, 3")
        A(f"v_lshrrev_b32 v11, 5, {vLANE}")
        A(f"v_xor_b32 v31, v31, v11")
        A(f"v_lshlrev_b32 v31, 4, v31")
        A(f"v_lshl_add_u32 v31, v19, 7, v31")
        A(f"s_add_u32 s3, {sM2}, {XOFF}")
        A(f"v_add_u32 v{vXA}, s3, v31")
        for k in (1, 2, 3): A(f"v_xor_b32 v{vXA+k}, {32*k}, v{vXA}")
        A(f"v_bfe_u32 v3, {vLANE}, 2, 2")
        A(f"v_lshl_add_u32 v2, v11, 3, v3")
        A(f"v_mul_u32_u24 v2, 192, v2")
        A(f"v_and_b32 v31, 1, v30")
        A(f"v_lshl_add_u32 v2, v31, 5, v2")
        A(f"v_and_b32 v29, 3, {vLANE}")
        A(f"v_lshl_add_u32 v2, v29, 3, v2")
        for i in range(3): A(f"v_lshl_add_u32 v{vWA+i}, s{44+i}, 6, v2")
        for i in range(3): A(f"v_add_u32 v{4+i}, {2*SLOT}, v{vWA+i}")
        A(f"v_lshl_add_u32 v2, v11, 2, v3")
        A(f"v_lshlrev_b32 v2, 7, v2")
        A(f"v_xor_b32 v31, {sW}, v31")
        A(f"v_and_b32 v8, 2, v3")
        A(f"v_xor_b32 v31, v31, v8")
        A(f"v_lshl_add_u32 v2, v31, 5, v2")
        A(f"v_lshl_add_u32 v2, v29, 3, v2")
        A(f"v_add_u32 v{vRA}, {sM2}, v2")
        A(f"v_xor_b32 v{vRA+1}, 64, v{vRA}")
        A(f"v_add_u32 v{vRA+2}, 65536, v{vRA}")
        A(f"v_add_u32 v{vRA+3}, 65536, v{vRA+1}")
        A(f"v_add_u32 v{vRA+4}, {L_BX}, v{vRA}")
        A(f"v_add_u32 v{vRA+5}, {L_BX}, v{vRA+1}")
        LNROW = 1088; STS = 8 * LNROW
        A(f"v_mul_u32_u24 v{vLR}, {LNROW}, v3")
        A(f"v_xor_b32 v3, v3, v30")
        A(f"v_and_b32 v3, 1, v3")
        A(f"v_cmp_eq_u32 vcc, 0, v3")
        A(f"v_mov_b32 v31, 0x3f803f80")
        A(f"s_mul_i32 s3, {sW}, {2*LNROW}")
        A(f"s_add_u32 s3, s3, {L_LN}")
        A(f"v_lshl_add_u32 v{vLW}, {vLANE}, 4, s3")
        for i in range(4): A(f"v_cndmask_b32 v{vONE+i}, 0, v31, vcc")
        A(f"v_lshl_add_u32 v{vLR}, v30, 5, v{vLR}")
        A(f"v_lshl_add_u32 v{vLR}, v29, 3, v{vLR}")
        A(f"s_lshl_b32 s3, {sW}, 8")
        A(f"s_add_u32 s3, s3, {L_LN}")
        A(f"v_add_u32 v{vLR}, s3, v{vLR}")
        self.w2_src(vDS, 2, 3, 8)
        A(f"v_mov_b32 v{T+12}, 0x3b000000")
        vm.need(['lnx', 'ep'])
        A.stamp('ln loaded')
        A(f"v_readfirstlane_b32 {sTAG}, v{vST+3}")
        for r in range(2):
            for i in range(4):
                A(f"v_lshlrev_b32 v{F+8*r+2*i}, 16, v{R+4*r+i}")
                A(f"v_and_b32 v{F+8*r+2*i+1}, 0xffff0000, v{R+4*r+i}")
        A(f"s_or_b32 {sTAG}, {sTAG}, 1")
        A(f"s_add_u32 {sTAG}, {sTAG}, {TAG_INC:#x}")
        for r in range(2):
            b = F + 8 * r
            A(f"v_pk_add_f32 v[{T+4*r}:{T+4*r+1}], v[{b}:{b+1}], v[{b+2}:{b+3}]")
            A(f"v_pk_mul_f32 v[{T+4*r+2}:{T+4*r+3}], v[{b}:{b+1}], v[{b}:{b+1}]")
        for i in (1, 2, 3):
            for r in range(2):
                b = F + 8 * r + 2 * i
                if i >= 2: A(f"v_pk_add_f32 v[{T+4*r}:{T+4*r+1}], v[{T+4*r}:{T+4*r+1}], v[{b}:{b+1}]")
                A(f"v_pk_fma_f32 v[{T+4*r+2}:{T+4*r+3}], v[{b}:{b+1}], v[{b}:{b+1}], v[{T+4*r+2}:{T+4*r+3}]")
        for k in range(4): A(f"v_add_f32 v{T+8+k}, v{T+2*k}, v{T+2*k+1}")
        for ctl in ("row_shr:1 row_mask:0xf bank_mask:0xf bound_ctrl:0", "row_shr:2 row_mask:0xf bank_mask:0xf bound_ctrl:0",
                    "row_shr:4 row_mask:0xf bank_mask:0xf bound_ctrl:0", "row_shr:8 row_mask:0xf bank_mask:0xf bound_ctrl:0",
                    "row_bcast:15 row_mask:0xa bank_mask:0xf", "row_bcast:31 row_mask:0xc bank_mask:0xf"):
            for k in range(4): A(f"v_add_f32_dpp v{T+8+k}, v{T+8+k}, v{T+8+k} {ctl}")
        for k in range(4): A(f"v_readlane_b32 s{56+k}, v{T+8+k}, 63")
        Mn, Vv, P = T, T + 2, T + 4
        for r in range(2):
            A(f"v_mul_f32 v{Mn+r}, s{56+2*r}, v{T+12}")
            A(f"v_mul_f32 v{Vv+r}, s{57+2*r}, v{T+12}")
        for r in range(2): A(f"v_fma_f32 v{Vv+r}, -v{Mn+r}, v{Mn+r}, v{Vv+r}")
        for r in range(2): A(f"v_max_f32 v{Vv+r}, 0, v{Vv+r}")
        for r in range(2): A(f"v_cvt_pk_bf16_f32 v{P+r}, v{Mn+r}, v{Vv+r}")
        for r in range(2): A(f"v_and_b32 v{Vv+r}, 0xffff0000, v{P+r}")
        for r in range(2): A(f"v_add_f32 v{Vv+r}, 0x3727c5ac, v{Vv+r}")
        A(f"v_cvt_pk_bf16_f32 v{P+2}, v{Vv}, v{Vv+1}")
        A(f"v_lshlrev_b32 v{Vv}, 16, v{P+2}")
        A(f"v_and_b32 v{Vv+1}, 0xffff0000, v{P+2}")
        for r in range(2): A(f"v_sqrt_f32 v{Vv+r}, v{Vv+r}")
        for r in range(2): A(f"v_lshlrev_b32 v{Mn+r}, 16, v{P+r}")
        Gq = 148
        for r in range(2):
            A(f"v_cvt_pk_bf16_f32 v{Gq+2*r}, v{Mn+r}, v{Vv+r}")
            A(f"v_mov_b32 v{Gq+2*r+1}, {sTAG}")
        for r in range(2): A(f"v_and_b32 v{Vv+r}, 0xffff0000, v{Gq+2*r}")
        RS = T + 14
        for r in range(2): A(f"v_rcp_f32 v{RS+2*r}, v{Vv+r}")
        A(f"s_lshl_b32 s3, {sW}, 4")
        A(f"s_add_u32 s3, s3, {L_LN}")
        A(f"v_mov_b32 v{vL3}, s3")
        A(f"s_mov_b64 exec, 1")
        L(f"ds_write_b128 v{vL3}, v[{Gq}:{Gq+3}] offset:{STS}", 'lnw')
        L(f"ds_write_b32 v{vCN}, v{Gq+1} offset:{C_TAG}", 'lnw')
        A(f"s_mov_b64 exec, -1")
        for r in range(2): A(f"v_mul_f32_e64 v{RS+2*r+1}, -v{Mn+r}, v{RS+2*r}")
        for r in range(2):
            for i in range(4):
                b = F + 8 * r + 2 * i
                A(f"v_pk_fma_f32 v[{b}:{b+1}], v[{b}:{b+1}], v[{RS+2*r}:{RS+2*r+1}], v[{RS+2*r}:{RS+2*r+1}] op_sel:[0,0,1] op_sel_hi:[1,0,1]")
            for i in range(4):
                b = F + 8 * r + 2 * i
                A(f"v_cvt_pk_bf16_f32 v{R+4*r+i}, v{b}, v{b+1}")
            L(f"ds_write_b128 v{vLW}, v[{R+4*r}:{R+4*r+3}] offset:{LNROW*r}", 'lnw')
        self.soft_arrive(C_LN, vCN, vTM)
        A(f"v_lshlrev_b32 v7, 4, {vLANE}")
        A(f"v_add_u32 v{vLW}, {L_LN}, v7")
        A(f"s_lshl_b32 s55, {sQ}, 7")
        A(f"s_add_u32 s54, s55, {WS_ST}")
        A(f"s_lshl_b32 s55, {sQ}, 2")
        A(f"s_add_u32 s55, s55, {WS_FU}")
        self.soft_wait("m_ln", C_LN, 4, vCN, vTM)
        for i in range(2):
            L(f"ds_read_b64_tr_b16 v[{R+4*i}:{R+4*i+1}], v{vLR} offset:{128*i}", 'lnr')
            L(f"ds_read_b64_tr_b16 v[{R+4*i+2}:{R+4*i+3}], v{vLR} offset:{128*i+4*LNROW}", 'lnr')
        L(f"ds_read_b128 v[{Gq}:{Gq+3}], v{vLW} offset:{STS}", 'lnr')
        A(f"s_cmp_eq_u32 {sW}, 0")
        lg.need('lnr')
        A(f"s_cbranch_scc0 Lm_nost")
        A(f"s_mov_b64 exec, 15")
        A(f"buffer_store_dwordx4 v[{Gq}:{Gq+3}], v7, {WS}, s54 offen sc1")
        A(f"s_mov_b64 exec, -1")
        A.label("Lm_nost")
        V(f"buffer_store_dwordx4 v[{R}:{R+3}], v{vLO}, {WS}, 0 offen sc1", 'ust')
        V(f"buffer_store_dwordx4 v[{R+4}:{R+7}], v{vLO}, {WS}, 0 offen offset:1024 sc1", 'ust')
        A(f"v_lshlrev_b32 v29, 1, v19")
        A(f"s_mul_i32 s3, {sCB}, 192")
        A(f"s_lshl_b32 s43, s44, 6")
        A(f"s_add_u32 s3, s3, s43")
        V(f"buffer_load_ushort v{vB1}, v29, {B1}, s3 offen", 'b1')
        A.stamp('ln done')
        def rd_ops(i):
            s, ks = i >> 2, i & 3
            so = slot_of(s)
            xr = vXB + 4 * (i & 1)
            ops = [([f"ds_read_b128 v[{xr}:{xr+3}], v{vXA+ks} offset:{so}"], lg, ('f', i, 0))]
            base, off = (vWA, so) if so < 2 * SLOT else (4, 0)
            off += ks * 3072
            for t in range(3):
                r = vWB + 12 * (i & 1) + 4 * t
                ops.append(([f"ds_read_b64_tr_b16 v[{r}:{r+1}], v{base+t} offset:{off}"], lg, ('f', i, t)))
                ops.append(([f"ds_read_b64_tr_b16 v[{r+2}:{r+3}], v{base+t} offset:{off+768}"], lg, ('f', i, t)))
            return ops
        A(f"s_mov_b32 s41, {SPIN*8}")
        A(f"s_barrier")
        A.stamp('g1 st0')
        for o in rd_ops(0): E(o)
        A(f"v_and_b32 v{vST+2}, 24, v19")
        A(f"v_add_lshl_u32 v{vST+2}, v{vST+2}, v19, 3")
        A(f"s_lshl_b32 s3, {sRB}, 11")
        A(f"s_lshl_b32 s43, {sW}, 9")
        A(f"s_add_u32 s47, s3, s43")
        A(f"s_add_u32 s47, s47, {WS_ST}")
        for i in range(32):
            s, ks = i >> 2, i & 3
            nxt = rd_ops(i + 1) if i < 31 else []
            x = vXB + 4 * (i & 1)
            cuts = [(0, 3), (3, 5), (5, 7)]
            for t in range(3):
                lg.need(('f', i, t))
                r = vWB + 12 * (i & 1) + 4 * t
                a = vACC + 16 * t
                c = '0' if i == 0 else f"v[{a}:{a+15}]"
                A(f"v_mfma_f32_32x32x16_bf16 v[{a}:{a+15}], v[{r}:{r+3}], v[{x}:{x+3}], {c}")
                if t == 0 and ks == 3 and s < 7:
                    A.stamp(f'_A{s}')
                    if s == self.u_at: vm.need('ust')
                    lg.drain()
                    A(f"s_barrier")
                    A.stamp(f'_B{s}')
                    if s == self.u_at:
                        A(f"s_cmp_eq_u32 {sW}, 0")
                        A(f"s_cbranch_scc1 Lm_pu")
                        A.label("Lm_pu_ok")
                        self.stubs.append(["Lm_pu:", f"v_mov_b32 v2, {sTAG}", f"v_mov_b32 v3, 0", f"s_mov_b64 exec, 1", f"buffer_store_dword v2, v3, {WS}, s55 offen sc1",
                                           f"s_mov_b64 exec, -1", f"s_branch Lm_pu_ok"])
                for o in nxt[cuts[t][0]:cuts[t][1]]: E(o)
            r = vWB + 12 * (i & 1)
            c = '0' if i == 0 else f"v[{vSA}:{vSA+3}]"
            A(f"v_mfma_f32_16x16x32_bf16 v[{vSA}:{vSA+3}], v[{vONE}:{vONE+3}], v[{r}:{r+3}], {c}")
            if i == 17:
                V(f"buffer_load_dwordx2 v[{vST}:{vST+1}], v{vST+2}, {WS}, s47 offen {sc}", 'st')
            if i == 18:
                A(f"v_lshlrev_b32 v{vOF}, 10, v19")
                A(f"v_lshl_add_u32 v{vOF}, v11, 4, v{vOF}")
                A(f"s_lshl_b32 s3, {sRB2}, 16")
                A(f"s_lshl_b32 s43, {sDB}, 7")
                A(f"s_lshl_b32 s40, {sW}, 5")
                A(f"s_add_u32 s43, s43, s40")
                A(f"s_add_u32 s3, s3, s43")
                A(f"v_add_u32 v{vOF}, s3, v{vOF}")
                A(f"v_add_u32 v{vOF+1}, 32768, v{vOF}")
                A(f"v_lshl_add_u32 v2, v11, 3, s43")
                A(f"s_lshl_b32 s39, {sRB2}, 10")
                A(f"s_add_u32 s39, s39, {WS_ST}")
                V(f"global_load_dwordx2 v[{vX+8}:{vX+9}], v2, {pB2}", 'st')
                V(f"global_load_dwordx2 v[{vX+10}:{vX+11}], v2, {pB2} offset:16", 'st')
            if i == self.x_at:
                V(f"buffer_load_dwordx2 v[{vS2}:{vS2+1}], v{vST+2}, {WS}, s39 offen {sc}", 'st')
                V(f"buffer_load_dwordx2 v[{vS2+2}:{vS2+3}], v{vST+2}, {WS}, s39 offen offset:512 {sc}", 'st')
            if i == self.x_at + 1: V(f"buffer_load_dwordx4 v[{vX}:{vX+3}], v{vOF}, {X}, 0 offen", 'st')
            if i == self.x_at + 2: V(f"buffer_load_dwordx4 v[{vX+4}:{vX+7}], v{vOF+1}, {X}, 0 offen", 'st')
            if i == 24:
                A(f"v_and_b32 v2, 3, {vLANE}")
                A(f"v_lshlrev_b32 v2, 3, v2")
                A(f"v_lshrrev_b32_e64 v2, v2, {sTAG}")
                for j in range(4):
                    A(f"v_lshlrev_b32 v3, {15 - 2*j}, v2")
                    A(f"v_and_b32 v3, 0x8000, v3")
                    A(f"v_lshlrev_b32 v{vMS+j}, {30 - 2*j}, v2")
                    A(f"v_and_b32 v{vMS+j}, 0x80000000, v{vMS+j}")
                    A(f"v_or_b32 v{vMS+j}, v{vMS+j}, v3")
            if i == 25:
                A(f"s_lshl_b32 s3, {sRB}, 2")
                A(f"s_add_u32 s3, s3, {sW}")
                A(f"s_mul_i32 s3, s3, {HK}")
                A(f"s_lshl_b32 s3, s3, 10")
                A(f"s_add_u32 s3, s3, {WS_H}")
                A(f"s_mul_i32 s43, {sCB}, 3")
                A(f"v_lshlrev_b32 v2, 3, v19")
                A(f"v_add_u32 v2, {L_SB}, v2")
                for k in range(3): A(f"v_lshl_add_u32 v{8+k}, s{44+k}, 8, v2")
                for k in range(3):
                    A(f"s_add_u32 s{44+k}, s{44+k}, s43")
                    A(f"s_cmp_lt_u32 s{44+k}, 43")
                    A(f"s_cselect_b32 s54, s3, {OOB:#x}")
                    A(f"s_lshl_b32 s{44+k}, s{44+k}, 11")
                    A(f"s_add_u32 s{44+k}, s{44+k}, s54")
            if i == 26:
                for k in range(16): A(f"v_mov_b32 v{vEX+k}, 0")
            if i == 29:
                vm.need(['st', 'b1'])
                A.label("Lg1_st")
                A(f"v_cmp_ne_u32 vcc, {sTAG}, v{vST+1}")
                A(f"s_cbranch_vccnz Lg1_st_r")
                A.label("Lg1_st_ok")
                self.stubs.append(["Lg1_st_r:", f"s_sub_u32 s41, s41, 8", f"s_cbranch_scc1 Lg1_st_ok", f"s_sleep 4",
                                   f"buffer_load_dwordx2 v[{vST}:{vST+1}], v{vST+2}, {WS}, s47 offen {sc}", f"s_waitcnt vmcnt(0)", f"s_branch Lg1_st"])
                vBX = vEX + 12
                A(f"v_xor_b32 v{vBX+1}, 0x8000, v{vST}")
                A(f"v_alignbit_b32 v{vBX}, v{vBX+1}, v{vBX+1}, 16")
                A(f"v_and_b32 v{vBX+1}, 0xffff, v{vBX+1}")
        A.stamp('g1 loop end')
        vBX = vEX + 12
        A(f"v_cvt_pk_bf16_f32 v2, v{vSA}, v{vSA}")
        A(f"v_and_b32 v2, 0xffff0000, v2")
        A(f"v_sub_f32 v3, v{vSA}, v2")
        A(f"s_mov_b32 exec_hi, 0")
        A(f"v_cvt_pk_bf16_f32 v{vEX+1}, v3, v{vBX+2}")
        A(f"v_or_b32 v{vEX}, v2, v{vB1}")
        L(f"ds_write_b64 v8, v[{vEX}:{vEX+1}]", 'exw')
        A(f"s_mov_b32 exec_hi, -1")
        A(f"v_mfma_f32_32x32x16_bf16 v[{vACC}:{vACC+15}], v[{vEX}:{vEX+3}], v[{vBX}:{vBX+3}], v[{vACC}:{vACC+15}]")
        vH0, vH1, vA2, vHF, HD = 7, 6, 32, 96, self.HD
        lg.drain()
        A(f"s_barrier")
        A(f"s_mov_b32 exec_hi, 0")
        for k in (1, 2): L(f"ds_read_b64 v[{vEX+4*k}:{vEX+4*k+1}], v{8+k}", ('exr', k))
        A(f"s_mov_b32 exec_hi, -1")
        A(f"v_add_u32 v{vH1}, {HK*1024}, v{vH0}")
        A(f"v_mov_b32 v4, v{vOF}")
        A(f"v_mov_b32 v5, v{vOF+1}")
        def tile(k):
            a = vACC + 16 * k
            for half in range(2):
                for p in range(8 * half, 8 * half + 8): A(f"v_mul_f32_e64 v{a+p}, v{a+p}, |v{a+p}|")
                for p in range(4 * half, 4 * half + 4): A(f"v_cvt_pk_bf16_f32 v{a+p}, v{a+2*p}, v{a+2*p+1}")
                for p in range(4 * half, 4 * half + 4): A(f"v_pk_max_i16 v{a+p}, v{a+p}, 0")
                for p in range(4 * half, 4 * half + 4): A(f"v_or_b32 v{a+p}, v{a+p}, v{vMS + (p & 3)}")
                V(f"buffer_store_dwordx4 v[{a+4*half}:{a+4*half+3}], v7, {WS}, s{44+k} offen offset:{1024*half} {sc}", 'hst')
        for k in (1, 2):
            lg.need(('exr', k))
            a = vACC + 16 * k
            A(f"v_mfma_f32_32x32x16_bf16 v[{a}:{a+15}], v[{vEX+4*k}:{vEX+4*k+3}], v[{vBX}:{vBX+3}], v[{a}:{a+15}]")
        tile(0); tile(1); tile(2)
        A.stamp('g1 stored')
        W = lambda st: self.w2_ops(st, vDS, W2)
        for o in W(2): E(o)
        A(f"s_mul_i32 s51, {sRB2}, {2*HK*1024}")
        A(f"s_mul_i32 s3, {sW}, {NST*2048}")
        A(f"s_add_u32 s51, s51, s3")
        A(f"s_add_u32 s51, s51, {WS_H}")
        A(f"s_add_u32 s55, s51, {10*2048}")
        A(f"s_cmp_eq_u32 {sW}, 3")
        A(f"s_cselect_b32 s55, {OOB:#x}, s55")
        A(f"v_lshlrev_b32 v12, 2, v19")
        A(f"v_lshl_add_u32 v28, v11, 15, v12")
        A(f"v_and_b32 v13, 3, {vLANE}")
        A(f"v_lshlrev_b32 v13, 3, v13")
        A(f"v_lshrrev_b32_e64 v29, v13, {sTAG}")
        A.label("Lg2_st")
        A(f"v_xor_b32 v14, {sTAG}, v{vS2+1}")
        A(f"v_xor_b32 v30, {sTAG}, v{vS2+3}")
        A(f"v_or_b32 v14, v14, v30")
        A(f"v_cmp_ne_u32 vcc, 0, v14")
        A(f"s_cbranch_vccnz Lg2_st_r")
        A.label("Lg2_st_ok")
        self.stubs.append(["Lg2_st_r:", f"s_sub_u32 s41, s41, 8", f"s_cbranch_scc1 Lg2_st_ok", f"s_sleep 4",
                           f"buffer_load_dwordx2 v[{vS2}:{vS2+1}], v{vST+2}, {WS}, s39 offen {sc}", f"buffer_load_dwordx2 v[{vS2+2}:{vS2+3}], v{vST+2}, {WS}, s39 offen offset:512 {sc}",
                           f"s_waitcnt vmcnt(0)", f"s_branch Lg2_st"])
        def ldh_ops(p, kk):
            r = vHF + 16 * (p % HD) + 8 * kk
            so = 's55' if p == 10 else 's43'
            return [([f"s_add_u32 s43, s51, {p*2048}"][:(1 - tt) if p < 10 else 0] +
                     [f"buffer_load_dwordx4 v[{r+4*tt}:{r+4*tt+3}], v{[vH0, vH1][tt]}, {WS}, {so} offen offset:{1024*kk} {sc}"], vm, ('h', p, kk)) for tt in range(2)]
        for tt in range(2):
            b = vX + 4 * tt
            A(f"v_permlane32_swap_b32 v{b}, v{b+2}")
            A(f"v_permlane32_swap_b32 v{b+1}, v{b+3}")
        for tt in range(2):
            A(f"v_and_b32 v{8+tt}, 0xffff0000, v{vS2+2*tt}")
            A(f"v_mul_f32 v{8+tt}, v{8+tt}, v{8+tt}")
            A(f"v_rcp_f32 v{2+tt}, v{8+tt}")
        for j in range(4):
            A(f"v_lshlrev_b32 v{80+2*j}, 16, v{vX+8+j}")
            A(f"v_and_b32 v{81+2*j}, 0xffff0000, v{vX+8+j}")
        for tt in range(2):
            a = vA2 + 16 * tt
            for j in range(4):
                A(f"v_lshlrev_b32 v{a+2*j}, 16, v{vX+4*tt+j}")
                A(f"v_and_b32 v{a+2*j+1}, 0xffff0000, v{vX+4*tt+j}")
            for j in range(8): A(f"v_add_f32 v{a+j}, v{a+j}, v{80+j}")
            for j in range(8): A(f"v_mul_f32 v{a+j}, v{a+j}, v{8+tt}")
            for j in range(8, 16): A(f"v_mov_b32 v{a+j}, 0")
        A(f"s_lshl_b32 s3, {sDB}, 19")
        A(f"s_lshl_b32 s44, {sW}, 17")
        A(f"s_add_u32 s3, s3, s44")
        A(f"s_lshl_b32 s44, {sRB2}, 8")
        A(f"s_add_u32 s3, s3, s44")
        A(f"s_add_u32 s47, s3, {WS_YT}")
        A(f"s_mov_b32 s40, 0x80008000")
        if self.h_first: vm.need('hst')
        if self.h_delay: A(f"s_sleep {self.h_delay}")
        A.stamp('g2 acked')
        for p in range(self.h_first):
            for o in ldh_ops(p, 0) + ldh_ops(p, 1): E(o)
        self.soft_wait("m_kd", C_BUILT, 4, vCN, vTM, slp=1)
        A.stamp('g2 kd')
        wq = list(range(3, 7))
        for _ in range(self.w_pre):
            for o in W(wq.pop(0)): E(o)
        for p in range(self.h_first, HD):
            for o in (W(wq.pop(0)) if wq else []) + ldh_ops(p, 0) + ldh_ops(p, 1): E(o)
        A.stamp('g2 issued')
        vY = 224
        def ldy_ops():
            ops = []
            for q in range(2):
                for e in range(4):
                    for tt in range(2):
                        ops.append(([f"s_add_u32 s44, s47, {(8*q+e)*8192}"][:1 - tt] + [f"buffer_load_dword v{vY+8*tt+4*q+e}, v28, {WS}, s44 offen offset:{128*tt} {sc}"], vm, 'y'))
            return ops
        def treg(p, kk): return [16, 24 - 16][0] if False else [208, 216][(2 * p + kk) & 1]
        def rd2_ops(p, kk):
            ar = W2AREA[p]; ops = []; dst = treg(p, kk)
            a, off = (vRA, ar) if ar < 65536 else ((vRA + 2, ar - 65536) if ar < L_BX else (vRA + 4, ar - L_BX))
            off += kk * 2048
            for dt in range(2):
                r = dst + 4 * dt
                ops.append(([f"ds_read_b64_tr_b16 v[{r}:{r+1}], v{a+dt} offset:{off}"], lg, ('t', p, kk)))
                ops.append(([f"ds_read_b64_tr_b16 v[{r+2}:{r+3}], v{a+dt} offset:{off+1024}"], lg, ('t', p, kk)))
            return ops
        def check(p, kk):
            r = vHF + 16 * (p % HD) + 8 * kk
            vm.need(('h', p, kk))
            A.label(f"Lhc{p}_{kk}")
            for j in range(8): A(f"v_xor_b32 v{r+j}, v{r+j}, v{vMS + (j & 3)}")
            A(f"v_or3_b32 v15, v{r}, v{r+1}, v{r+2}")
            A(f"v_or3_b32 v14, v{r+3}, v{r+4}, v{r+5}")
            A(f"v_or3_b32 v15, v15, v{r+6}, v{r+7}")
            A(f"v_or_b32 v15, v15, v14")
            A(f"v_and_b32 v15, s40, v15")
            A(f"v_cmp_ne_u32 vcc, 0, v15")
            if p == 10:
                A(f"s_cmp_eq_u32 {sW}, 3")
                A(f"s_cbranch_scc1 Lhk{p}_{kk}")
            A(f"s_cbranch_vccnz Lhr{p}_{kk}")
            A.label(f"Lhk{p}_{kk}")
            self.stubs.append([f"Lhr{p}_{kk}:", f"s_sub_u32 s41, s41, 8", f"s_cbranch_scc1 Lhk{p}_{kk}", f"s_sleep {self.h_sleep}", f"s_add_u32 s3, s51, {p*2048}",
                          f"buffer_load_dwordx4 v[{r}:{r+3}], v{vH0}, {WS}, s3 offen offset:{1024*kk} {sc}",
                          f"buffer_load_dwordx4 v[{r+4}:{r+7}], v{vH1}, {WS}, s3 offen offset:{1024*kk} {sc}",
                          f"s_waitcnt vmcnt(0)", f"s_branch Lhc{p}_{kk}"])
        for o in rd2_ops(0, 0): E(o)
        check(0, 0)
        A.stamp('g2 st0')
        yq = ldy_ops()
        for p in range(NST):
            for kk in range(2):
                np_, nkk = (p, 1) if kk == 0 else (p + 1, 0)
                rds = rd2_ops(np_, nkk) if np_ < NST else []
                fill = []
                pp, pkk = (p, 0) if kk == 1 else (p - 1, 1)
                if wq: fill += W(wq.pop(0))
                if kk == 1 and p <= 3: wq.append(p + 7)
                if pp >= 0 and pp + HD < NST: fill += ldh_ops(pp + HD, pkk)
                if p >= self.y_at and yq:
                    fill += yq[:self.y_per]; yq = yq[self.y_per:]
                lg.need(('t', p, kk)); w0 = treg(p, kk)
                last = (p == NST - 1 and kk == 1)
                n = 0
                for dt in ((1, 0) if last else (0, 1)):
                    for tt in range(2):
                        a = vA2 + 32 * dt + 16 * tt
                        w = w0 + 4 * dt
                        h = vHF + 16 * (p % HD) + 8 * kk + 4 * tt
                        c = '0' if (p == 0 and kk == 0 and dt == 1) else f"v[{a}:{a+15}]"
                        A(f"v_mfma_f32_32x32x16_bf16 v[{a}:{a+15}], v[{w}:{w+3}], v[{h}:{h+3}], {c}")
                        n += 1
                        if n == 1:
                            if rds and nkk == 0: vm.need(('w2', np_))
                            for o in rds: E(o)
                        if n <= 3:
                            k = (len(fill) + (3 - n)) // (4 - n)
                            for o in fill[:k]: E(o)
                            fill = fill[k:]
                        elif np_ < NST:
                            check(np_, nkk)
        assert not yq
        A.stamp('g2 loop end')
        PA = {1: 16384, 2: 32768, 3: 49152}
        vP = vY
        A(f"v_add_u32 v12, {sM2}, v{vH0}")
        for i in (1, 2, 3):
            A(f"s_xor_b32 s3, {sW}, {i}")
            A(f"s_lshl_b32 s3, s3, 12")
            A(f"v_add_u32 v{20+i}, s3, v{vH0}")
        for i in (2, 3, 1):
            for tt in range(2):
                for qq in range(2):
                    a = vA2 + 32 * (i >> 1) + 16 * tt + 8 * (i & 1) + 4 * qq
                    L(f"ds_write_b128 v12, v[{a}:{a+3}] offset:{PA[i] + tt*2048 + qq*1024}", 'pw')
        vm.need('y')
        A.label("Lyc")
        for j in range(0, 16, 2):
            A(f"v_xor_b32 v14, v{vY+j}, v29")
            A(f"v_xor_b32 v15, v{vY+j+1}, v29")
            if j == 0: A(f"v_or_b32 v13, v14, v15")
            else: A(f"v_or3_b32 v13, v13, v14, v15")
        A(f"v_and_b32 v13, 0xff, v13")
        A(f"v_cmp_ne_u32 vcc, 0, v13")
        A(f"s_cbranch_vccnz Lyr")
        A.label("Lyk")
        st = ["Lyr:", f"s_sub_u32 s41, s41, 8", f"s_cbranch_scc1 Lyk", f"s_sleep 2"]
        for o in ldy_ops(): st += o[0]
        self.stubs.append(st + [f"s_waitcnt vmcnt(0)", f"s_branch Lyc"])
        A.stamp('g2 y ok')
        lg.drain()
        A(f"s_barrier")
        A.stamp('g2 bar')
        RR = {1: 96, 2: 112, 3: 128}
        for i in (1, 2, 3):
            for k in range(4):
                r = RR[i] + 4 * k
                L(f"ds_read_b128 v[{r}:{r+3}], v{20+i} offset:{PA[i] + k*1024}", ('pr', i))
        for i in (1, 2, 3):
            lg.need(('pr', i))
            for tt in range(2):
                for j in range(4):
                    a = vA2 + 16 * tt + 2 * j
                    r = RR[i] + 8 * tt + 2 * j
                    A(f"v_pk_add_f32 v[{a}:{a+1}], v[{a}:{a+1}], v[{r}:{r+1}]")
        for tt in range(2):
            for j in range(4):
                a = vA2 + 16 * tt + 2 * j
                A(f"v_pk_fma_f32 v[{a}:{a+1}], v[{a}:{a+1}], v[2:3], v[{vP+8*tt+2*j}:{vP+8*tt+2*j+1}] op_sel:[0,{tt},0] op_sel_hi:[1,{tt},1]")
            for j in range(4):
                a = vA2 + 16 * tt + 2 * j
                A(f"v_cvt_pk_bf16_f32 v{16+4*tt+j}, v{a}, v{a+1}")
            b = 16 + 4 * tt
            A(f"v_permlane32_swap_b32 v{b}, v{b+2}")
            A(f"v_permlane32_swap_b32 v{b+1}, v{b+3}")
            A(f"buffer_store_dwordx4 v[{b}:{b+3}], v{4+tt}, {OUT}, 0 offen")
    u_at = 1

class Lr(Role):
    rot = 'cx'
    touch = 1
    plan = [10, 8, 4, 4, 3, 3]
    kprio = 2
    l_n = 3
    kper = 4
    spread = 1
    poll_sleep = 8
    def run(self):
        A = self.A; vm = self.vm; lg = self.lg; E = self.emit; V = self.V; L = self.L
        pLA, pAI, pCR, pCI, pLDT, pDSK = 's[10:11]', 's[12:13]', 's[14:15]', 's[16:17]', 's[18:19]', 's[20:21]'
        X, W1, W2, WS, UBS = 's[24:27]', 's[56:59]', 's[60:63]', 's[44:47]', 's[8:11]'
        sLDT, sDSK, sCH, sHW = 's28', 's29', 's22', 's23'
        sKX, sKW, sMX, sMW, sPERM = 's38', 's39', 's40', 's41', 's54'
        vXS, vWS_, vDS = 228, 232, 236
        vKA, vKB, vKW, vKZ, vTW, vCT, vCH, vUA, vUB, vUL, vPW, vPR, vUD, vCN = range(240, 254)
        A(f"s_load_dwordx16 s[8:23], s[0:1], 0")
        A(f"s_load_dwordx2 s[56:57], s[0:1], 64")
        A(f"s_load_dwordx2 s[44:45], s[0:1], 112")
        A(f"s_load_dwordx2 s[60:61], s[0:1], 80")
        self.ids()
        for base, size in ((24, 0x200000), (56, W1_SIZE), (60, W1_SIZE), (44, WS_SIZE)):
            A(f"s_mov_b32 s{base+2}, {size}")
            A(f"s_mov_b32 s{base+3}, 0x20000")
        A(f"s_and_b32 s31, {sW}, 1")
        A(f"s_lshl_b32 s30, {sQ}, 1")
        A(f"s_add_u32 s3, s31, s30")
        A(f"s_lshl_b32 s3, s3, 8")
        A(f"v_lshl_add_u32 v16, {vLANE}, 2, s3")
        A(f"s_lshl_b32 s30, {sQ}, 2")
        if self.rot == 'cx': A(f"s_add_u32 s3, {sCB}, {sID}")
        elif self.rot == 'x': A(f"s_mov_b32 s3, {sID}")
        elif self.rot == 'c': A(f"s_mov_b32 s3, {sCB}")
        else: A(f"s_mov_b32 s3, 0")
        A(f"s_and_b32 s3, s3, 7")
        A(f"s_mul_i32 s3, s3, 0x11111111")
        A(f"s_add_u32 {sPERM}, s3, 0x76543210")
        A(f"s_mul_i32 s3, {sW}, {16*2752}")
        A(f"s_mul_i32 s43, {sCB}, 192")
        A(f"s_add_u32 s3, s3, s43")
        A(f"s_movk_i32 s43, {2752 - 192}")
        A(f"v_lshl_add_u32 v31, {vLANE}, 4, s3")
        for i in range(3):
            A(f"v_add_u32 v3, {64*i}, {vLANE}")
            A(f"v_mul_u32_u24 v3, 0x5556, v3")
            A(f"v_lshrrev_b32 v3, 18, v3")
            A(f"v_mad_u32_u24 v{vWS_+i}, v3, s43, v31")
        A(f"v_lshrrev_b32 v3, 3, {vLANE}")
        A(f"v_lshrrev_b32 v30, 4, {vLANE}")
        A(f"v_and_b32 v31, 7, {vLANE}")
        A(f"v_xor_b32 v31, v31, v30")
        A(f"v_lshlrev_b32 v31, 4, v31")
        A(f"v_lshl_add_u32 v31, v3, 10, v31")
        A(f"s_lshl_b32 s3, {sRB}, 17")
        A(f"s_lshl_b32 s43, {sW}, 15")
        A(f"s_add_u32 s3, s3, s43")
        A(f"v_add_u32 v{vXS}, s3, v31")
        A(f"v_xor_b32 v{vXS+1}, 64, v{vXS}")
        A(f"v_add_u32 v{vXS+1}, {8192-1024}, v{vXS+1}")
        A(f"v_add_u32 v{vXS+2}, {2*(8192-1024)}, v{vXS}")
        A(f"v_add_u32 v{vXS+3}, {2*(8192-1024)}, v{vXS+1}")
        A(f"s_lshl_b32 {sMX}, {sW}, 12")
        A(f"s_add_u32 {sMX}, {sMX}, {XOFF}")
        A(f"s_mul_i32 {sMW}, {sW}, 3072")
        A(f"s_waitcnt lgkmcnt(0)")
        V(f"global_load_dword v4, v16, {pLA}", 'par')
        V(f"global_load_dword v5, v16, {pAI}", 'par')
        V(f"global_load_dword v6, v16, {pCR}", 'par')
        V(f"global_load_dword v7, v16, {pCI}", 'par')
        A(f"s_load_dword {sLDT}, {pLDT}, s30")
        A(f"s_load_dword {sDSK}, {pDSK}, s30")
        A(f"s_mov_b32 s24, s8")
        A(f"s_mov_b32 s25, s9")
        A(f"s_mov_b32 {sCH}, s31")
        A(f"s_lshr_b32 {sHW}, {sW}, 1")
        A(f"s_barrier")
        def st_ops(s):
            w = [([f"s_add_u32 m0, {sMW}, {slot_of(s)}", f"s_bfe_u32 s3, {sPERM}, {(4*s) | (3<<16):#x}", f"s_mul_i32 {sKW}, s3, {64*2752}", f"s_lshl_b32 {sKX}, s3, 7"][:4 if i == 0 else 0]
                  + [f"buffer_load_dwordx4 v{vWS_+i}, {W1}, {sKW} offen offset:{1024*i} lds"], vm, ('st', s)) for i in range(3)]
            x = [([f"s_add_u32 m0, {sMX}, {slot_of(s)}"][:1 if i == 0 else 0]
                  + [f"buffer_load_dwordx4 v{vXS+i}, {X}, {sKX} offen offset:{1024*i} lds"], vm, ('st', s)) for i in range(4)]
            return w + x
        for o in st_ops(0): E(o)
        def nibp(lst): return sum(lst[7 - p] << (4 * p) for p in range(8))
        N0 = nibp(list(range(8))); N1 = nibp([0,0,1,2,2,2,3,4]); N2 = nibp([0,0,0,1,1,1,2,2]); N4 = nibp([0,0,0,0,0,1,1,1])
        A(f"v_mov_b32 v{vCN}, {L_CNT}")
        A(f"v_and_b32 v20, 7, {vLANE}")
        A(f"v_lshlrev_b32 v20, 2, v20")
        A(f"v_bfe_u32 v21, {vLANE}, 3, 2")
        A(f"s_cmp_lt_u32 {sW}, 2")
        A(f"s_mov_b32 s51, {N4:#x}")
        A(f"s_cselect_b32 s32, {N0:#x}, s51")
        A(f"s_cselect_b32 s33, {N1:#x}, s51")
        A(f"s_cselect_b32 s55, {N2:#x}, s51")
        A(f"s_mov_b32 s51, {(26<<24)|(24<<16)|(22<<8)|20:#x}")
        A(f"s_cselect_b32 s51, {(17<<24)|(14<<16)|(9<<8)|0:#x}, s51")
        A(f"s_cselect_b32 s36, 0, 0xaaaaaaaa")
        A(f"s_mov_b32 s37, 0")
        A(f"v_cmp_eq_u32 vcc, 1, v21")
        A(f"v_mov_b32 v22, s55")
        A(f"v_mov_b32 v23, s33")
        A(f"v_cndmask_b32 v22, v22, v23, vcc")
        A(f"v_cmp_eq_u32 vcc, 0, v21")
        A(f"v_mov_b32 v23, s32")
        A(f"v_lshlrev_b32 v21, 3, v21")
        A(f"v_cndmask_b32 v22, v22, v23, vcc")
        A(f"v_bfe_u32 v22, v22, v20, 4")
        A(f"v_bfe_u32 v23, s51, v21, 8")
        A(f"v_add_u32 v22, v22, v23")
        A(f"v_lshrrev_b32 v23, 5, {vLANE}")
        A(f"s_mul_i32 s31, {sCH}, {60*TROW}")
        A(f"s_add_u32 s31, s31, {L_TAB}")
        A(f"v_lshl_add_u32 v24, v23, 4, s31")
        A(f"s_movk_i32 s30, {TROW}")
        A(f"v_mad_u32_u24 v{vKA}, v22, s30, v24")
        A(f"v_and_b32 v22, 31, {vLANE}")
        A(f"v_mad_u32_u24 v{vKB}, v22, s30, v24")
        A(f"s_mul_i32 s30, {sHW}, {28*TROW}")
        A(f"s_add_u32 s31, s31, s30")
        A(f"v_lshl_add_u32 v{vTW}, {vLANE}, 3, s31")
        A(f"s_mul_i32 s31, {sCH}, {KREV_SZ}")
        A(f"s_add_u32 s31, s31, {L_KREV}")
        A(f"v_lshl_add_u32 v{vKZ}, {vLANE}, 4, s31")
        A(f"s_lshl_b32 s30, {sHW}, 11")
        A(f"s_sub_u32 s32, s31, s30")
        A(f"s_add_u32 s32, s32, {4080 - 1536}")
        A(f"v_lshlrev_b32 v22, 4, v22")
        A(f"v_sub_u32 v22, s32, v22")
        A(f"v_lshl_add_u32 v{vKW}, v23, 3, v22")
        for o in st_ops(1)[:3]: E(o)
        A(f"v_and_b32 v20, 15, {vLANE}")
        A(f"s_lshl_b32 s32, {sHW}, 8")
        A(f"s_add_u32 s31, s31, s32")
        A(f"s_add_u32 s31, s31, 480")
        A(f"v_lshlrev_b32 v22, 5, v20")
        A(f"v_sub_u32 v22, s31, v22")
        A(f"v_lshl_add_u32 v{vCT}, v30, 4, v22")
        A(f"s_mul_i32 s31, {sCH}, {4*CPY}")
        A(f"s_add_u32 s31, s31, {L_U}")
        A(f"s_add_u32 s33, s31, s32")
        A(f"v_bfe_u32 v22, {vLANE}, 2, 2")
        A(f"v_and_b32 v24, 3, {vLANE}")
        A(f"v_mul_u32_u24 v25, {CPY}, v22")
        A(f"v_lshl_add_u32 v25, v30, 4, v25")
        A(f"v_lshl_add_u32 v25, v24, 3, v25")
        A(f"v_add_u32 v{vCH}, s33, v25")
        A(f"v_lshlrev_b32 v25, 2, v30")
        A(f"v_xor_b32 v25, v25, {vLANE}")
        A(f"s_lshl_b32 s3, {sW}, 13")
        A(f"s_add_u32 s3, s3, {L_PART}")
        A(f"v_lshl_add_u32 v{vPW}, v25, 4, s3")
        A(f"v_lshrrev_b32 v25, 2, {vLANE}")
        A(f"v_lshlrev_b32 v26, 2, v24")
        A(f"v_xor_b32 v25, v25, v26")
        A(f"v_lshlrev_b32 v25, 4, v25")
        A(f"v_lshl_add_u32 v25, v24, 8, v25")
        A(f"v_and_b32 v24, 1, {vLANE}")
        A(f"s_lshl_b32 s3, {sCH}, 13")
        A(f"s_lshl_b32 s30, {sHW}, 12")
        A(f"s_add_u32 s3, s3, s30")
        A(f"s_add_u32 s3, s3, {L_PART}")
        A(f"v_add_u32 v{vPR}, s3, v25")
        A(f"s_lshl_b32 s30, {sHW}, 11")
        A(f"s_add_u32 s31, s31, s30")
        A(f"v_lshl_add_u32 v{vUD}, {vLANE}, 3, s31")
        A(f"v_lshrrev_b32 v25, 1, {vLANE}")
        A(f"s_lshl_b32 s3, {sW}, 6")
        A(f"v_add_u32 v25, s3, v25")
        A(f"s_lshl_b32 s3, {sQ}, 5")
        A(f"s_sub_u32 s3, s3, 16384")
        A(f"v_lshlrev_b32 v26, 13, v25")
        A(f"v_lshl_add_u32 v26, v24, 4, v26")
        A(f"v_add_u32 v{vUA}, s3, v26")
        A(f"v_add_u32 v{vUB}, 8192, v{vUA}")
        A(f"v_mul_u32_u24 v26, {4*CPY}, v24")
        A(f"v_lshl_add_u32 v26, v25, 4, v26")
        A(f"v_add_u32 v{vUL}, {L_U}, v26")
        self.w2_src(vDS, 20, 21, 22)
        LOG2E = '0x3fb8aa3b'
        A(f"s_waitcnt lgkmcnt(0)")
        A(f"s_mov_b32 s8, s44")
        A(f"s_mov_b32 s9, s45")
        A(f"s_mov_b32 s10, {UB_SIZE}")
        A(f"s_mov_b32 s11, 0x20000")
        A(f"s_lshl_b32 s30, {sLDT}, 16")
        A(f"s_and_b32 s31, {sLDT}, 0xffff0000")
        A(f"s_cmp_eq_u32 {sCH}, 0")
        A(f"s_cselect_b32 {sLDT}, s30, s31")
        A(f"s_lshl_b32 s30, {sDSK}, 16")
        A(f"s_and_b32 s31, {sDSK}, 0xffff0000")
        A(f"s_cmp_eq_u32 {sCH}, 0")
        A(f"s_cselect_b32 {sDSK}, s30, s31")
        A(f"v_mov_b32 v16, {LOG2E}")
        A(f"v_mul_f32 v17, {sLDT}, v16")
        A(f"v_exp_f32 v17, v17")
        A(f"s_cmp_lt_u32 {sW}, 2")
        A(f"s_cselect_b32 s32, 1.0, 0x41000000")
        A(f"s_cselect_b32 s33, 0x43780000, s32")
        A(f"s_cselect_b32 s55, 0xbe22f983, 0.15915494")
        A(f"v_cvt_pk_bf16_f32 v17, v17, v17")
        A(f"v_lshlrev_b32 v17, 16, v17")
        vm.need('par')
        A.stamp('par loaded')
        A(f"v_lshlrev_b32 v20, 16, v4")
        A(f"v_and_b32 v21, 0xffff0000, v4")
        A(f"v_mul_f32 v20, v20, v16")
        A(f"v_mul_f32 v21, v21, v16")
        A(f"v_exp_f32 v20, v20")
        A(f"v_exp_f32 v21, v21")
        A(f"v_lshlrev_b32 v22, 16, v5")
        A(f"v_and_b32 v23, 0xffff0000, v5")
        A(f"v_cvt_pk_bf16_f32 v18, v20, v21")
        A(f"v_mul_f32 v22, v22, v17")
        A(f"v_mul_f32 v23, v23, v17")
        A(f"v_lshlrev_b32 v20, 16, v18")
        A(f"v_and_b32 v21, 0xffff0000, v18")
        A(f"v_mul_f32 v22, s55, v22")
        A(f"v_mul_f32 v23, s55, v23")
        A(f"v_mul_f32 v20, v20, v17")
        A(f"v_mul_f32 v21, v21, v17")
        A(f"v_mul_f32_e64 v20, -v20, v16")
        A(f"v_mul_f32_e64 v21, -v21, v16")
        MR = {1: 24, 248: 28, 2: 32, 4: 36, 8: 40}
        for (inc, sreg, tb) in ((1, 's32', 56), (248, 's33', 60)):
            for i in range(2):
                A(f"v_mul_f32 v{tb+i}, {sreg}, v{20+i}")
                A(f"v_mul_f32 v{tb+2+i}, {sreg}, v{22+i}")
        for tb in (56, 60):
            for i in range(2):
                A(f"v_exp_f32 v{tb+i}, v{tb+i}")
                A(f"v_fract_f32 v{tb+2+i}, v{tb+2+i}")
        for (inc, tb) in ((1, 56), (248, 60)):
            for i in range(2):
                m = MR[inc] + 2 * i
                A(f"v_cos_f32 v{m}, v{tb+2+i}")
                A(f"v_sin_f32 v{m+1}, v{tb+2+i}")
        for (inc, tb) in ((1, 56), (248, 60)):
            for i in range(2):
                m = MR[inc] + 2 * i
                A(f"v_mul_f32 v{m}, v{m}, v{tb+i}")
                A(f"v_mul_f32 v{m+1}, v{m+1}, v{tb+i}")
        def cmul2(dst, a, m):
            l1 = []; l2 = []
            for i in range(2):
                d, x, y = dst + 2 * i, a + 2 * i, m + 2 * i
                l1.append(f"v_mul_f32_e64 v{d}, -v{x+1}, v{y+1}")
                l1.append(f"v_mul_f32 v{d+1}, v{x}, v{y+1}")
                l2.append(f"v_fmac_f32 v{d}, v{x}, v{y}")
                l2.append(f"v_fmac_f32 v{d+1}, v{x+1}, v{y}")
            return l1, l2
        A(f"s_cbranch_scc1 Lkg_h")
        for r in range(32, 44): A(f"v_mov_b32 v{r}, v{24 + (r & 3)}")
        A(f"v_mov_b32 v48, 1.0")
        A(f"v_mov_b32 v49, 0")
        A(f"v_mov_b32 v50, 1.0")
        A(f"v_mov_b32 v51, 0")
        A(f"s_branch Lkg_go")
        A.label("Lkg_h")
        A(f"v_add_f32 v17, v17, v17")
        A(f"v_lshlrev_b32 v48, 16, v6")
        A(f"v_lshlrev_b32 v49, 16, v7")
        A(f"v_and_b32 v50, 0xffff0000, v6")
        A(f"v_and_b32 v51, 0xffff0000, v7")
        for (d, s_) in ((2, 1), (4, 2), (8, 4)):
            l1, l2 = cmul2(MR[d], MR[s_], MR[s_])
            for x in l1 + l2: A(x)
        A(f"v_mul_f32 v48, v48, v17")
        A(f"v_mul_f32_e64 v49, -v49, v17")
        A(f"v_mul_f32 v50, v50, v17")
        A(f"v_mul_f32_e64 v51, -v51, v17")
        A.label("Lkg_go")
        dma = st_ops(1)[3:] + st_ops(2)
        if self.touch:
            dma.append(([f"s_mul_i32 s3, {sQ}, 5504", f"s_mul_i32 s30, {sW}, 1408", f"s_add_u32 s3, s3, s30", f"v_lshlrev_b32 v19, 7, {vLANE}", f"s_mov_b64 exec, 0x7ff",
                         f"buffer_load_dword v3, v19, {W2}, s3 offen", f"s_mov_b64 exec, -1"], vm, 'touch'))
        W = lambda st: self.w2_ops(st, vDS, W2)
        def W2h(st, h):
            o = W(st)
            return [(o[0][0][:2] + o[2*h][0][-1:], vm, ('w2', st)), o[2*h+1]]
        cur, nxt = 48, 52
        step = 0
        def chain_step(ndma):
            nonlocal cur, nxt, step
            pk = 64 + 2 * step
            if step < 31:
                l1, l2 = cmul2(nxt, cur, MR[HINC[step]])
                for x in l1: A(x)
            A(f"v_cvt_pk_bf16_f32 v{pk}, v{cur}, v{cur+1}")
            A(f"v_cvt_pk_bf16_f32 v{pk+1}, v{cur+2}, v{cur+3}")
            for _ in range(ndma):
                if dma: E(dma.pop(0))
            if step < 31:
                for x in l2: A(x)
            cur, nxt = nxt, cur
            step += 1
        extra = {b_: [] for b_ in range(-1, 5)}
        cert = {}
        for b, n in zip(range(-1, 5), self.plan):
            for k in range(n):
                if step < 32: chain_step(-(-len(dma) // (n - k)))
            while dma: E(dma.pop(0))
            A.stamp(f"_I{b}")
            vm.need([('st', b + 1)] + cert.get(b, []))
            A.stamp(f"_W{b}")
            A(f"s_barrier")
            if 0 <= b: dma.extend(st_ops(b + 3))
            dma.extend(extra[b])
        L(f"ds_read_b32 v60, v{vCN} offset:{C_TAG}", 'tag')
        A(f"v_lshlrev_b32 v20, 4, {vLANE}")
        A(f"s_mov_b32 s33, {WS_FU}")
        V(f"buffer_load_dwordx4 v[128:131], v20, {WS}, s33 offen sc1", 'pu')
        while dma: E(dma.pop(0))
        while step < 32: chain_step(0)
        A.stamp('kg chain')
        for r in range(24, 28): A(f"v_mov_b32 v{r}, 0")
        lg.drain()
        A(f"v_readfirstlane_b32 {sTAG}, v60")
        vm.need([('st', 6), 'pu'])
        A(f"s_barrier")
        def u_check():
            for k in range(4): A(f"v_xor_b32 v{132+k}, {sTAG}, v{128+k}")
            A(f"v_or3_b32 v132, v132, v133, v134")
            A(f"v_or_b32 v132, v132, v135")
            A(f"v_cmp_ne_u32 vcc, 0, v132")
        def u_loads(tg):
            A(f"s_mov_b32 s30, {32*8192}")
            A(f"v_add_u32 v22, s30, v{vUA}")
            A(f"v_add_u32 v23, s30, v{vUB}")
            A(f"s_cmp_lg_u32 {sW}, 3")
            A(f"s_cbranch_scc1 Lc_no3{tg}")
            A(f"s_mov_b64 exec, 15")
            A(f"buffer_load_dwordx4 v[144:147], v22, {UBS}, s30 offen sc1")
            A(f"buffer_load_dwordx2 v[148:149], v23, {UBS}, s30 offen sc1")
            A(f"s_mov_b64 exec, 1")
            A(f"s_cmp_lg_u32 {sID}, 0")
            A(f"s_cbranch_scc1 Lc_no3{tg}")
            A(f"v_mov_b32 v28, {sTAG}")
            A(f"v_mov_b32 v29, {WS_EP}")
            A(f"buffer_store_dword v28, v29, {WS}, 0 offen sc1")
            A.label(f"Lc_no3{tg}")
            A(f"s_mov_b32 exec_lo, 0xc000c000")
            A(f"s_mov_b32 exec_hi, 0xc000c000")
            A(f"buffer_load_dwordx2 v[132:133], v{vUB}, {UBS}, 0 offen sc1")
            A(f"buffer_load_dwordx2 v[140:141], v23, {UBS}, 0 offen sc1")
            A(f"s_mov_b64 exec, -1")
            A(f"buffer_load_dwordx4 v[128:131], v{vUA}, {UBS}, 0 offen sc1")
            A(f"buffer_load_dwordx4 v[136:139], v22, {UBS}, 0 offen sc1")
        for o in W(0): E(o)
        vm.need(('st', 7))
        A(f"s_barrier")
        for o in W(1): E(o)
        u_check()
        A(f"s_mov_b32 s39, 1")
        A(f"s_cbranch_vccnz Lc_skipu")
        A(f"s_mov_b32 s39, 0")
        u_loads('a')
        A(f"s_waitcnt vmcnt(4)")
        A(f"s_branch Lc_exb")
        A.label("Lc_skipu")
        A(f"s_waitcnt vmcnt(0)")
        A.label("Lc_exb")
        vm.q = []
        A.stamp('u ok')
        A(f"s_barrier")
        A.stamp('ex ok')
        if self.kprio: A(f"s_setprio {self.kprio}")
        for st_ in range(28): A(f"ds_write_b64 v{vTW}, v[{64+2*st_}:{65+2*st_}] offset:{st_*TROW}")
        A(f"s_cmp_lt_u32 {sW}, 2")
        A(f"s_cbranch_scc1 Lc_h28")
        for st_ in range(28, 32): A(f"ds_write_b64 v{vTW}, v[{64+2*st_}:{65+2*st_}] offset:{st_*TROW}")
        A.label("Lc_h28")
        self.soft_arrive(C_TABW, vCN, 21)
        def build(tg):
            A(f"s_waitcnt vmcnt(0)")
            for i in range(3):
                w = 128 + 8 * i; t = 152 + 12 * i
                if i == 2:
                    A(f"s_cmp_lg_u32 {sW}, 3")
                    A(f"s_cbranch_scc1 Lc_nob{tg}")
                    A(f"s_mov_b64 exec, 15")
                else:
                    A(f"v_mov_b32_dpp v{w+4}, v{w} row_shl:2 row_mask:0xf bank_mask:0xf")
                    A(f"v_mov_b32_dpp v{w+5}, v{w+1} row_shl:2 row_mask:0xf bank_mask:0xf")
                for j in range(4): A(f"v_alignbyte_b32 v{t+j}, v{w+j+1}, v{w+j}, 2")
                off = 512 * i
                A(f"ds_write_b128 v{vUL}, v[{w+2}:{w+5}] offset:{off + 3*CPY}")
                for j in range(4): A(f"v_mov_b32 v{t+4+j}, v{w+j+1}")
                A(f"ds_write_b128 v{vUL}, v[{t}:{t+3}] offset:{off}")
                for j in range(4): A(f"v_alignbyte_b32 v{t+8+j}, v{w+j+2}, v{w+j+1}, 2")
                A(f"ds_write_b128 v{vUL}, v[{t+4}:{t+7}] offset:{off + CPY}")
                A(f"ds_write_b128 v{vUL}, v[{t+8}:{t+11}] offset:{off + 2*CPY}")
            A(f"s_mov_b64 exec, -1")
            A.label(f"Lc_nob{tg}")
            self.soft_arrive(C_U, vCN, 21)
        A(f"s_cmp_lg_u32 s39, 0")
        A(f"s_cbranch_scc1 Lc_nobuild")
        A.label("Lc_build")
        build('')
        A(f"s_cmp_lg_u32 s39, 0")
        A(f"s_cbranch_scc1 Lc_built")
        A.label("Lc_nobuild")
        self.soft_wait("l_tabw", C_TABW, 4, vCN, 21)
        def rdk(k):
            r = 64 + 8 * (k % 8)
            L(f"ds_read_b128 v[{r}:{r+3}], v{vKA} offset:{32*k}", ('k', k))
            L(f"ds_read_b128 v[{r+4}:{r+7}], v{vKB} offset:{28*TROW + 32*k}", ('k', k))
        for k in range(7): rdk(k)
        for k in range(16):
            lg.need(('k', k))
            r = 64 + 8 * (k % 8)
            c = '0' if k == 0 else 'v[32:47]'
            A(f"v_mfma_f32_32x32x16_bf16 v[32:47], v[{r}:{r+3}], v[{r+4}:{r+7}], {c}")
            if k + 7 < 16: rdk(k + 7)
            if k == 10:
                A(f"s_mov_b64 exec, 0x3fffffff")
                L(f"ds_write_b128 v{vKZ}, v[24:27] offset:4096", 'w')
                A(f"s_mov_b64 exec, -1")
        for q in range(4): A(f"v_cndmask_b32 v{32+4*q+3}, v{32+4*q+3}, v{32+4*q+2}, s[36:37]")
        for q in range(4):
            A(f"v_cvt_pk_bf16_f32 v{48+2*q}, v{32+4*q}, v{33+4*q}")
            A(f"v_cvt_pk_bf16_f32 v{49+2*q}, v{34+4*q}, v{35+4*q}")
            L(f"ds_write_b64 v{vKW}, v[{48+2*q}:{49+2*q}] offset:{512*(3-q)}", 'w')
        self.soft_arrive(C_BUILT, vCN, 21)
        self.soft_arrive(C_U, vCN, 21)
        A.stamp('kg done')
        A(f"s_cmp_eq_u32 s39, 0")
        A(f"s_cbranch_scc1 Lc_built")
        A(f"s_mov_b32 s31, {SPIN}")
        A.label("Lc_poll")
        A(f"s_mov_b64 exec, vcc")
        A(f"buffer_load_dwordx4 v[128:131], v20, {WS}, s33 offen sc1")
        A(f"s_mov_b64 exec, -1")
        A(f"s_waitcnt vmcnt(0)")
        u_check()
        A(f"s_sub_u32 s31, s31, 1")
        A(f"s_cbranch_scc1 Lc_poll_ok")
        A(f"s_cbranch_vccz Lc_poll_ok")
        A(f"s_sleep {self.poll_sleep}")
        A(f"s_branch Lc_poll")
        A.label("Lc_poll_ok")
        u_loads('b')
        A(f"s_branch Lc_build")
        A.label("Lc_built")
        A(f"s_waitcnt lgkmcnt(0)")
        for r in range(32, 64): A(f"v_mov_b32 v{r}, 0")
        self.soft_wait("l_built", C_U, 8, vCN, 21)
        A.stamp('cv built')
        def frag_ops(b, rho, i):
            T = 64 + 64 * b + 4 * i; H = 96 + 64 * b + 4 * i
            return [(f"ds_read_b128 v[{T}:{T+3}], v{vCT} offset:{512*(7-i) + 64*rho}", ('f', rho, i)),
                    (f"ds_read_b64_tr_b16 v[{H}:{H+1}], v{vCH} offset:{512*i + 64*rho}", ('f', rho, i)),
                    (f"ds_read_b64_tr_b16 v[{H+2}:{H+3}], v{vCH} offset:{512*i + 8 + 64*rho}", ('f', rho, i))]
        pend = [o for rho in range(4) for i in range(8) for o in frag_ops(rho & 1, rho, i)]
        for p in range(4):
            pend.append((f"ds_read_b64 v[{192+2*p}:{193+2*p}], v{vUD} offset:{3*CPY + 24 + 512*p}", ('ud', 4, 0)))
        for o in pend[:12]: L(*o)
        pend = pend[12:]
        arrived = False
        for rho in range(4):
            b = rho & 1
            for n in range(8):
                lg.need(('f', rho, n))
                pairs = [(s_, d) for s_ in range(8) for d in range(8) if s_ + d <= 7 and max(s_, d) == n]
                for (s_, d) in pairs:
                    a = 32 + 4 * (s_ + d)
                    A(f"v_mfma_f32_16x16x32_bf16 v[{a}:{a+3}], v[{96+64*b+4*s_}:{99+64*b+4*s_}], v[{64+64*b+4*d}:{67+64*b+4*d}], v[{a}:{a+3}]")
                    k = 3 if (pend and pend[0][1][1] == rho) else 1
                    for _ in range(k):
                        if pend and pend[0][1][1] <= rho + 1:
                            if len(lg.q) >= 14:
                                A("s_waitcnt lgkmcnt(8)"); lg.q = lg.q[-8:]
                            L(*pend.pop(0))
                    if not pend and not arrived:
                        self.soft_arrive(C_CVD, vCN, 21); arrived = True
        A.stamp('cv loop')
        A(f"s_lshl_b32 s32, {sQ}, 1")
        A(f"s_add_u32 s32, s32, {sCH}")
        A(f"s_lshl_b32 s32, s32, 13")
        A(f"s_lshl_b32 s30, {sHW}, 12")
        A(f"s_add_u32 s32, s32, s30")
        A(f"s_add_u32 s32, s32, {WS_YT}")
        self.soft_wait("l_cvd", C_CVD, 4, vCN, 21)
        for a in range(8): L(f"ds_write_b128 v{vPW}, v[{32+4*a}:{35+4*a}] offset:{1024*a}", 'w')
        self.soft_arrive(C_PART, vCN, 21)
        lg.need(('ud', 4, 0))
        for k in range(8):
            A(f"v_lshlrev_b32 v{200+2*k}, 16, v{192+k}")
            A(f"v_and_b32 v{201+2*k}, 0xffff0000, v{192+k}")
        self.soft_wait("l_part", C_PART, 4, vCN, 21)
        for p in range(4):
            for part in range(2):
                r = 64 + 8 * p + 4 * part
                L(f"ds_read_b128 v[{r}:{r+3}], v{vPR} offset:{1024*p + 16384*part}", ('pr', p))
        A("s_setprio 3")
        A(f"s_movk_i32 s31, 0xff")
        for e in range(4): A(f"v_lshrrev_b32_e64 v{24+e}, {8*e}, {sTAG}")
        for p in range(4):
            lg.need(('pr', p))
            r = 64 + 8 * p
            for e in range(4): A(f"v_add_f32 v{r+e}, v{r+e}, v{r+4+e}")
            for e in range(4): A(f"v_fmac_f32 v{r+e}, {sDSK}, v{200+4*p+e}")
            for e in range(4): A(f"v_bfi_b32 v{r+e}, s31, v{24+e}, v{r+e}")
            A(f"buffer_store_dwordx4 v[{r}:{r+3}], v20, {WS}, s32 offen offset:{1024*p} sc1")
        A.stamp('y stored')
```

```python
WS_UB = 0
UB_SIZE = 0x200000
WS_ST = 0x200000
WS_H = 0x400000
HK = 88
WS_YT = 0xA00000
WS_FL = 0xE00000
WS_EP = WS_FL
WS_FU = WS_FL + 0x8000
WS_FY = WS_FL + 0x10000
WS_FH = WS_FL + 0x20000
WS_STAMP = WS_FL + 0x80000
WS_SIZE = 0xF00000
TAG_INC = 0x9E3779B2
```

```python
import sys
from asmlib import Asm
import blocks_f as U
from layout import *
KN = "parallel_sum__ssm_conv_s4d__dense_activation_squared_relu__prompt_kernel"
HDR = open("parallel_sum__ssm_conv_s4d__dense_activation_squared_relu__prompt.s.ref").read().split("; Override launch")[0]
opt = dict(a.split('=', 1) for a in sys.argv[2:] if '=' in a)
A = Asm()
A.stamps = '-s' in sys.argv
if opt.get('st'): A.stamp_filter = opt['st']
if opt.get('spin'): U.SPIN = int(opt['spin'])
def cfg(o):
    for k, v in opt.items():
        if hasattr(type(o), k):
            d = getattr(type(o), k)
            setattr(o, k, v if isinstance(d, str) else ([int(x) for x in v.split(',')] if isinstance(d, list) else int(v)))
    return o
A(f".globl {KN}\n.p2align 8\n.type {KN},@function")
A.label(KN)
A("s_cmp_ge_u32 s2, 256")
A("s_cbranch_scc1 Lexit")
A("v_lshrrev_b32 v2, 6, v0")
A("v_and_b32 v1, 63, v0")
A("v_readfirstlane_b32 s3, v2")
A("s_mov_b32 s4, s2")
A("s_and_b32 s5, s3, 3")
A("s_cmp_ge_u32 s3, 4")
A("s_cbranch_scc1 Lrole_d")
def role(cls, srd, k, prio):
    A.stamp_begin()
    if opt.get(prio): A(f"s_setprio {opt[prio]}")
    r = cfg(cls(A))
    r.run()
    A.stamp_end(srd, WS_STAMP + 0x20000 * k, 's2', 's5')
    A("s_endpgm")
    for st in r.stubs:
        for l_ in st: A(l_)
role(U.M, 's[20:23]', 0, 'mprio')
A.label("Lrole_d")
role(U.Lr, 's[44:47]', 1, 'lprio')
A.label("Lexit")
A("s_endpgm")
n = A.fix_hazards(verbose='-v' in sys.argv)
print("hazard pads:", n)
out = HDR
out += f"; @launch grid=(256,1,1) block=(512,1,1) lds={U.LDS_TOTAL}\n"
out += '.amdgcn_target "amdgcn-amd-amdhsa--gfx950"\n.text\n' + A.text()
out += f'''.section .rodata,"a"
.p2align 6
.amdhsa_kernel {KN}
  .amdhsa_next_free_vgpr 256
  .amdhsa_next_free_sgpr {102 if A.stamps else 64}
  .amdhsa_accum_offset 256
  .amdhsa_group_segment_fixed_size 0
  .amdhsa_kernarg_size 120
  .amdhsa_user_sgpr_count 2
  .amdhsa_user_sgpr_kernarg_segment_ptr 1
  .amdhsa_system_sgpr_workgroup_id_x 1
.end_amdhsa_kernel
'''
open(sys.argv[1], "w").write(out)
```

```python
from layout import *
from asmlib import Queue

SPIN = 200000
W1_SIZE = 512 * 1376 * 2
OOB = 0x7ff00000
SLOT = 28672
XOFF = 12288
L_B = 3 * SLOT
KREV_SZ = 4576
TROW = 528
CPY = 4160
L_TAB = 0
L_U = L_B
L_PART = L_U
L_BX = L_U + 8 * CPY
L_MISC = L_BX + 32768
L_SB = L_MISC
L_CNT = L_MISC + 768
L_KREV = L_MISC + 1024
L_LN = L_KREV
LDS_TOTAL = 163840
def slot_of(s): return ((s + 1) % 3) * SLOT
NST = 11
W2AREA = {0: L_BX, 1: L_BX + 16384, 2: 65536, 3: 0, 4: 16384, 5: 32768, 6: 49152, 7: L_BX, 8: L_BX + 16384, 9: 65536, 10: 0}
HINC = [1]*8 + [248] + [2]*4 + [248, 4, 4, 248, 4, 4, 248, 8, 248, 8, 248, 8, 248, 8] + [8]*4
C_LN, C_EX, C_BUILT, C_CVD, C_PART, C_Y, C_TABW, C_TABF, C_U, C_FIN, C_TAG = range(0, 44, 4)
C_FULL, C_FREE = 64, 80
sID, sW, sTAG, sQ = 's4', 's5', 's6', 's7'
sRB, sCB, sRB2, sDB, sM2 = 's34', 's35', 's48', 's49', 's52'
vLANE = 'v1'

class Role:
    def __init__(self, A):
        self.A = A
        self.vm = Queue(A, 'vmcnt', 63); self.lg = Queue(A, 'lgkmcnt', 15)
        self.stubs = []
    def emit(self, op):
        lines, q, tag = op
        for l in lines: self.A(l)
        if q is not None: q.push(tag)
    def V(self, line, tag): self.A(line); self.vm.push(tag)
    def L(self, line, tag): self.A(line); self.lg.push(tag)
    def soft_arrive(self, off, vc, vt):
        A = self.A
        A(f"v_mov_b32 v{vt}, 1")
        A(f"s_mov_b64 exec, 1")
        self.L(f"ds_add_u32 v{vc}, v{vt} offset:{off}", 'sa')
        A(f"s_mov_b64 exec, -1")
    def soft_wait(self, name, off, target, vc, vt, slp=0):
        A = self.A
        A(f"s_mov_b32 s42, {SPIN*8}")
        A.label(f"L{name}")
        A(f"ds_read_b32 v{vt}, v{vc} offset:{off}")
        A(f"s_waitcnt lgkmcnt(0)")
        A(f"v_readfirstlane_b32 s3, v{vt}")
        A(f"s_sub_u32 s42, s42, 1")
        A(f"s_cbranch_scc1 L{name}_ok")
        A(f"s_cmp_ge_u32 s3, {target}")
        A(f"s_cbranch_scc1 L{name}_ok")
        if slp: A(f"s_sleep {slp}")
        A(f"s_branch L{name}")
        A.label(f"L{name}_ok")
        self.lg.q = []
    def post_word(self, vaddr, off, val, vt):
        A = self.A
        A(f"v_mov_b32 v{vt}, {val}")
        A(f"s_mov_b64 exec, 1")
        self.L(f"ds_write_b32 v{vaddr}, v{vt} offset:{off}", 'sa')
        A(f"s_mov_b64 exec, -1")
    def ids(self):
        A = self.A
        A(f"s_and_b32 s3, {sID}, 7")
        A(f"s_lshr_b32 {sQ}, {sID}, 3")
        A(f"s_lshl_b32 s43, s3, 5")
        A(f"s_add_u32 {sQ}, {sQ}, s43")
        A(f"s_bfe_u32 s34, {sID}, 0x10003")
        A(f"s_lshl_b32 s43, s3, 1")
        A(f"s_add_u32 s34, s34, s43")
        A(f"s_lshr_b32 s35, {sID}, 4")
        A(f"s_bfe_u32 s48, {sID}, 0x20003")
        A(f"s_lshl_b32 s43, s3, 2")
        A(f"s_add_u32 s48, s48, s43")
        A(f"s_lshr_b32 s49, {sID}, 5")
        A(f"s_lshl_b32 s52, {sW}, 12")

    def w2_src(self, vD, t0, t1, t2):
        A = self.A
        A(f"v_lshrrev_b32 v{t0}, 3, {vLANE}")
        A(f"v_and_b32 v{t1}, 7, {vLANE}")
        A(f"v_bfe_u32 v{t2}, {vLANE}, 4, 1")
        A(f"v_lshlrev_b32 v{t2}, 2, v{t2}")
        A(f"v_xor_b32 v{t1}, v{t1}, v{t2}")
        A(f"v_lshlrev_b32 v{t1}, 4, v{t1}")
        A(f"v_lshl_add_u32 v{t1}, v{t0}, 10, v{t1}")
        A(f"s_lshl_b32 s3, s49, 7")
        A(f"v_add_u32 v{vD}, s3, v{t1}")
        for i in (1, 2, 3): A(f"v_add_u32 v{vD+i}, {7168*i}, v{vD}")
        A(f"s_mul_i32 s50, {sW}, {NST*32768}")
    def w2_ops(self, st, vD, W2):
        return [([f"s_add_u32 m0, s52, {W2AREA[st]}", f"s_add_u32 s53, s50, {st*32768}"][:2 if i == 0 else 0]
                 + [f"buffer_load_dwordx4 v{vD+i}, {W2}, s53 offen offset:{1024*i} lds"], self.vm, ('w2', st)) for i in range(4)]

class M(Role):
    y_at = 8
    y_per = 4
    h_sleep = 2
    HD = 6
    h_first = 0
    w_pre = 1
    h_delay = 0
    x_at = 21
    def run(self):
        A = self.A; vm = self.vm; lg = self.lg; E = self.emit; V = self.V; L = self.L
        X, W2, WS, OUT, B1 = 's[8:11]', 's[16:19]', 's[20:23]', 's[24:27]', 's[28:31]'
        pB2 = 's[32:33]'
        sc = 'sc1'
        vXA, vWA, vONE, vSA, vB1, vACC, vWB, vXB = 12, 16, 20, 24, 28, 32, 80, 104
        vX, vS2, vOF = 192, 204, 208
        vST, vEX, vFU = 112, 116, 132
        vRA, vMS, vCN, vTM, vDS = 240, 246, 250, 251, 252
        A(f"s_load_dwordx2 s[8:9], s[0:1], 0")
        A(f"s_load_dwordx2 s[20:21], s[0:1], 112")
        A(f"s_load_dwordx2 s[28:29], s[0:1], 72")
        A(f"s_load_dwordx2 s[32:33], s[0:1], 88")
        A(f"s_load_dwordx2 s[16:17], s[0:1], 80")
        A(f"s_load_dwordx2 s[24:25], s[0:1], 96")
        self.ids()
        for base, size in ((8, 0x200000), (20, WS_SIZE), (16, W1_SIZE), (24, 0x200000), (28, 2752)):
            A(f"s_mov_b32 s{base+2}, {size}")
            A(f"s_mov_b32 s{base+3}, 0x20000")
        A(f"s_lshl_b32 s3, {sQ}, 13")
        A(f"s_lshl_b32 s43, {sW}, 11")
        A(f"s_add_u32 s3, s3, s43")
        vLO, vLW, vLR, vL3 = 136, 137, 138, 139
        R = 140; F = 32; T = 48
        A(f"v_lshl_add_u32 v{vLO}, {vLANE}, 4, s3")
        A(f"v_mov_b32 v{vST+3}, {WS_EP}")
        A(f"v_mov_b32 v{vCN}, {L_CNT}")
        A(f"v_mov_b32 v2, 0")
        A(f"v_lshl_add_u32 v3, {vLANE}, 2, v{vCN}")
        A(f"ds_write_b32 v3, v2")
        A(f"s_waitcnt lgkmcnt(0)")
        V(f"buffer_load_dwordx4 v[{R}:{R+3}], v{vLO}, {X}, 0 offen", 'lnx')
        V(f"buffer_load_dwordx4 v[{R+4}:{R+7}], v{vLO}, {X}, 0 offen offset:1024", 'lnx')
        V(f"buffer_load_dword v{vST+3}, v{vST+3}, {WS}, 0 offen sc1", 'ep')
        A(f"s_barrier")
        A(f"s_cmp_eq_u32 {sW}, 3")
        A(f"s_cselect_b32 s44, 0, {sW}")
        A(f"s_add_u32 s45, s44, 1")
        A(f"s_cmp_eq_u32 s45, 3")
        A(f"s_cselect_b32 s45, 0, s45")
        A(f"s_add_u32 s46, s45, 1")
        A(f"s_cmp_eq_u32 s46, 3")
        A(f"s_cselect_b32 s46, 0, s46")
        A(f"v_lshrrev_b32 v30, 4, {vLANE}")
        A(f"v_and_b32 v19, 31, {vLANE}")
        A(f"v_bfe_u32 v31, {vLANE}, 1, 3")
        A(f"v_lshrrev_b32 v11, 5, {vLANE}")
        A(f"v_xor_b32 v31, v31, v11")
        A(f"v_lshlrev_b32 v31, 4, v31")
        A(f"v_lshl_add_u32 v31, v19, 7, v31")
        A(f"s_add_u32 s3, {sM2}, {XOFF}")
        A(f"v_add_u32 v{vXA}, s3, v31")
        for k in (1, 2, 3): A(f"v_xor_b32 v{vXA+k}, {32*k}, v{vXA}")
        A(f"v_bfe_u32 v3, {vLANE}, 2, 2")
        A(f"v_lshl_add_u32 v2, v11, 3, v3")
        A(f"v_mul_u32_u24 v2, 192, v2")
        A(f"v_and_b32 v31, 1, v30")
        A(f"v_lshl_add_u32 v2, v31, 5, v2")
        A(f"v_and_b32 v29, 3, {vLANE}")
        A(f"v_lshl_add_u32 v2, v29, 3, v2")
        for i in range(3): A(f"v_lshl_add_u32 v{vWA+i}, s{44+i}, 6, v2")
        for i in range(3): A(f"v_add_u32 v{4+i}, {2*SLOT}, v{vWA+i}")
        A(f"v_lshl_add_u32 v2, v11, 2, v3")
        A(f"v_lshlrev_b32 v2, 7, v2")
        A(f"v_xor_b32 v31, {sW}, v31")
        A(f"v_and_b32 v8, 2, v3")
        A(f"v_xor_b32 v31, v31, v8")
        A(f"v_lshl_add_u32 v2, v31, 5, v2")
        A(f"v_lshl_add_u32 v2, v29, 3, v2")
        A(f"v_add_u32 v{vRA}, {sM2}, v2")
        A(f"v_xor_b32 v{vRA+1}, 64, v{vRA}")
        A(f"v_add_u32 v{vRA+2}, 65536, v{vRA}")
        A(f"v_add_u32 v{vRA+3}, 65536, v{vRA+1}")
        A(f"v_add_u32 v{vRA+4}, {L_BX}, v{vRA}")
        A(f"v_add_u32 v{vRA+5}, {L_BX}, v{vRA+1}")
        LNROW = 1088; STS = 8 * LNROW
        A(f"v_mul_u32_u24 v{vLR}, {LNROW}, v3")
        A(f"v_xor_b32 v3, v3, v30")
        A(f"v_and_b32 v3, 1, v3")
        A(f"v_cmp_eq_u32 vcc, 0, v3")
        A(f"v_mov_b32 v31, 0x3f803f80")
        A(f"s_mul_i32 s3, {sW}, {2*LNROW}")
        A(f"s_add_u32 s3, s3, {L_LN}")
        A(f"v_lshl_add_u32 v{vLW}, {vLANE}, 4, s3")
        for i in range(4): A(f"v_cndmask_b32 v{vONE+i}, 0, v31, vcc")
        A(f"v_lshl_add_u32 v{vLR}, v30, 5, v{vLR}")
        A(f"v_lshl_add_u32 v{vLR}, v29, 3, v{vLR}")
        A(f"s_lshl_b32 s3, {sW}, 8")
        A(f"s_add_u32 s3, s3, {L_LN}")
        A(f"v_add_u32 v{vLR}, s3, v{vLR}")
        self.w2_src(vDS, 2, 3, 8)
        A(f"v_mov_b32 v{T+12}, 0x3b000000")
        vm.need(['lnx', 'ep'])
        A.stamp('ln loaded')
        A(f"v_readfirstlane_b32 {sTAG}, v{vST+3}")
        for r in range(2):
            for i in range(4):
                A(f"v_lshlrev_b32 v{F+8*r+2*i}, 16, v{R+4*r+i}")
                A(f"v_and_b32 v{F+8*r+2*i+1}, 0xffff0000, v{R+4*r+i}")
        A(f"s_or_b32 {sTAG}, {sTAG}, 1")
        A(f"s_add_u32 {sTAG}, {sTAG}, {TAG_INC:#x}")
        for r in range(2):
            b = F + 8 * r
            A(f"v_pk_add_f32 v[{T+4*r}:{T+4*r+1}], v[{b}:{b+1}], v[{b+2}:{b+3}]")
            A(f"v_pk_mul_f32 v[{T+4*r+2}:{T+4*r+3}], v[{b}:{b+1}], v[{b}:{b+1}]")
        for i in (1, 2, 3):
            for r in range(2):
                b = F + 8 * r + 2 * i
                if i >= 2: A(f"v_pk_add_f32 v[{T+4*r}:{T+4*r+1}], v[{T+4*r}:{T+4*r+1}], v[{b}:{b+1}]")
                A(f"v_pk_fma_f32 v[{T+4*r+2}:{T+4*r+3}], v[{b}:{b+1}], v[{b}:{b+1}], v[{T+4*r+2}:{T+4*r+3}]")
        for k in range(4): A(f"v_add_f32 v{T+8+k}, v{T+2*k}, v{T+2*k+1}")
        for ctl in ("row_shr:1 row_mask:0xf bank_mask:0xf bound_ctrl:0", "row_shr:2 row_mask:0xf bank_mask:0xf bound_ctrl:0",
                    "row_shr:4 row_mask:0xf bank_mask:0xf bound_ctrl:0", "row_shr:8 row_mask:0xf bank_mask:0xf bound_ctrl:0",
                    "row_bcast:15 row_mask:0xa bank_mask:0xf", "row_bcast:31 row_mask:0xc bank_mask:0xf"):
            for k in range(4): A(f"v_add_f32_dpp v{T+8+k}, v{T+8+k}, v{T+8+k} {ctl}")
        for k in range(4): A(f"v_readlane_b32 s{56+k}, v{T+8+k}, 63")
        Mn, Vv, P = T, T + 2, T + 4
        for r in range(2):
            A(f"v_mul_f32 v{Mn+r}, s{56+2*r}, v{T+12}")
            A(f"v_mul_f32 v{Vv+r}, s{57+2*r}, v{T+12}")
        for r in range(2): A(f"v_fma_f32 v{Vv+r}, -v{Mn+r}, v{Mn+r}, v{Vv+r}")
        for r in range(2): A(f"v_max_f32 v{Vv+r}, 0, v{Vv+r}")
        for r in range(2): A(f"v_cvt_pk_bf16_f32 v{P+r}, v{Mn+r}, v{Vv+r}")
        for r in range(2): A(f"v_and_b32 v{Vv+r}, 0xffff0000, v{P+r}")
        for r in range(2): A(f"v_add_f32 v{Vv+r}, 0x3727c5ac, v{Vv+r}")
        A(f"v_cvt_pk_bf16_f32 v{P+2}, v{Vv}, v{Vv+1}")
        A(f"v_lshlrev_b32 v{Vv}, 16, v{P+2}")
        A(f"v_and_b32 v{Vv+1}, 0xffff0000, v{P+2}")
        for r in range(2): A(f"v_sqrt_f32 v{Vv+r}, v{Vv+r}")
        for r in range(2): A(f"v_lshlrev_b32 v{Mn+r}, 16, v{P+r}")
        Gq = 148
        for r in range(2):
            A(f"v_cvt_pk_bf16_f32 v{Gq+2*r}, v{Mn+r}, v{Vv+r}")
            A(f"v_mov_b32 v{Gq+2*r+1}, {sTAG}")
        for r in range(2): A(f"v_and_b32 v{Vv+r}, 0xffff0000, v{Gq+2*r}")
        RS = T + 14
        for r in range(2): A(f"v_rcp_f32 v{RS+2*r}, v{Vv+r}")
        A(f"s_lshl_b32 s3, {sW}, 4")
        A(f"s_add_u32 s3, s3, {L_LN}")
        A(f"v_mov_b32 v{vL3}, s3")
        A(f"s_mov_b64 exec, 1")
        L(f"ds_write_b128 v{vL3}, v[{Gq}:{Gq+3}] offset:{STS}", 'lnw')
        L(f"ds_write_b32 v{vCN}, v{Gq+1} offset:{C_TAG}", 'lnw')
        A(f"s_mov_b64 exec, -1")
        for r in range(2): A(f"v_mul_f32_e64 v{RS+2*r+1}, -v{Mn+r}, v{RS+2*r}")
        for r in range(2):
            for i in range(4):
                b = F + 8 * r + 2 * i
                A(f"v_pk_fma_f32 v[{b}:{b+1}], v[{b}:{b+1}], v[{RS+2*r}:{RS+2*r+1}], v[{RS+2*r}:{RS+2*r+1}] op_sel:[0,0,1] op_sel_hi:[1,0,1]")
            for i in range(4):
                b = F + 8 * r + 2 * i
                A(f"v_cvt_pk_bf16_f32 v{R+4*r+i}, v{b}, v{b+1}")
            L(f"ds_write_b128 v{vLW}, v[{R+4*r}:{R+4*r+3}] offset:{LNROW*r}", 'lnw')
        self.soft_arrive(C_LN, vCN, vTM)
        A(f"v_lshlrev_b32 v7, 4, {vLANE}")
        A(f"v_add_u32 v{vLW}, {L_LN}, v7")
        A(f"s_lshl_b32 s55, {sQ}, 7")
        A(f"s_add_u32 s54, s55, {WS_ST}")
        A(f"s_lshl_b32 s55, {sQ}, 2")
        A(f"s_add_u32 s55, s55, {WS_FU}")
        self.soft_wait("m_ln", C_LN, 4, vCN, vTM)
        for i in range(2):
            L(f"ds_read_b64_tr_b16 v[{R+4*i}:{R+4*i+1}], v{vLR} offset:{128*i}", 'lnr')
            L(f"ds_read_b64_tr_b16 v[{R+4*i+2}:{R+4*i+3}], v{vLR} offset:{128*i+4*LNROW}", 'lnr')
        L(f"ds_read_b128 v[{Gq}:{Gq+3}], v{vLW} offset:{STS}", 'lnr')
        A(f"s_cmp_eq_u32 {sW}, 0")
        lg.need('lnr')
        A(f"s_cbranch_scc0 Lm_nost")
        A(f"s_mov_b64 exec, 15")
        A(f"buffer_store_dwordx4 v[{Gq}:{Gq+3}], v7, {WS}, s54 offen sc1")
        A(f"s_mov_b64 exec, -1")
        A.label("Lm_nost")
        V(f"buffer_store_dwordx4 v[{R}:{R+3}], v{vLO}, {WS}, 0 offen sc1", 'ust')
        V(f"buffer_store_dwordx4 v[{R+4}:{R+7}], v{vLO}, {WS}, 0 offen offset:1024 sc1", 'ust')
        A(f"v_lshlrev_b32 v29, 1, v19")
        A(f"s_mul_i32 s3, {sCB}, 192")
        A(f"s_lshl_b32 s43, s44, 6")
        A(f"s_add_u32 s3, s3, s43")
        V(f"buffer_load_ushort v{vB1}, v29, {B1}, s3 offen", 'b1')
        A.stamp('ln done')
        def rd_ops(i):
            s, ks = i >> 2, i & 3
            so = slot_of(s)
            xr = vXB + 4 * (i & 1)
            ops = [([f"ds_read_b128 v[{xr}:{xr+3}], v{vXA+ks} offset:{so}"], lg, ('f', i, 0))]
            base, off = (vWA, so) if so < 2 * SLOT else (4, 0)
            off += ks * 3072
            for t in range(3):
                r = vWB + 12 * (i & 1) + 4 * t
                ops.append(([f"ds_read_b64_tr_b16 v[{r}:{r+1}], v{base+t} offset:{off}"], lg, ('f', i, t)))
                ops.append(([f"ds_read_b64_tr_b16 v[{r+2}:{r+3}], v{base+t} offset:{off+768}"], lg, ('f', i, t)))
            return ops
        A(f"s_mov_b32 s41, {SPIN*8}")
        A(f"s_barrier")
        A.stamp('g1 st0')
        for o in rd_ops(0): E(o)
        A(f"v_and_b32 v{vST+2}, 24, v19")
        A(f"v_add_lshl_u32 v{vST+2}, v{vST+2}, v19, 3")
        A(f"s_lshl_b32 s3, {sRB}, 11")
        A(f"s_lshl_b32 s43, {sW}, 9")
        A(f"s_add_u32 s47, s3, s43")
        A(f"s_add_u32 s47, s47, {WS_ST}")
        for i in range(32):
            s, ks = i >> 2, i & 3
            nxt = rd_ops(i + 1) if i < 31 else []
            x = vXB + 4 * (i & 1)
            cuts = [(0, 3), (3, 5), (5, 7)]
            for t in range(3):
                lg.need(('f', i, t))
                r = vWB + 12 * (i & 1) + 4 * t
                a = vACC + 16 * t
                c = '0' if i == 0 else f"v[{a}:{a+15}]"
                A(f"v_mfma_f32_32x32x16_bf16 v[{a}:{a+15}], v[{r}:{r+3}], v[{x}:{x+3}], {c}")
                if t == 0 and ks == 3 and s < 7:
                    A.stamp(f'_A{s}')
                    if s == self.u_at: vm.need('ust')
                    lg.drain()
                    A(f"s_barrier")
                    A.stamp(f'_B{s}')
                    if s == self.u_at:
                        A(f"s_cmp_eq_u32 {sW}, 0")
                        A(f"s_cbranch_scc1 Lm_pu")
                        A.label("Lm_pu_ok")
                        self.stubs.append(["Lm_pu:", f"v_mov_b32 v2, {sTAG}", f"v_mov_b32 v3, 0", f"s_mov_b64 exec, 1", f"buffer_store_dword v2, v3, {WS}, s55 offen sc1",
                                           f"s_mov_b64 exec, -1", f"s_branch Lm_pu_ok"])
                for o in nxt[cuts[t][0]:cuts[t][1]]: E(o)
            r = vWB + 12 * (i & 1)
            c = '0' if i == 0 else f"v[{vSA}:{vSA+3}]"
            A(f"v_mfma_f32_16x16x32_bf16 v[{vSA}:{vSA+3}], v[{vONE}:{vONE+3}], v[{r}:{r+3}], {c}")
            if i == 17:
                V(f"buffer_load_dwordx2 v[{vST}:{vST+1}], v{vST+2}, {WS}, s47 offen {sc}", 'st')
            if i == 18:
                A(f"v_lshlrev_b32 v{vOF}, 10, v19")
                A(f"v_lshl_add_u32 v{vOF}, v11, 4, v{vOF}")
                A(f"s_lshl_b32 s3, {sRB2}, 16")
                A(f"s_lshl_b32 s43, {sDB}, 7")
                A(f"s_lshl_b32 s40, {sW}, 5")
                A(f"s_add_u32 s43, s43, s40")
                A(f"s_add_u32 s3, s3, s43")
                A(f"v_add_u32 v{vOF}, s3, v{vOF}")
                A(f"v_add_u32 v{vOF+1}, 32768, v{vOF}")
                A(f"v_lshl_add_u32 v2, v11, 3, s43")
                A(f"s_lshl_b32 s39, {sRB2}, 10")
                A(f"s_add_u32 s39, s39, {WS_ST}")
                V(f"global_load_dwordx2 v[{vX+8}:{vX+9}], v2, {pB2}", 'st')
                V(f"global_load_dwordx2 v[{vX+10}:{vX+11}], v2, {pB2} offset:16", 'st')
            if i == self.x_at:
                V(f"buffer_load_dwordx2 v[{vS2}:{vS2+1}], v{vST+2}, {WS}, s39 offen {sc}", 'st')
                V(f"buffer_load_dwordx2 v[{vS2+2}:{vS2+3}], v{vST+2}, {WS}, s39 offen offset:512 {sc}", 'st')
            if i == self.x_at + 1: V(f"buffer_load_dwordx4 v[{vX}:{vX+3}], v{vOF}, {X}, 0 offen", 'st')
            if i == self.x_at + 2: V(f"buffer_load_dwordx4 v[{vX+4}:{vX+7}], v{vOF+1}, {X}, 0 offen", 'st')
            if i == 24:
                A(f"v_and_b32 v2, 3, {vLANE}")
                A(f"v_lshlrev_b32 v2, 3, v2")
                A(f"v_lshrrev_b32_e64 v2, v2, {sTAG}")
                for j in range(4):
                    A(f"v_lshlrev_b32 v3, {15 - 2*j}, v2")
                    A(f"v_and_b32 v3, 0x8000, v3")
                    A(f"v_lshlrev_b32 v{vMS+j}, {30 - 2*j}, v2")
                    A(f"v_and_b32 v{vMS+j}, 0x80000000, v{vMS+j}")
                    A(f"v_or_b32 v{vMS+j}, v{vMS+j}, v3")
            if i == 25:
                A(f"s_lshl_b32 s3, {sRB}, 2")
                A(f"s_add_u32 s3, s3, {sW}")
                A(f"s_mul_i32 s3, s3, {HK}")
                A(f"s_lshl_b32 s3, s3, 10")
                A(f"s_add_u32 s3, s3, {WS_H}")
                A(f"s_mul_i32 s43, {sCB}, 3")
                A(f"v_lshlrev_b32 v2, 3, v19")
                A(f"v_add_u32 v2, {L_SB}, v2")
                for k in range(3): A(f"v_lshl_add_u32 v{8+k}, s{44+k}, 8, v2")
                for k in range(3):
                    A(f"s_add_u32 s{44+k}, s{44+k}, s43")
                    A(f"s_cmp_lt_u32 s{44+k}, 43")
                    A(f"s_cselect_b32 s54, s3, {OOB:#x}")
                    A(f"s_lshl_b32 s{44+k}, s{44+k}, 11")
                    A(f"s_add_u32 s{44+k}, s{44+k}, s54")
            if i == 26:
                for k in range(16): A(f"v_mov_b32 v{vEX+k}, 0")
            if i == 29:
                vm.need(['st', 'b1'])
                A.label("Lg1_st")
                A(f"v_cmp_ne_u32 vcc, {sTAG}, v{vST+1}")
                A(f"s_cbranch_vccnz Lg1_st_r")
                A.label("Lg1_st_ok")
                self.stubs.append(["Lg1_st_r:", f"s_sub_u32 s41, s41, 8", f"s_cbranch_scc1 Lg1_st_ok", f"s_sleep 4",
                                   f"buffer_load_dwordx2 v[{vST}:{vST+1}], v{vST+2}, {WS}, s47 offen {sc}", f"s_waitcnt vmcnt(0)", f"s_branch Lg1_st"])
                vBX = vEX + 12
                A(f"v_xor_b32 v{vBX+1}, 0x8000, v{vST}")
                A(f"v_alignbit_b32 v{vBX}, v{vBX+1}, v{vBX+1}, 16")
                A(f"v_and_b32 v{vBX+1}, 0xffff, v{vBX+1}")
        A.stamp('g1 loop end')
        vBX = vEX + 12
        A(f"v_cvt_pk_bf16_f32 v2, v{vSA}, v{vSA}")
        A(f"v_and_b32 v2, 0xffff0000, v2")
        A(f"v_sub_f32 v3, v{vSA}, v2")
        A(f"s_mov_b32 exec_hi, 0")
        A(f"v_cvt_pk_bf16_f32 v{vEX+1}, v3, v{vBX+2}")
        A(f"v_or_b32 v{vEX}, v2, v{vB1}")
        L(f"ds_write_b64 v8, v[{vEX}:{vEX+1}]", 'exw')
        A(f"s_mov_b32 exec_hi, -1")
        A(f"v_mfma_f32_32x32x16_bf16 v[{vACC}:{vACC+15}], v[{vEX}:{vEX+3}], v[{vBX}:{vBX+3}], v[{vACC}:{vACC+15}]")
        vH0, vH1, vA2, vHF, HD = 7, 6, 32, 96, self.HD
        lg.drain()
        A(f"s_barrier")
        A(f"s_mov_b32 exec_hi, 0")
        for k in (1, 2): L(f"ds_read_b64 v[{vEX+4*k}:{vEX+4*k+1}], v{8+k}", ('exr', k))
        A(f"s_mov_b32 exec_hi, -1")
        A(f"v_add_u32 v{vH1}, {HK*1024}, v{vH0}")
        A(f"v_mov_b32 v4, v{vOF}")
        A(f"v_mov_b32 v5, v{vOF+1}")
        def tile(k):
            a = vACC + 16 * k
            for half in range(2):
                for p in range(8 * half, 8 * half + 8): A(f"v_mul_f32_e64 v{a+p}, v{a+p}, |v{a+p}|")
                for p in range(4 * half, 4 * half + 4): A(f"v_cvt_pk_bf16_f32 v{a+p}, v{a+2*p}, v{a+2*p+1}")
                for p in range(4 * half, 4 * half + 4): A(f"v_pk_max_i16 v{a+p}, v{a+p}, 0")
                for p in range(4 * half, 4 * half + 4): A(f"v_or_b32 v{a+p}, v{a+p}, v{vMS + (p & 3)}")
                V(f"buffer_store_dwordx4 v[{a+4*half}:{a+4*half+3}], v7, {WS}, s{44+k} offen offset:{1024*half} {sc}", 'hst')
        for k in (1, 2):
            lg.need(('exr', k))
            a = vACC + 16 * k
            A(f"v_mfma_f32_32x32x16_bf16 v[{a}:{a+15}], v[{vEX+4*k}:{vEX+4*k+3}], v[{vBX}:{vBX+3}], v[{a}:{a+15}]")
        tile(0); tile(1); tile(2)
        A.stamp('g1 stored')
        W = lambda st: self.w2_ops(st, vDS, W2)
        for o in W(2): E(o)
        A(f"s_mul_i32 s51, {sRB2}, {2*HK*1024}")
        A(f"s_mul_i32 s3, {sW}, {NST*2048}")
        A(f"s_add_u32 s51, s51, s3")
        A(f"s_add_u32 s51, s51, {WS_H}")
        A(f"s_add_u32 s55, s51, {10*2048}")
        A(f"s_cmp_eq_u32 {sW}, 3")
        A(f"s_cselect_b32 s55, {OOB:#x}, s55")
        A(f"v_lshlrev_b32 v12, 2, v19")
        A(f"v_lshl_add_u32 v28, v11, 15, v12")
        A(f"v_and_b32 v13, 3, {vLANE}")
        A(f"v_lshlrev_b32 v13, 3, v13")
        A(f"v_lshrrev_b32_e64 v29, v13, {sTAG}")
        A.label("Lg2_st")
        A(f"v_xor_b32 v14, {sTAG}, v{vS2+1}")
        A(f"v_xor_b32 v30, {sTAG}, v{vS2+3}")
        A(f"v_or_b32 v14, v14, v30")
        A(f"v_cmp_ne_u32 vcc, 0, v14")
        A(f"s_cbranch_vccnz Lg2_st_r")
        A.label("Lg2_st_ok")
        self.stubs.append(["Lg2_st_r:", f"s_sub_u32 s41, s41, 8", f"s_cbranch_scc1 Lg2_st_ok", f"s_sleep 4",
                           f"buffer_load_dwordx2 v[{vS2}:{vS2+1}], v{vST+2}, {WS}, s39 offen {sc}", f"buffer_load_dwordx2 v[{vS2+2}:{vS2+3}], v{vST+2}, {WS}, s39 offen offset:512 {sc}",
                           f"s_waitcnt vmcnt(0)", f"s_branch Lg2_st"])
        def ldh_ops(p, kk):
            r = vHF + 16 * (p % HD) + 8 * kk
            so = 's55' if p == 10 else 's43'
            return [([f"s_add_u32 s43, s51, {p*2048}"][:(1 - tt) if p < 10 else 0] +
                     [f"buffer_load_dwordx4 v[{r+4*tt}:{r+4*tt+3}], v{[vH0, vH1][tt]}, {WS}, {so} offen offset:{1024*kk} {sc}"], vm, ('h', p, kk)) for tt in range(2)]
        for tt in range(2):
            b = vX + 4 * tt
            A(f"v_permlane32_swap_b32 v{b}, v{b+2}")
            A(f"v_permlane32_swap_b32 v{b+1}, v{b+3}")
        for tt in range(2):
            A(f"v_and_b32 v{8+tt}, 0xffff0000, v{vS2+2*tt}")
            A(f"v_mul_f32 v{8+tt}, v{8+tt}, v{8+tt}")
            A(f"v_rcp_f32 v{2+tt}, v{8+tt}")
        for j in range(4):
            A(f"v_lshlrev_b32 v{80+2*j}, 16, v{vX+8+j}")
            A(f"v_and_b32 v{81+2*j}, 0xffff0000, v{vX+8+j}")
        for tt in range(2):
            a = vA2 + 16 * tt
            for j in range(4):
                A(f"v_lshlrev_b32 v{a+2*j}, 16, v{vX+4*tt+j}")
                A(f"v_and_b32 v{a+2*j+1}, 0xffff0000, v{vX+4*tt+j}")
            for j in range(8): A(f"v_add_f32 v{a+j}, v{a+j}, v{80+j}")
            for j in range(8): A(f"v_mul_f32 v{a+j}, v{a+j}, v{8+tt}")
            for j in range(8, 16): A(f"v_mov_b32 v{a+j}, 0")
        A(f"s_lshl_b32 s3, {sDB}, 19")
        A(f"s_lshl_b32 s44, {sW}, 17")
        A(f"s_add_u32 s3, s3, s44")
        A(f"s_lshl_b32 s44, {sRB2}, 8")
        A(f"s_add_u32 s3, s3, s44")
        A(f"s_add_u32 s47, s3, {WS_YT}")
        A(f"s_mov_b32 s40, 0x80008000")
        if self.h_first: vm.need('hst')
        if self.h_delay: A(f"s_sleep {self.h_delay}")
        A.stamp('g2 acked')
        for p in range(self.h_first):
            for o in ldh_ops(p, 0) + ldh_ops(p, 1): E(o)
        self.soft_wait("m_kd", C_BUILT, 4, vCN, vTM, slp=1)
        A.stamp('g2 kd')
        wq = list(range(3, 7))
        for _ in range(self.w_pre):
            for o in W(wq.pop(0)): E(o)
        for p in range(self.h_first, HD):
            for o in (W(wq.pop(0)) if wq else []) + ldh_ops(p, 0) + ldh_ops(p, 1): E(o)
        A.stamp('g2 issued')
        vY = 224
        def ldy_ops():
            ops = []
            for q in range(2):
                for e in range(4):
                    for tt in range(2):
                        ops.append(([f"s_add_u32 s44, s47, {(8*q+e)*8192}"][:1 - tt] + [f"buffer_load_dword v{vY+8*tt+4*q+e}, v28, {WS}, s44 offen offset:{128*tt} {sc}"], vm, 'y'))
            return ops
        def treg(p, kk): return [16, 24 - 16][0] if False else [208, 216][(2 * p + kk) & 1]
        def rd2_ops(p, kk):
            ar = W2AREA[p]; ops = []; dst = treg(p, kk)
            a, off = (vRA, ar) if ar < 65536 else ((vRA + 2, ar - 65536) if ar < L_BX else (vRA + 4, ar - L_BX))
            off += kk * 2048
            for dt in range(2):
                r = dst + 4 * dt
                ops.append(([f"ds_read_b64_tr_b16 v[{r}:{r+1}], v{a+dt} offset:{off}"], lg, ('t', p, kk)))
                ops.append(([f"ds_read_b64_tr_b16 v[{r+2}:{r+3}], v{a+dt} offset:{off+1024}"], lg, ('t', p, kk)))
            return ops
        def check(p, kk):
            r = vHF + 16 * (p % HD) + 8 * kk
            vm.need(('h', p, kk))
            A.label(f"Lhc{p}_{kk}")
            for j in range(8): A(f"v_xor_b32 v{r+j}, v{r+j}, v{vMS + (j & 3)}")
            A(f"v_or3_b32 v15, v{r}, v{r+1}, v{r+2}")
            A(f"v_or3_b32 v14, v{r+3}, v{r+4}, v{r+5}")
            A(f"v_or3_b32 v15, v15, v{r+6}, v{r+7}")
            A(f"v_or_b32 v15, v15, v14")
            A(f"v_and_b32 v15, s40, v15")
            A(f"v_cmp_ne_u32 vcc, 0, v15")
            if p == 10:
                A(f"s_cmp_eq_u32 {sW}, 3")
                A(f"s_cbranch_scc1 Lhk{p}_{kk}")
            A(f"s_cbranch_vccnz Lhr{p}_{kk}")
            A.label(f"Lhk{p}_{kk}")
            self.stubs.append([f"Lhr{p}_{kk}:", f"s_sub_u32 s41, s41, 8", f"s_cbranch_scc1 Lhk{p}_{kk}", f"s_sleep {self.h_sleep}", f"s_add_u32 s3, s51, {p*2048}",
                          f"buffer_load_dwordx4 v[{r}:{r+3}], v{vH0}, {WS}, s3 offen offset:{1024*kk} {sc}",
                          f"buffer_load_dwordx4 v[{r+4}:{r+7}], v{vH1}, {WS}, s3 offen offset:{1024*kk} {sc}",
                          f"s_waitcnt vmcnt(0)", f"s_branch Lhc{p}_{kk}"])
        for o in rd2_ops(0, 0): E(o)
        check(0, 0)
        A.stamp('g2 st0')
        yq = ldy_ops()
        for p in range(NST):
            for kk in range(2):
                np_, nkk = (p, 1) if kk == 0 else (p + 1, 0)
                rds = rd2_ops(np_, nkk) if np_ < NST else []
                fill = []
                pp, pkk = (p, 0) if kk == 1 else (p - 1, 1)
                if wq: fill += W(wq.pop(0))
                if kk == 1 and p <= 3: wq.append(p + 7)
                if pp >= 0 and pp + HD < NST: fill += ldh_ops(pp + HD, pkk)
                if p >= self.y_at and yq:
                    fill += yq[:self.y_per]; yq = yq[self.y_per:]
                lg.need(('t', p, kk)); w0 = treg(p, kk)
                last = (p == NST - 1 and kk == 1)
                n = 0
                for dt in ((1, 0) if last else (0, 1)):
                    for tt in range(2):
                        a = vA2 + 32 * dt + 16 * tt
                        w = w0 + 4 * dt
                        h = vHF + 16 * (p % HD) + 8 * kk + 4 * tt
                        c = '0' if (p == 0 and kk == 0 and dt == 1) else f"v[{a}:{a+15}]"
                        A(f"v_mfma_f32_32x32x16_bf16 v[{a}:{a+15}], v[{w}:{w+3}], v[{h}:{h+3}], {c}")
                        n += 1
                        if n == 1:
                            if rds and nkk == 0: vm.need(('w2', np_))
                            for o in rds: E(o)
                        if n <= 3:
                            k = (len(fill) + (3 - n)) // (4 - n)
                            for o in fill[:k]: E(o)
                            fill = fill[k:]
                        elif np_ < NST:
                            check(np_, nkk)
        assert not yq
        A.stamp('g2 loop end')
        PA = {1: 16384, 2: 32768, 3: 49152}
        vP = vY
        A(f"v_add_u32 v12, {sM2}, v{vH0}")
        for i in (1, 2, 3):
            A(f"s_xor_b32 s3, {sW}, {i}")
            A(f"s_lshl_b32 s3, s3, 12")
            A(f"v_add_u32 v{20+i}, s3, v{vH0}")
        for i in (2, 3, 1):
            for tt in range(2):
                for qq in range(2):
                    a = vA2 + 32 * (i >> 1) + 16 * tt + 8 * (i & 1) + 4 * qq
                    L(f"ds_write_b128 v12, v[{a}:{a+3}] offset:{PA[i] + tt*2048 + qq*1024}", 'pw')
        vm.need('y')
        A.label("Lyc")
        for j in range(0, 16, 2):
            A(f"v_xor_b32 v14, v{vY+j}, v29")
            A(f"v_xor_b32 v15, v{vY+j+1}, v29")
            if j == 0: A(f"v_or_b32 v13, v14, v15")
            else: A(f"v_or3_b32 v13, v13, v14, v15")
        A(f"v_and_b32 v13, 0xff, v13")
        A(f"v_cmp_ne_u32 vcc, 0, v13")
        A(f"s_cbranch_vccnz Lyr")
        A.label("Lyk")
        st = ["Lyr:", f"s_sub_u32 s41, s41, 8", f"s_cbranch_scc1 Lyk", f"s_sleep 2"]
        for o in ldy_ops(): st += o[0]
        self.stubs.append(st + [f"s_waitcnt vmcnt(0)", f"s_branch Lyc"])
        A.stamp('g2 y ok')
        lg.drain()
        A(f"s_barrier")
        A.stamp('g2 bar')
        RR = {1: 96, 2: 112, 3: 128}
        for i in (1, 2, 3):
            for k in range(4):
                r = RR[i] + 4 * k
                L(f"ds_read_b128 v[{r}:{r+3}], v{20+i} offset:{PA[i] + k*1024}", ('pr', i))
        for i in (1, 2, 3):
            lg.need(('pr', i))
            for tt in range(2):
                for j in range(4):
                    a = vA2 + 16 * tt + 2 * j
                    r = RR[i] + 8 * tt + 2 * j
                    A(f"v_pk_add_f32 v[{a}:{a+1}], v[{a}:{a+1}], v[{r}:{r+1}]")
        for tt in range(2):
            for j in range(4):
                a = vA2 + 16 * tt + 2 * j
                A(f"v_pk_fma_f32 v[{a}:{a+1}], v[{a}:{a+1}], v[2:3], v[{vP+8*tt+2*j}:{vP+8*tt+2*j+1}] op_sel:[0,{tt},0] op_sel_hi:[1,{tt},1]")
            for j in range(4):
                a = vA2 + 16 * tt + 2 * j
                A(f"v_cvt_pk_bf16_f32 v{16+4*tt+j}, v{a}, v{a+1}")
            b = 16 + 4 * tt
            A(f"v_permlane32_swap_b32 v{b}, v{b+2}")
            A(f"v_permlane32_swap_b32 v{b+1}, v{b+3}")
            A(f"buffer_store_dwordx4 v[{b}:{b+3}], v{4+tt}, {OUT}, 0 offen")
    u_at = 1

class Lr(Role):
    rot = 'cx'
    touch = 1
    zdum = 1
    plan = [10, 8, 4, 4, 3, 3]
    kprio = 2
    l_n = 3
    kper = 4
    spread = 1
    poll_sleep = 8
    def run(self):
        A = self.A; vm = self.vm; lg = self.lg; E = self.emit; V = self.V; L = self.L
        pLA, pAI, pCR, pCI, pLDT, pDSK = 's[10:11]', 's[12:13]', 's[14:15]', 's[16:17]', 's[18:19]', 's[20:21]'
        X, W1, W2, WS, UBS = 's[24:27]', 's[56:59]', 's[60:63]', 's[44:47]', 's[8:11]'
        sLDT, sDSK, sCH, sHW = 's28', 's29', 's22', 's23'
        sKX, sKW, sMX, sMW, sPERM = 's38', 's39', 's40', 's41', 's54'
        vXS, vWS_, vDS = 228, 232, 236
        vKA, vKB, vKW, vKZ, vTW, vCT, vCH, vUA, vUB, vUL, vPW, vPR, vUD, vCN = range(240, 254)
        A(f"s_load_dwordx16 s[8:23], s[0:1], 0")
        A(f"s_load_dwordx2 s[56:57], s[0:1], 64")
        A(f"s_load_dwordx2 s[44:45], s[0:1], 112")
        A(f"s_load_dwordx2 s[60:61], s[0:1], 80")
        self.ids()
        for base, size in ((24, 0x200000), (56, W1_SIZE), (60, W1_SIZE), (44, WS_SIZE)):
            A(f"s_mov_b32 s{base+2}, {size}")
            A(f"s_mov_b32 s{base+3}, 0x20000")
        A(f"s_and_b32 s31, {sW}, 1")
        A(f"s_lshl_b32 s30, {sQ}, 1")
        A(f"s_add_u32 s3, s31, s30")
        A(f"s_lshl_b32 s3, s3, 8")
        A(f"v_lshl_add_u32 v16, {vLANE}, 2, s3")
        A(f"s_lshl_b32 s30, {sQ}, 2")
        if self.rot == 'cx': A(f"s_add_u32 s3, {sCB}, {sID}")
        elif self.rot == 'x': A(f"s_mov_b32 s3, {sID}")
        elif self.rot == 'c': A(f"s_mov_b32 s3, {sCB}")
        else: A(f"s_mov_b32 s3, 0")
        A(f"s_and_b32 s3, s3, 7")
        A(f"s_mul_i32 s3, s3, 0x11111111")
        A(f"s_add_u32 {sPERM}, s3, 0x76543210")
        A(f"s_mul_i32 s3, {sW}, {16*2752}")
        A(f"s_mul_i32 s43, {sCB}, 192")
        A(f"s_add_u32 s3, s3, s43")
        A(f"s_movk_i32 s43, {2752 - 192}")
        if self.zdum:
            A(f"s_mul_i32 s42, {sCB}, 12")
            A(f"s_sub_i32 s42, 172, s42")
            A(f"v_mov_b32 v29, {OOB:#x}")
        A(f"v_lshl_add_u32 v31, {vLANE}, 4, s3")
        for i in range(3):
            A(f"v_add_u32 v3, {64*i}, {vLANE}")
            A(f"v_mul_u32_u24 v3, 0x5556, v3")
            A(f"v_lshrrev_b32 v3, 18, v3")
            A(f"v_mad_u32_u24 v{vWS_+i}, v3, s43, v31")
            if self.zdum:
                A(f"v_mul_u32_u24 v3, 12, v3")
                A(f"v_sub_u32 v3, {vLANE}, v3")
                A(f"v_add_u32 v3, {64*i}, v3")
                A(f"v_cmp_le_i32 vcc, s42, v3")
                A(f"v_cndmask_b32 v{vWS_+i}, v{vWS_+i}, v29, vcc")
        A(f"v_lshrrev_b32 v3, 3, {vLANE}")
        A(f"v_lshrrev_b32 v30, 4, {vLANE}")
        A(f"v_and_b32 v31, 7, {vLANE}")
        A(f"v_xor_b32 v31, v31, v30")
        A(f"v_lshlrev_b32 v31, 4, v31")
        A(f"v_lshl_add_u32 v31, v3, 10, v31")
        A(f"s_lshl_b32 s3, {sRB}, 17")
        A(f"s_lshl_b32 s43, {sW}, 15")
        A(f"s_add_u32 s3, s3, s43")
        if self.zdum:
            A(f"s_cmp_eq_u32 {sCB}, 15")
            A(f"s_cselect_b32 s3, {OOB:#x}, s3")
        A(f"v_add_u32 v{vXS}, s3, v31")
        A(f"v_xor_b32 v{vXS+1}, 64, v{vXS}")
        A(f"v_add_u32 v{vXS+1}, {8192-1024}, v{vXS+1}")
        A(f"v_add_u32 v{vXS+2}, {2*(8192-1024)}, v{vXS}")
        A(f"v_add_u32 v{vXS+3}, {2*(8192-1024)}, v{vXS+1}")
        A(f"s_lshl_b32 {sMX}, {sW}, 12")
        A(f"s_add_u32 {sMX}, {sMX}, {XOFF}")
        A(f"s_mul_i32 {sMW}, {sW}, 3072")
        A(f"s_waitcnt lgkmcnt(0)")
        V(f"global_load_dword v4, v16, {pLA}", 'par')
        V(f"global_load_dword v5, v16, {pAI}", 'par')
        V(f"global_load_dword v6, v16, {pCR}", 'par')
        V(f"global_load_dword v7, v16, {pCI}", 'par')
        A(f"s_load_dword {sLDT}, {pLDT}, s30")
        A(f"s_load_dword {sDSK}, {pDSK}, s30")
        A(f"s_mov_b32 s24, s8")
        A(f"s_mov_b32 s25, s9")
        A(f"s_mov_b32 {sCH}, s31")
        A(f"s_lshr_b32 {sHW}, {sW}, 1")
        A(f"s_barrier")
        def st_ops(s):
            w = [([f"s_add_u32 m0, {sMW}, {slot_of(s)}", f"s_bfe_u32 s3, {sPERM}, {(4*s) | (3<<16):#x}", f"s_mul_i32 {sKW}, s3, {64*2752}", f"s_lshl_b32 {sKX}, s3, 7"][:4 if i == 0 else 0]
                  + [f"buffer_load_dwordx4 v{vWS_+i}, {W1}, {sKW} offen offset:{1024*i} lds"], vm, ('st', s)) for i in range(3)]
            x = [([f"s_add_u32 m0, {sMX}, {slot_of(s)}"][:1 if i == 0 else 0]
                  + [f"buffer_load_dwordx4 v{vXS+i}, {X}, {sKX} offen offset:{1024*i} lds"], vm, ('st', s)) for i in range(4)]
            return w + x
        for o in st_ops(0): E(o)
        def nibp(lst): return sum(lst[7 - p] << (4 * p) for p in range(8))
        N0 = nibp(list(range(8))); N1 = nibp([0,0,1,2,2,2,3,4]); N2 = nibp([0,0,0,1,1,1,2,2]); N4 = nibp([0,0,0,0,0,1,1,1])
        A(f"v_mov_b32 v{vCN}, {L_CNT}")
        A(f"v_and_b32 v20, 7, {vLANE}")
        A(f"v_lshlrev_b32 v20, 2, v20")
        A(f"v_bfe_u32 v21, {vLANE}, 3, 2")
        A(f"s_cmp_lt_u32 {sW}, 2")
        A(f"s_mov_b32 s51, {N4:#x}")
        A(f"s_cselect_b32 s32, {N0:#x}, s51")
        A(f"s_cselect_b32 s33, {N1:#x}, s51")
        A(f"s_cselect_b32 s55, {N2:#x}, s51")
        A(f"s_mov_b32 s51, {(26<<24)|(24<<16)|(22<<8)|20:#x}")
        A(f"s_cselect_b32 s51, {(17<<24)|(14<<16)|(9<<8)|0:#x}, s51")
        A(f"s_cselect_b32 s36, 0, 0xaaaaaaaa")
        A(f"s_mov_b32 s37, 0")
        A(f"v_cmp_eq_u32 vcc, 1, v21")
        A(f"v_mov_b32 v22, s55")
        A(f"v_mov_b32 v23, s33")
        A(f"v_cndmask_b32 v22, v22, v23, vcc")
        A(f"v_cmp_eq_u32 vcc, 0, v21")
        A(f"v_mov_b32 v23, s32")
        A(f"v_lshlrev_b32 v21, 3, v21")
        A(f"v_cndmask_b32 v22, v22, v23, vcc")
        A(f"v_bfe_u32 v22, v22, v20, 4")
        A(f"v_bfe_u32 v23, s51, v21, 8")
        A(f"v_add_u32 v22, v22, v23")
        A(f"v_lshrrev_b32 v23, 5, {vLANE}")
        A(f"s_mul_i32 s31, {sCH}, {60*TROW}")
        A(f"s_add_u32 s31, s31, {L_TAB}")
        A(f"v_lshl_add_u32 v24, v23, 4, s31")
        A(f"s_movk_i32 s30, {TROW}")
        A(f"v_mad_u32_u24 v{vKA}, v22, s30, v24")
        A(f"v_and_b32 v22, 31, {vLANE}")
        A(f"v_mad_u32_u24 v{vKB}, v22, s30, v24")
        A(f"s_mul_i32 s30, {sHW}, {28*TROW}")
        A(f"s_add_u32 s31, s31, s30")
        A(f"v_lshl_add_u32 v{vTW}, {vLANE}, 3, s31")
        A(f"s_mul_i32 s31, {sCH}, {KREV_SZ}")
        A(f"s_add_u32 s31, s31, {L_KREV}")
        A(f"v_lshl_add_u32 v{vKZ}, {vLANE}, 4, s31")
        A(f"s_lshl_b32 s30, {sHW}, 11")
        A(f"s_sub_u32 s32, s31, s30")
        A(f"s_add_u32 s32, s32, {4080 - 1536}")
        A(f"v_lshlrev_b32 v22, 4, v22")
        A(f"v_sub_u32 v22, s32, v22")
        A(f"v_lshl_add_u32 v{vKW}, v23, 3, v22")
        for o in st_ops(1)[:3]: E(o)
        A(f"v_and_b32 v20, 15, {vLANE}")
        A(f"s_lshl_b32 s32, {sHW}, 8")
        A(f"s_add_u32 s31, s31, s32")
        A(f"s_add_u32 s31, s31, 480")
        A(f"v_lshlrev_b32 v22, 5, v20")
        A(f"v_sub_u32 v22, s31, v22")
        A(f"v_lshl_add_u32 v{vCT}, v30, 4, v22")
        A(f"s_mul_i32 s31, {sCH}, {4*CPY}")
        A(f"s_add_u32 s31, s31, {L_U}")
        A(f"s_add_u32 s33, s31, s32")
        A(f"v_bfe_u32 v22, {vLANE}, 2, 2")
        A(f"v_and_b32 v24, 3, {vLANE}")
        A(f"v_mul_u32_u24 v25, {CPY}, v22")
        A(f"v_lshl_add_u32 v25, v30, 4, v25")
        A(f"v_lshl_add_u32 v25, v24, 3, v25")
        A(f"v_add_u32 v{vCH}, s33, v25")
        A(f"v_lshlrev_b32 v25, 2, v30")
        A(f"v_xor_b32 v25, v25, {vLANE}")
        A(f"s_lshl_b32 s3, {sW}, 13")
        A(f"s_add_u32 s3, s3, {L_PART}")
        A(f"v_lshl_add_u32 v{vPW}, v25, 4, s3")
        A(f"v_lshrrev_b32 v25, 2, {vLANE}")
        A(f"v_lshlrev_b32 v26, 2, v24")
        A(f"v_xor_b32 v25, v25, v26")
        A(f"v_lshlrev_b32 v25, 4, v25")
        A(f"v_lshl_add_u32 v25, v24, 8, v25")
        A(f"v_and_b32 v24, 1, {vLANE}")
        A(f"s_lshl_b32 s3, {sCH}, 13")
        A(f"s_lshl_b32 s30, {sHW}, 12")
        A(f"s_add_u32 s3, s3, s30")
        A(f"s_add_u32 s3, s3, {L_PART}")
        A(f"v_add_u32 v{vPR}, s3, v25")
        A(f"s_lshl_b32 s30, {sHW}, 11")
        A(f"s_add_u32 s31, s31, s30")
        A(f"v_lshl_add_u32 v{vUD}, {vLANE}, 3, s31")
        A(f"v_lshrrev_b32 v25, 1, {vLANE}")
        A(f"s_lshl_b32 s3, {sW}, 6")
        A(f"v_add_u32 v25, s3, v25")
        A(f"s_lshl_b32 s3, {sQ}, 5")
        A(f"s_sub_u32 s3, s3, 16384")
        A(f"v_lshlrev_b32 v26, 13, v25")
        A(f"v_lshl_add_u32 v26, v24, 4, v26")
        A(f"v_add_u32 v{vUA}, s3, v26")
        A(f"v_add_u32 v{vUB}, 8192, v{vUA}")
        A(f"v_mul_u32_u24 v26, {4*CPY}, v24")
        A(f"v_lshl_add_u32 v26, v25, 4, v26")
        A(f"v_add_u32 v{vUL}, {L_U}, v26")
        self.w2_src(vDS, 20, 21, 22)
        LOG2E = '0x3fb8aa3b'
        A(f"s_waitcnt lgkmcnt(0)")
        A(f"s_mov_b32 s8, s44")
        A(f"s_mov_b32 s9, s45")
        A(f"s_mov_b32 s10, {UB_SIZE}")
        A(f"s_mov_b32 s11, 0x20000")
        A(f"s_lshl_b32 s30, {sLDT}, 16")
        A(f"s_and_b32 s31, {sLDT}, 0xffff0000")
        A(f"s_cmp_eq_u32 {sCH}, 0")
        A(f"s_cselect_b32 {sLDT}, s30, s31")
        A(f"s_lshl_b32 s30, {sDSK}, 16")
        A(f"s_and_b32 s31, {sDSK}, 0xffff0000")
        A(f"s_cmp_eq_u32 {sCH}, 0")
        A(f"s_cselect_b32 {sDSK}, s30, s31")
        A(f"v_mov_b32 v16, {LOG2E}")
        A(f"v_mul_f32 v17, {sLDT}, v16")
        A(f"v_exp_f32 v17, v17")
        A(f"s_cmp_lt_u32 {sW}, 2")
        A(f"s_cselect_b32 s32, 1.0, 0x41000000")
        A(f"s_cselect_b32 s33, 0x43780000, s32")
        A(f"s_cselect_b32 s55, 0xbe22f983, 0.15915494")
        A(f"v_cvt_pk_bf16_f32 v17, v17, v17")
        A(f"v_lshlrev_b32 v17, 16, v17")
        vm.need('par')
        A.stamp('par loaded')
        A(f"v_lshlrev_b32 v20, 16, v4")
        A(f"v_and_b32 v21, 0xffff0000, v4")
        A(f"v_mul_f32 v20, v20, v16")
        A(f"v_mul_f32 v21, v21, v16")
        A(f"v_exp_f32 v20, v20")
        A(f"v_exp_f32 v21, v21")
        A(f"v_lshlrev_b32 v22, 16, v5")
        A(f"v_and_b32 v23, 0xffff0000, v5")
        A(f"v_cvt_pk_bf16_f32 v18, v20, v21")
        A(f"v_mul_f32 v22, v22, v17")
        A(f"v_mul_f32 v23, v23, v17")
        A(f"v_lshlrev_b32 v20, 16, v18")
        A(f"v_and_b32 v21, 0xffff0000, v18")
        A(f"v_mul_f32 v22, s55, v22")
        A(f"v_mul_f32 v23, s55, v23")
        A(f"v_mul_f32 v20, v20, v17")
        A(f"v_mul_f32 v21, v21, v17")
        A(f"v_mul_f32_e64 v20, -v20, v16")
        A(f"v_mul_f32_e64 v21, -v21, v16")
        MR = {1: 24, 248: 28, 2: 32, 4: 36, 8: 40}
        for (inc, sreg, tb) in ((1, 's32', 56), (248, 's33', 60)):
            for i in range(2):
                A(f"v_mul_f32 v{tb+i}, {sreg}, v{20+i}")
                A(f"v_mul_f32 v{tb+2+i}, {sreg}, v{22+i}")
        for tb in (56, 60):
            for i in range(2):
                A(f"v_exp_f32 v{tb+i}, v{tb+i}")
                A(f"v_fract_f32 v{tb+2+i}, v{tb+2+i}")
        for (inc, tb) in ((1, 56), (248, 60)):
            for i in range(2):
                m = MR[inc] + 2 * i
                A(f"v_cos_f32 v{m}, v{tb+2+i}")
                A(f"v_sin_f32 v{m+1}, v{tb+2+i}")
        for (inc, tb) in ((1, 56), (248, 60)):
            for i in range(2):
                m = MR[inc] + 2 * i
                A(f"v_mul_f32 v{m}, v{m}, v{tb+i}")
                A(f"v_mul_f32 v{m+1}, v{m+1}, v{tb+i}")
        def cmul2(dst, a, m):
            l1 = []; l2 = []
            for i in range(2):
                d, x, y = dst + 2 * i, a + 2 * i, m + 2 * i
                l1.append(f"v_mul_f32_e64 v{d}, -v{x+1}, v{y+1}")
                l1.append(f"v_mul_f32 v{d+1}, v{x}, v{y+1}")
                l2.append(f"v_fmac_f32 v{d}, v{x}, v{y}")
                l2.append(f"v_fmac_f32 v{d+1}, v{x+1}, v{y}")
            return l1, l2
        A(f"s_cbranch_scc1 Lkg_h")
        for r in range(32, 44): A(f"v_mov_b32 v{r}, v{24 + (r & 3)}")
        A(f"v_mov_b32 v48, 1.0")
        A(f"v_mov_b32 v49, 0")
        A(f"v_mov_b32 v50, 1.0")
        A(f"v_mov_b32 v51, 0")
        A(f"s_branch Lkg_go")
        A.label("Lkg_h")
        A(f"v_add_f32 v17, v17, v17")
        A(f"v_lshlrev_b32 v48, 16, v6")
        A(f"v_lshlrev_b32 v49, 16, v7")
        A(f"v_and_b32 v50, 0xffff0000, v6")
        A(f"v_and_b32 v51, 0xffff0000, v7")
        for (d, s_) in ((2, 1), (4, 2), (8, 4)):
            l1, l2 = cmul2(MR[d], MR[s_], MR[s_])
            for x in l1 + l2: A(x)
        A(f"v_mul_f32 v48, v48, v17")
        A(f"v_mul_f32_e64 v49, -v49, v17")
        A(f"v_mul_f32 v50, v50, v17")
        A(f"v_mul_f32_e64 v51, -v51, v17")
        A.label("Lkg_go")
        dma = st_ops(1)[3:] + st_ops(2)
        if self.touch:
            dma.append(([f"s_mul_i32 s3, {sQ}, 5504", f"s_mul_i32 s30, {sW}, 1408", f"s_add_u32 s3, s3, s30", f"v_lshlrev_b32 v19, 7, {vLANE}", f"s_mov_b64 exec, 0x7ff",
                         f"buffer_load_dword v3, v19, {W2}, s3 offen", f"s_mov_b64 exec, -1"], vm, 'touch'))
        W = lambda st: self.w2_ops(st, vDS, W2)
        def W2h(st, h):
            o = W(st)
            return [(o[0][0][:2] + o[2*h][0][-1:], vm, ('w2', st)), o[2*h+1]]
        cur, nxt = 48, 52
        step = 0
        def chain_step(ndma):
            nonlocal cur, nxt, step
            pk = 64 + 2 * step
            if step < 31:
                l1, l2 = cmul2(nxt, cur, MR[HINC[step]])
                for x in l1: A(x)
            A(f"v_cvt_pk_bf16_f32 v{pk}, v{cur}, v{cur+1}")
            A(f"v_cvt_pk_bf16_f32 v{pk+1}, v{cur+2}, v{cur+3}")
            for _ in range(ndma):
                if dma: E(dma.pop(0))
            if step < 31:
                for x in l2: A(x)
            cur, nxt = nxt, cur
            step += 1
        extra = {b_: [] for b_ in range(-1, 5)}
        cert = {}
        for b, n in zip(range(-1, 5), self.plan):
            for k in range(n):
                if step < 32: chain_step(-(-len(dma) // (n - k)))
            while dma: E(dma.pop(0))
            A.stamp(f"_I{b}")
            vm.need([('st', b + 1)] + cert.get(b, []))
            A.stamp(f"_W{b}")
            A(f"s_barrier")
            if 0 <= b: dma.extend(st_ops(b + 3))
            dma.extend(extra[b])
        L(f"ds_read_b32 v60, v{vCN} offset:{C_TAG}", 'tag')
        A(f"v_lshlrev_b32 v20, 4, {vLANE}")
        A(f"s_mov_b32 s33, {WS_FU}")
        V(f"buffer_load_dwordx4 v[128:131], v20, {WS}, s33 offen sc1", 'pu')
        while dma: E(dma.pop(0))
        while step < 32: chain_step(0)
        A.stamp('kg chain')
        for r in range(24, 28): A(f"v_mov_b32 v{r}, 0")
        lg.drain()
        A(f"v_readfirstlane_b32 {sTAG}, v60")
        vm.need([('st', 6), 'pu'])
        A(f"s_barrier")
        def u_check():
            for k in range(4): A(f"v_xor_b32 v{132+k}, {sTAG}, v{128+k}")
            A(f"v_or3_b32 v132, v132, v133, v134")
            A(f"v_or_b32 v132, v132, v135")
            A(f"v_cmp_ne_u32 vcc, 0, v132")
        def u_loads(tg):
            A(f"s_mov_b32 s30, {32*8192}")
            A(f"v_add_u32 v22, s30, v{vUA}")
            A(f"v_add_u32 v23, s30, v{vUB}")
            A(f"s_cmp_lg_u32 {sW}, 3")
            A(f"s_cbranch_scc1 Lc_no3{tg}")
            A(f"s_mov_b64 exec, 15")
            A(f"buffer_load_dwordx4 v[144:147], v22, {UBS}, s30 offen sc1")
            A(f"buffer_load_dwordx2 v[148:149], v23, {UBS}, s30 offen sc1")
            A(f"s_mov_b64 exec, 1")
            A(f"s_cmp_lg_u32 {sID}, 0")
            A(f"s_cbranch_scc1 Lc_no3{tg}")
            A(f"v_mov_b32 v28, {sTAG}")
            A(f"v_mov_b32 v29, {WS_EP}")
            A(f"buffer_store_dword v28, v29, {WS}, 0 offen sc1")
            A.label(f"Lc_no3{tg}")
            A(f"s_mov_b32 exec_lo, 0xc000c000")
            A(f"s_mov_b32 exec_hi, 0xc000c000")
            A(f"buffer_load_dwordx2 v[132:133], v{vUB}, {UBS}, 0 offen sc1")
            A(f"buffer_load_dwordx2 v[140:141], v23, {UBS}, 0 offen sc1")
            A(f"s_mov_b64 exec, -1")
            A(f"buffer_load_dwordx4 v[128:131], v{vUA}, {UBS}, 0 offen sc1")
            A(f"buffer_load_dwordx4 v[136:139], v22, {UBS}, 0 offen sc1")
        for o in W(0): E(o)
        vm.need(('st', 7))
        A(f"s_barrier")
        for o in W(1): E(o)
        u_check()
        A(f"s_mov_b32 s39, 1")
        A(f"s_cbranch_vccnz Lc_skipu")
        A(f"s_mov_b32 s39, 0")
        u_loads('a')
        A(f"s_waitcnt vmcnt(4)")
        A(f"s_branch Lc_exb")
        A.label("Lc_skipu")
        A(f"s_waitcnt vmcnt(0)")
        A.label("Lc_exb")
        vm.q = []
        A.stamp('u ok')
        A(f"s_barrier")
        A.stamp('ex ok')
        if self.kprio: A(f"s_setprio {self.kprio}")
        for st_ in range(28): A(f"ds_write_b64 v{vTW}, v[{64+2*st_}:{65+2*st_}] offset:{st_*TROW}")
        A(f"s_cmp_lt_u32 {sW}, 2")
        A(f"s_cbranch_scc1 Lc_h28")
        for st_ in range(28, 32): A(f"ds_write_b64 v{vTW}, v[{64+2*st_}:{65+2*st_}] offset:{st_*TROW}")
        A.label("Lc_h28")
        self.soft_arrive(C_TABW, vCN, 21)
        def build(tg):
            A(f"s_waitcnt vmcnt(0)")
            for i in range(3):
                w = 128 + 8 * i; t = 152 + 12 * i
                if i == 2:
                    A(f"s_cmp_lg_u32 {sW}, 3")
                    A(f"s_cbranch_scc1 Lc_nob{tg}")
                    A(f"s_mov_b64 exec, 15")
                else:
                    A(f"v_mov_b32_dpp v{w+4}, v{w} row_shl:2 row_mask:0xf bank_mask:0xf")
                    A(f"v_mov_b32_dpp v{w+5}, v{w+1} row_shl:2 row_mask:0xf bank_mask:0xf")
                for j in range(4): A(f"v_alignbyte_b32 v{t+j}, v{w+j+1}, v{w+j}, 2")
                off = 512 * i
                A(f"ds_write_b128 v{vUL}, v[{w+2}:{w+5}] offset:{off + 3*CPY}")
                for j in range(4): A(f"v_mov_b32 v{t+4+j}, v{w+j+1}")
                A(f"ds_write_b128 v{vUL}, v[{t}:{t+3}] offset:{off}")
                for j in range(4): A(f"v_alignbyte_b32 v{t+8+j}, v{w+j+2}, v{w+j+1}, 2")
                A(f"ds_write_b128 v{vUL}, v[{t+4}:{t+7}] offset:{off + CPY}")
                A(f"ds_write_b128 v{vUL}, v[{t+8}:{t+11}] offset:{off + 2*CPY}")
            A(f"s_mov_b64 exec, -1")
            A.label(f"Lc_nob{tg}")
            self.soft_arrive(C_U, vCN, 21)
        A(f"s_cmp_lg_u32 s39, 0")
        A(f"s_cbranch_scc1 Lc_nobuild")
        A.label("Lc_build")
        build('')
        A(f"s_cmp_lg_u32 s39, 0")
        A(f"s_cbranch_scc1 Lc_built")
        A.label("Lc_nobuild")
        self.soft_wait("l_tabw", C_TABW, 4, vCN, 21)
        def rdk(k):
            r = 64 + 8 * (k % 8)
            L(f"ds_read_b128 v[{r}:{r+3}], v{vKA} offset:{32*k}", ('k', k))
            L(f"ds_read_b128 v[{r+4}:{r+7}], v{vKB} offset:{28*TROW + 32*k}", ('k', k))
        for k in range(7): rdk(k)
        for k in range(16):
            lg.need(('k', k))
            r = 64 + 8 * (k % 8)
            c = '0' if k == 0 else 'v[32:47]'
            A(f"v_mfma_f32_32x32x16_bf16 v[32:47], v[{r}:{r+3}], v[{r+4}:{r+7}], {c}")
            if k + 7 < 16: rdk(k + 7)
            if k == 10:
                A(f"s_mov_b64 exec, 0x3fffffff")
                L(f"ds_write_b128 v{vKZ}, v[24:27] offset:4096", 'w')
                A(f"s_mov_b64 exec, -1")
        for q in range(4): A(f"v_cndmask_b32 v{32+4*q+3}, v{32+4*q+3}, v{32+4*q+2}, s[36:37]")
        for q in range(4):
            A(f"v_cvt_pk_bf16_f32 v{48+2*q}, v{32+4*q}, v{33+4*q}")
            A(f"v_cvt_pk_bf16_f32 v{49+2*q}, v{34+4*q}, v{35+4*q}")
            L(f"ds_write_b64 v{vKW}, v[{48+2*q}:{49+2*q}] offset:{512*(3-q)}", 'w')
        self.soft_arrive(C_BUILT, vCN, 21)
        self.soft_arrive(C_U, vCN, 21)
        A.stamp('kg done')
        A(f"s_cmp_eq_u32 s39, 0")
        A(f"s_cbranch_scc1 Lc_built")
        A(f"s_mov_b32 s31, {SPIN}")
        A.label("Lc_poll")
        A(f"s_mov_b64 exec, vcc")
        A(f"buffer_load_dwordx4 v[128:131], v20, {WS}, s33 offen sc1")
        A(f"s_mov_b64 exec, -1")
        A(f"s_waitcnt vmcnt(0)")
        u_check()
        A(f"s_sub_u32 s31, s31, 1")
        A(f"s_cbranch_scc1 Lc_poll_ok")
        A(f"s_cbranch_vccz Lc_poll_ok")
        A(f"s_sleep {self.poll_sleep}")
        A(f"s_branch Lc_poll")
        A.label("Lc_poll_ok")
        u_loads('b')
        A(f"s_branch Lc_build")
        A.label("Lc_built")
        A(f"s_waitcnt lgkmcnt(0)")
        for r in range(32, 64): A(f"v_mov_b32 v{r}, 0")
        self.soft_wait("l_built", C_U, 8, vCN, 21)
        A.stamp('cv built')
        def frag_ops(b, rho, i):
            T = 64 + 64 * b + 4 * i; H = 96 + 64 * b + 4 * i
            return [(f"ds_read_b128 v[{T}:{T+3}], v{vCT} offset:{512*(7-i) + 64*rho}", ('f', rho, i)),
                    (f"ds_read_b64_tr_b16 v[{H}:{H+1}], v{vCH} offset:{512*i + 64*rho}", ('f', rho, i)),
                    (f"ds_read_b64_tr_b16 v[{H+2}:{H+3}], v{vCH} offset:{512*i + 8 + 64*rho}", ('f', rho, i))]
        pend = [o for rho in range(4) for i in range(8) for o in frag_ops(rho & 1, rho, i)]
        for p in range(4):
            pend.append((f"ds_read_b64 v[{192+2*p}:{193+2*p}], v{vUD} offset:{3*CPY + 24 + 512*p}", ('ud', 4, 0)))
        for o in pend[:12]: L(*o)
        pend = pend[12:]
        arrived = False
        for rho in range(4):
            b = rho & 1
            for n in range(8):
                lg.need(('f', rho, n))
                pairs = [(s_, d) for s_ in range(8) for d in range(8) if s_ + d <= 7 and max(s_, d) == n]
                for (s_, d) in pairs:
                    a = 32 + 4 * (s_ + d)
                    A(f"v_mfma_f32_16x16x32_bf16 v[{a}:{a+3}], v[{96+64*b+4*s_}:{99+64*b+4*s_}], v[{64+64*b+4*d}:{67+64*b+4*d}], v[{a}:{a+3}]")
                    k = 3 if (pend and pend[0][1][1] == rho) else 1
                    for _ in range(k):
                        if pend and pend[0][1][1] <= rho + 1:
                            if len(lg.q) >= 14:
                                A("s_waitcnt lgkmcnt(8)"); lg.q = lg.q[-8:]
                            L(*pend.pop(0))
                    if not pend and not arrived:
                        self.soft_arrive(C_CVD, vCN, 21); arrived = True
        A.stamp('cv loop')
        A(f"s_lshl_b32 s32, {sQ}, 1")
        A(f"s_add_u32 s32, s32, {sCH}")
        A(f"s_lshl_b32 s32, s32, 13")
        A(f"s_lshl_b32 s30, {sHW}, 12")
        A(f"s_add_u32 s32, s32, s30")
        A(f"s_add_u32 s32, s32, {WS_YT}")
        self.soft_wait("l_cvd", C_CVD, 4, vCN, 21)
        for a in range(8): L(f"ds_write_b128 v{vPW}, v[{32+4*a}:{35+4*a}] offset:{1024*a}", 'w')
        self.soft_arrive(C_PART, vCN, 21)
        lg.need(('ud', 4, 0))
        for k in range(8):
            A(f"v_lshlrev_b32 v{200+2*k}, 16, v{192+k}")
            A(f"v_and_b32 v{201+2*k}, 0xffff0000, v{192+k}")
        self.soft_wait("l_part", C_PART, 4, vCN, 21)
        for p in range(4):
            for part in range(2):
                r = 64 + 8 * p + 4 * part
                L(f"ds_read_b128 v[{r}:{r+3}], v{vPR} offset:{1024*p + 16384*part}", ('pr', p))
        A("s_setprio 3")
        A(f"s_movk_i32 s31, 0xff")
        for e in range(4): A(f"v_lshrrev_b32_e64 v{24+e}, {8*e}, {sTAG}")
        for p in range(4):
            lg.need(('pr', p))
            r = 64 + 8 * p
            for e in range(4): A(f"v_add_f32 v{r+e}, v{r+e}, v{r+4+e}")
            for e in range(4): A(f"v_fmac_f32 v{r+e}, {sDSK}, v{200+4*p+e}")
            for e in range(4): A(f"v_bfi_b32 v{r+e}, s31, v{24+e}, v{r+e}")
            A(f"buffer_store_dwordx4 v[{r}:{r+3}], v20, {WS}, s32 offen offset:{1024*p} sc1")
        A.stamp('y stored')
```

```python
import sys
from asmlib import Asm
import blocks_f as U
from layout import *
KN = "parallel_sum__ssm_conv_s4d__dense_activation_squared_relu__prompt_kernel"
HDR = open("parallel_sum__ssm_conv_s4d__dense_activation_squared_relu__prompt.s.ref").read().split("; Override launch")[0]
opt = dict(a.split('=', 1) for a in sys.argv[2:] if '=' in a)
A = Asm()
A.stamps = '-s' in sys.argv
if opt.get('st'): A.stamp_filter = opt['st']
if opt.get('spin'): U.SPIN = int(opt['spin'])
def cfg(o):
    for k, v in opt.items():
        if hasattr(type(o), k):
            d = getattr(type(o), k)
            setattr(o, k, v if isinstance(d, str) else ([int(x) for x in v.split(',')] if isinstance(d, list) else int(v)))
    return o
A(f".globl {KN}\n.p2align 8\n.type {KN},@function")
A.label(KN)
A("s_cmp_ge_u32 s2, 256")
A("s_cbranch_scc1 Lexit")
A("v_lshrrev_b32 v2, 6, v0")
A("v_and_b32 v1, 63, v0")
A("v_readfirstlane_b32 s3, v2")
A("s_mov_b32 s4, s2")
A("s_and_b32 s5, s3, 3")
lfirst = int(opt.get('lfirst', 0))
A("s_cmp_ge_u32 s3, 4")
A("s_cbranch_scc0 Lrole_m" if lfirst else "s_cbranch_scc1 Lrole_d")
def role(cls, srd, k, prio):
    A.stamp_begin()
    if opt.get(prio): A(f"s_setprio {opt[prio]}")
    r = cfg(cls(A))
    r.run()
    A.stamp_end(srd, WS_STAMP + 0x20000 * k, 's2', 's5')
    A("s_endpgm")
    for st in r.stubs:
        for l_ in st: A(l_)
if not lfirst: role(U.M, 's[20:23]', 0, 'mprio')
A.label("Lrole_d")
if opt.get('cpf'):
    per = int(opt['cpf'])
    A("s_cmp_lg_u32 s5, 0")
    A("s_cbranch_scc1 Lnocpf")
    A("s_getpc_b64 s[8:9]")
    A.label("Lpc")
    A(f"s_sub_u32 s8, s8, Lpc-{KN}")
    A("s_subb_u32 s9, s9, 0")
    A("s_lshr_b32 s10, s2, 3")
    A(f"s_mul_i32 s10, s10, {per}")
    if per > 6: A(f"s_and_b32 s10, s10, 255")
    A("v_add_u32 v3, s10, v1")
    A(f"v_min_u32 v3, (Lexit-{KN})/128, v3")
    A("v_lshlrev_b32 v3, 7, v3")
    A("v_mov_b32 v5, s9")
    A("v_add_co_u32 v4, vcc, s8, v3")
    A("v_addc_co_u32 v5, vcc, 0, v5, vcc")
    A(f"s_mov_b64 exec, {(1 << per) - 1:#x}")
    A("global_load_dword v2, v[4:5], off")
    A("s_mov_b64 exec, -1")
    A.label("Lnocpf")
role(U.Lr, 's[44:47]', 1, 'lprio')
if lfirst:
    A(".p2align 6")
    A.label("Lrole_m")
    role(U.M, 's[20:23]', 0, 'mprio')
A.label("Lexit")
A("s_endpgm")
n = A.fix_hazards(verbose='-v' in sys.argv)
print("hazard pads:", n)
out = HDR
out += f"; @launch grid=(256,1,1) block=(512,1,1) lds={U.LDS_TOTAL}\n"
out += '.amdgcn_target "amdgcn-amd-amdhsa--gfx950"\n.text\n' + A.text()
out += f'''.section .rodata,"a"
.p2align 6
.amdhsa_kernel {KN}
  .amdhsa_next_free_vgpr 256
  .amdhsa_next_free_sgpr {102 if A.stamps else 64}
  .amdhsa_accum_offset 256
  .amdhsa_group_segment_fixed_size 0
  .amdhsa_kernarg_size 120
  .amdhsa_user_sgpr_count 2
  .amdhsa_user_sgpr_kernarg_segment_ptr 1
  .amdhsa_system_sgpr_workgroup_id_x 1
.end_amdhsa_kernel
'''
open(sys.argv[1], "w").write(out)
```

```python
from layout import *
from asmlib import Queue

SPIN = 200000
W1_SIZE = 512 * 1376 * 2
OOB = 0x7ff00000
SLOT = 28672
XOFF = 12288
L_B = 3 * SLOT
KREV_SZ = 4576
TROW = 528
CPY = 4160
L_TAB = 0
L_U = L_B
L_PART = L_U
L_BX = L_U + 8 * CPY
L_MISC = L_BX + 32768
L_SB = L_MISC
L_CNT = L_MISC + 768
L_KREV = L_MISC + 1024
L_LN = L_KREV
LDS_TOTAL = 163840
def slot_of(s): return ((s + 1) % 3) * SLOT
NST = 11
W2AREA = {0: L_BX, 1: L_BX + 16384, 2: 65536, 3: 0, 4: 16384, 5: 32768, 6: 49152, 7: L_BX, 8: L_BX + 16384, 9: 65536, 10: 0}
HINC = [1]*8 + [248] + [2]*4 + [248, 4, 4, 248, 4, 4, 248, 8, 248, 8, 248, 8, 248, 8] + [8]*4
C_LN, C_EX, C_BUILT, C_CVD, C_PART, C_Y, C_TABW, C_TABF, C_U, C_FIN, C_TAG = range(0, 44, 4)
C_FULL, C_FREE = 64, 80
sID, sW, sTAG, sQ = 's4', 's5', 's6', 's7'
sRB, sCB, sRB2, sDB, sM2 = 's34', 's35', 's48', 's49', 's52'
vLANE = 'v1'

class Role:
    def __init__(self, A):
        self.A = A
        self.vm = Queue(A, 'vmcnt', 63); self.lg = Queue(A, 'lgkmcnt', 15)
        self.stubs = []
    def emit(self, op):
        lines, q, tag = op
        for l in lines: self.A(l)
        if q is not None: q.push(tag)
    def V(self, line, tag): self.A(line); self.vm.push(tag)
    def L(self, line, tag): self.A(line); self.lg.push(tag)
    def soft_arrive(self, off, vc, vt):
        A = self.A
        A(f"v_mov_b32 v{vt}, 1")
        A(f"s_mov_b64 exec, 1")
        self.L(f"ds_add_u32 v{vc}, v{vt} offset:{off}", 'sa')
        A(f"s_mov_b64 exec, -1")
    def soft_wait(self, name, off, target, vc, vt, slp=0):
        A = self.A
        A(f"s_mov_b32 s42, {SPIN*8}")
        A.label(f"L{name}")
        A(f"ds_read_b32 v{vt}, v{vc} offset:{off}")
        A(f"s_waitcnt lgkmcnt(0)")
        A(f"v_readfirstlane_b32 s3, v{vt}")
        A(f"s_sub_u32 s42, s42, 1")
        A(f"s_cbranch_scc1 L{name}_ok")
        A(f"s_cmp_ge_u32 s3, {target}")
        A(f"s_cbranch_scc1 L{name}_ok")
        if slp: A(f"s_sleep {slp}")
        A(f"s_branch L{name}")
        A.label(f"L{name}_ok")
        self.lg.q = []
    def post_word(self, vaddr, off, val, vt):
        A = self.A
        A(f"v_mov_b32 v{vt}, {val}")
        A(f"s_mov_b64 exec, 1")
        self.L(f"ds_write_b32 v{vaddr}, v{vt} offset:{off}", 'sa')
        A(f"s_mov_b64 exec, -1")
    def ids(self):
        A = self.A
        A(f"s_and_b32 s3, {sID}, 7")
        A(f"s_lshr_b32 {sQ}, {sID}, 3")
        A(f"s_lshl_b32 s43, s3, 5")
        A(f"s_add_u32 {sQ}, {sQ}, s43")
        A(f"s_bfe_u32 s34, {sID}, 0x10003")
        A(f"s_lshl_b32 s43, s3, 1")
        A(f"s_add_u32 s34, s34, s43")
        A(f"s_lshr_b32 s35, {sID}, 4")
        A(f"s_bfe_u32 s48, {sID}, 0x20003")
        A(f"s_lshl_b32 s43, s3, 2")
        A(f"s_add_u32 s48, s48, s43")
        A(f"s_lshr_b32 s49, {sID}, 5")
        A(f"s_lshl_b32 s52, {sW}, 12")

    def w2_src(self, vD, t0, t1, t2):
        A = self.A
        A(f"v_lshrrev_b32 v{t0}, 3, {vLANE}")
        A(f"v_and_b32 v{t1}, 7, {vLANE}")
        A(f"v_bfe_u32 v{t2}, {vLANE}, 4, 1")
        A(f"v_lshlrev_b32 v{t2}, 2, v{t2}")
        A(f"v_xor_b32 v{t1}, v{t1}, v{t2}")
        A(f"v_lshlrev_b32 v{t1}, 4, v{t1}")
        A(f"v_lshl_add_u32 v{t1}, v{t0}, 10, v{t1}")
        A(f"s_lshl_b32 s3, s49, 7")
        A(f"v_add_u32 v{vD}, s3, v{t1}")
        for i in (1, 2, 3): A(f"v_add_u32 v{vD+i}, {7168*i}, v{vD}")
        A(f"s_mul_i32 s50, {sW}, {NST*32768}")
    def w2_ops(self, st, vD, W2):
        return [([f"s_add_u32 m0, s52, {W2AREA[st]}", f"s_add_u32 s53, s50, {st*32768}"][:2 if i == 0 else 0]
                 + [f"buffer_load_dwordx4 v{vD+i}, {W2}, s53 offen offset:{1024*i} lds"], self.vm, ('w2', st)) for i in range(4)]

class M(Role):
    y_at = 8
    y_per = 2
    h_sleep = 2
    HD = 4
    n_early = 3
    osc = 'nt'
    sent = 0
    early_gate = 1
    w_by_l = 0
    poll_at = 1
    wait_built = 1
    h_first = 0
    w_pre = 2
    h_delay = 0
    x_at = 21
    def run(self):
        A = self.A; vm = self.vm; lg = self.lg; E = self.emit; V = self.V; L = self.L
        X, W2, WS, OUT, B1 = 's[8:11]', 's[16:19]', 's[20:23]', 's[24:27]', 's[28:31]'
        pB2 = 's[32:33]'
        sc = 'sc1'
        vXA, vWA, vONE, vSA, vB1, vACC, vWB, vXB = 12, 16, 20, 24, 28, 32, 80, 104
        vX, vS2, vOF = 192, 204, 208
        vST, vEX, vFU = 112, 116, 132
        vRA, vMS, vCN, vTM, vDS = 240, 246, 250, 251, 252
        A(f"s_load_dwordx2 s[8:9], s[0:1], 0")
        A(f"s_load_dwordx2 s[20:21], s[0:1], 112")
        A(f"s_load_dwordx2 s[28:29], s[0:1], 72")
        A(f"s_load_dwordx2 s[32:33], s[0:1], 88")
        A(f"s_load_dwordx2 s[16:17], s[0:1], 80")
        A(f"s_load_dwordx2 s[24:25], s[0:1], 96")
        self.ids()
        for base, size in ((8, 0x200000), (20, WS_SIZE), (16, W1_SIZE), (24, 0x200000), (28, 2752)):
            A(f"s_mov_b32 s{base+2}, {size}")
            A(f"s_mov_b32 s{base+3}, 0x20000")
        A(f"s_lshl_b32 s3, {sQ}, 13")
        A(f"s_lshl_b32 s43, {sW}, 11")
        A(f"s_add_u32 s3, s3, s43")
        vLO, vLW, vLR, vL3 = 136, 137, 138, 139
        R = 140; F = 32; T = 48
        A(f"v_lshl_add_u32 v{vLO}, {vLANE}, 4, s3")
        A(f"v_mov_b32 v{vST+3}, {WS_EP}")
        A(f"v_mov_b32 v{vCN}, {L_CNT}")
        A(f"v_mov_b32 v2, 0")
        A(f"v_lshl_add_u32 v3, {vLANE}, 2, v{vCN}")
        A(f"ds_write_b32 v3, v2")
        A(f"s_waitcnt lgkmcnt(0)")
        V(f"buffer_load_dwordx4 v[{R}:{R+3}], v{vLO}, {X}, 0 offen", 'lnx')
        V(f"buffer_load_dwordx4 v[{R+4}:{R+7}], v{vLO}, {X}, 0 offen offset:1024", 'lnx')
        V(f"buffer_load_dword v{vST+3}, v{vST+3}, {WS}, 0 offen sc1", 'ep')
        A(f"s_barrier")
        A(f"s_cmp_eq_u32 {sW}, 3")
        A(f"s_cselect_b32 s44, 0, {sW}")
        A(f"s_add_u32 s45, s44, 1")
        A(f"s_cmp_eq_u32 s45, 3")
        A(f"s_cselect_b32 s45, 0, s45")
        A(f"s_add_u32 s46, s45, 1")
        A(f"s_cmp_eq_u32 s46, 3")
        A(f"s_cselect_b32 s46, 0, s46")
        A(f"v_lshrrev_b32 v30, 4, {vLANE}")
        A(f"v_and_b32 v19, 31, {vLANE}")
        A(f"v_bfe_u32 v31, {vLANE}, 1, 3")
        A(f"v_lshrrev_b32 v11, 5, {vLANE}")
        A(f"v_xor_b32 v31, v31, v11")
        A(f"v_lshlrev_b32 v31, 4, v31")
        A(f"v_lshl_add_u32 v31, v19, 7, v31")
        A(f"s_add_u32 s3, {sM2}, {XOFF}")
        A(f"v_add_u32 v{vXA}, s3, v31")
        for k in (1, 2, 3): A(f"v_xor_b32 v{vXA+k}, {32*k}, v{vXA}")
        A(f"v_bfe_u32 v3, {vLANE}, 2, 2")
        A(f"v_lshl_add_u32 v2, v11, 3, v3")
        A(f"v_mul_u32_u24 v2, 192, v2")
        A(f"v_and_b32 v31, 1, v30")
        A(f"v_lshl_add_u32 v2, v31, 5, v2")
        A(f"v_and_b32 v29, 3, {vLANE}")
        A(f"v_lshl_add_u32 v2, v29, 3, v2")
        for i in range(3): A(f"v_lshl_add_u32 v{vWA+i}, s{44+i}, 6, v2")
        for i in range(3): A(f"v_add_u32 v{4+i}, {2*SLOT}, v{vWA+i}")
        A(f"v_lshl_add_u32 v2, v11, 2, v3")
        A(f"v_lshlrev_b32 v2, 7, v2")
        A(f"v_xor_b32 v31, {sW}, v31")
        A(f"v_and_b32 v8, 2, v3")
        A(f"v_xor_b32 v31, v31, v8")
        A(f"v_lshl_add_u32 v2, v31, 5, v2")
        A(f"v_lshl_add_u32 v2, v29, 3, v2")
        A(f"v_add_u32 v{vRA}, {sM2}, v2")
        A(f"v_xor_b32 v{vRA+1}, 64, v{vRA}")
        A(f"v_add_u32 v{vRA+2}, 65536, v{vRA}")
        A(f"v_add_u32 v{vRA+3}, 65536, v{vRA+1}")
        A(f"v_add_u32 v{vRA+4}, {L_BX}, v{vRA}")
        A(f"v_add_u32 v{vRA+5}, {L_BX}, v{vRA+1}")
        LNROW = 1088; STS = 8 * LNROW
        A(f"v_mul_u32_u24 v{vLR}, {LNROW}, v3")
        A(f"v_xor_b32 v3, v3, v30")
        A(f"v_and_b32 v3, 1, v3")
        A(f"v_cmp_eq_u32 vcc, 0, v3")
        A(f"v_mov_b32 v31, 0x3f803f80")
        A(f"s_mul_i32 s3, {sW}, {2*LNROW}")
        A(f"s_add_u32 s3, s3, {L_LN}")
        A(f"v_lshl_add_u32 v{vLW}, {vLANE}, 4, s3")
        for i in range(4): A(f"v_cndmask_b32 v{vONE+i}, 0, v31, vcc")
        A(f"v_lshl_add_u32 v{vLR}, v30, 5, v{vLR}")
        A(f"v_lshl_add_u32 v{vLR}, v29, 3, v{vLR}")
        A(f"s_lshl_b32 s3, {sW}, 8")
        A(f"s_add_u32 s3, s3, {L_LN}")
        A(f"v_add_u32 v{vLR}, s3, v{vLR}")
        self.w2_src(vDS, 2, 3, 8)
        A(f"v_mov_b32 v{T+12}, 0x3b000000")
        vm.need(['lnx', 'ep'])
        A.stamp('ln loaded')
        A(f"v_readfirstlane_b32 {sTAG}, v{vST+3}")
        for r in range(2):
            for i in range(4):
                A(f"v_lshlrev_b32 v{F+8*r+2*i}, 16, v{R+4*r+i}")
                A(f"v_and_b32 v{F+8*r+2*i+1}, 0xffff0000, v{R+4*r+i}")
        A(f"s_or_b32 {sTAG}, {sTAG}, 1")
        A(f"s_add_u32 {sTAG}, {sTAG}, {TAG_INC:#x}")
        for r in range(2):
            b = F + 8 * r
            A(f"v_pk_add_f32 v[{T+4*r}:{T+4*r+1}], v[{b}:{b+1}], v[{b+2}:{b+3}]")
            A(f"v_pk_mul_f32 v[{T+4*r+2}:{T+4*r+3}], v[{b}:{b+1}], v[{b}:{b+1}]")
        for i in (1, 2, 3):
            for r in range(2):
                b = F + 8 * r + 2 * i
                if i >= 2: A(f"v_pk_add_f32 v[{T+4*r}:{T+4*r+1}], v[{T+4*r}:{T+4*r+1}], v[{b}:{b+1}]")
                A(f"v_pk_fma_f32 v[{T+4*r+2}:{T+4*r+3}], v[{b}:{b+1}], v[{b}:{b+1}], v[{T+4*r+2}:{T+4*r+3}]")
        for k in range(4): A(f"v_add_f32 v{T+8+k}, v{T+2*k}, v{T+2*k+1}")
        for ctl in ("row_shr:1 row_mask:0xf bank_mask:0xf bound_ctrl:0", "row_shr:2 row_mask:0xf bank_mask:0xf bound_ctrl:0",
                    "row_shr:4 row_mask:0xf bank_mask:0xf bound_ctrl:0", "row_shr:8 row_mask:0xf bank_mask:0xf bound_ctrl:0",
                    "row_bcast:15 row_mask:0xa bank_mask:0xf", "row_bcast:31 row_mask:0xc bank_mask:0xf"):
            for k in range(4): A(f"v_add_f32_dpp v{T+8+k}, v{T+8+k}, v{T+8+k} {ctl}")
        for k in range(4): A(f"v_readlane_b32 s{56+k}, v{T+8+k}, 63")
        Mn, Vv, P = T, T + 2, T + 4
        for r in range(2):
            A(f"v_mul_f32 v{Mn+r}, s{56+2*r}, v{T+12}")
            A(f"v_mul_f32 v{Vv+r}, s{57+2*r}, v{T+12}")
        for r in range(2): A(f"v_fma_f32 v{Vv+r}, -v{Mn+r}, v{Mn+r}, v{Vv+r}")
        for r in range(2): A(f"v_max_f32 v{Vv+r}, 0, v{Vv+r}")
        for r in range(2): A(f"v_cvt_pk_bf16_f32 v{P+r}, v{Mn+r}, v{Vv+r}")
        for r in range(2): A(f"v_and_b32 v{Vv+r}, 0xffff0000, v{P+r}")
        for r in range(2): A(f"v_add_f32 v{Vv+r}, 0x3727c5ac, v{Vv+r}")
        A(f"v_cvt_pk_bf16_f32 v{P+2}, v{Vv}, v{Vv+1}")
        A(f"v_lshlrev_b32 v{Vv}, 16, v{P+2}")
        A(f"v_and_b32 v{Vv+1}, 0xffff0000, v{P+2}")
        for r in range(2): A(f"v_sqrt_f32 v{Vv+r}, v{Vv+r}")
        for r in range(2): A(f"v_lshlrev_b32 v{Mn+r}, 16, v{P+r}")
        Gq = 148
        for r in range(2):
            A(f"v_cvt_pk_bf16_f32 v{Gq+2*r}, v{Mn+r}, v{Vv+r}")
            A(f"v_mov_b32 v{Gq+2*r+1}, {sTAG}")
        for r in range(2): A(f"v_and_b32 v{Vv+r}, 0xffff0000, v{Gq+2*r}")
        RS = T + 14
        for r in range(2): A(f"v_rcp_f32 v{RS+2*r}, v{Vv+r}")
        A(f"s_lshl_b32 s3, {sW}, 4")
        A(f"s_add_u32 s3, s3, {L_LN}")
        A(f"v_mov_b32 v{vL3}, s3")
        A(f"s_mov_b64 exec, 1")
        L(f"ds_write_b128 v{vL3}, v[{Gq}:{Gq+3}] offset:{STS}", 'lnw')
        L(f"ds_write_b32 v{vCN}, v{Gq+1} offset:{C_TAG}", 'lnw')
        A(f"s_mov_b64 exec, -1")
        for r in range(2): A(f"v_mul_f32_e64 v{RS+2*r+1}, -v{Mn+r}, v{RS+2*r}")
        for r in range(2):
            for i in range(4):
                b = F + 8 * r + 2 * i
                A(f"v_pk_fma_f32 v[{b}:{b+1}], v[{b}:{b+1}], v[{RS+2*r}:{RS+2*r+1}], v[{RS+2*r}:{RS+2*r+1}] op_sel:[0,0,1] op_sel_hi:[1,0,1]")
            for i in range(4):
                b = F + 8 * r + 2 * i
                A(f"v_cvt_pk_bf16_f32 v{R+4*r+i}, v{b}, v{b+1}")
            L(f"ds_write_b128 v{vLW}, v[{R+4*r}:{R+4*r+3}] offset:{LNROW*r}", 'lnw')
        self.soft_arrive(C_LN, vCN, vTM)
        A(f"v_lshlrev_b32 v7, 4, {vLANE}")
        A(f"v_add_u32 v{vLW}, {L_LN}, v7")
        A(f"s_lshl_b32 s55, {sQ}, 7")
        A(f"s_add_u32 s54, s55, {WS_ST}")
        A(f"s_lshl_b32 s55, {sQ}, 2")
        A(f"s_add_u32 s55, s55, {WS_FU}")
        self.soft_wait("m_ln", C_LN, 4, vCN, vTM)
        for i in range(2):
            L(f"ds_read_b64_tr_b16 v[{R+4*i}:{R+4*i+1}], v{vLR} offset:{128*i}", 'lnr')
            L(f"ds_read_b64_tr_b16 v[{R+4*i+2}:{R+4*i+3}], v{vLR} offset:{128*i+4*LNROW}", 'lnr')
        L(f"ds_read_b128 v[{Gq}:{Gq+3}], v{vLW} offset:{STS}", 'lnr')
        A(f"s_cmp_eq_u32 {sW}, 0")
        lg.need('lnr')
        A(f"s_cbranch_scc0 Lm_nost")
        A(f"s_mov_b64 exec, 15")
        A(f"buffer_store_dwordx4 v[{Gq}:{Gq+3}], v7, {WS}, s54 offen sc1")
        A(f"s_mov_b64 exec, -1")
        A.label("Lm_nost")
        V(f"buffer_store_dwordx4 v[{R}:{R+3}], v{vLO}, {WS}, 0 offen sc1", 'ust')
        V(f"buffer_store_dwordx4 v[{R+4}:{R+7}], v{vLO}, {WS}, 0 offen offset:1024 sc1", 'ust')
        A(f"v_lshlrev_b32 v29, 1, v19")
        A(f"s_mul_i32 s3, {sCB}, 192")
        A(f"s_lshl_b32 s43, s44, 6")
        A(f"s_add_u32 s3, s3, s43")
        V(f"buffer_load_ushort v{vB1}, v29, {B1}, s3 offen", 'b1')
        A.stamp('ln done')
        def rd_ops(i):
            s, ks = i >> 2, i & 3
            so = slot_of(s)
            xr = vXB + 4 * (i & 1)
            ops = [([f"ds_read_b128 v[{xr}:{xr+3}], v{vXA+ks} offset:{so}"], lg, ('f', i, 0))]
            base, off = (vWA, so) if so < 2 * SLOT else (4, 0)
            off += ks * 3072
            for t in range(3):
                r = vWB + 12 * (i & 1) + 4 * t
                ops.append(([f"ds_read_b64_tr_b16 v[{r}:{r+1}], v{base+t} offset:{off}"], lg, ('f', i, t)))
                ops.append(([f"ds_read_b64_tr_b16 v[{r+2}:{r+3}], v{base+t} offset:{off+768}"], lg, ('f', i, t)))
            return ops
        A(f"s_mov_b32 s41, {SPIN*8}")
        A(f"s_barrier")
        A.stamp('g1 st0')
        for o in rd_ops(0): E(o)
        A(f"v_and_b32 v{vST+2}, 24, v19")
        A(f"v_add_lshl_u32 v{vST+2}, v{vST+2}, v19, 3")
        A(f"s_lshl_b32 s3, {sRB}, 11")
        A(f"s_lshl_b32 s43, {sW}, 9")
        A(f"s_add_u32 s47, s3, s43")
        A(f"s_add_u32 s47, s47, {WS_ST}")
        for i in range(32):
            s, ks = i >> 2, i & 3
            nxt = rd_ops(i + 1) if i < 31 else []
            x = vXB + 4 * (i & 1)
            cuts = [(0, 3), (3, 5), (5, 7)]
            for t in range(3):
                lg.need(('f', i, t))
                r = vWB + 12 * (i & 1) + 4 * t
                a = vACC + 16 * t
                c = '0' if i == 0 else f"v[{a}:{a+15}]"
                A(f"v_mfma_f32_32x32x16_bf16 v[{a}:{a+15}], v[{r}:{r+3}], v[{x}:{x+3}], {c}")
                if t == 0 and ks == 3 and s < 7:
                    A.stamp(f'_A{s}')
                    if s == self.u_at: vm.need('ust')
                    lg.drain()
                    A(f"s_barrier")
                    A.stamp(f'_B{s}')
                    if s == self.u_at:
                        A(f"s_cmp_eq_u32 {sW}, 0")
                        A(f"s_cbranch_scc1 Lm_pu")
                        A.label("Lm_pu_ok")
                        self.stubs.append(["Lm_pu:", f"v_mov_b32 v2, {sTAG}", f"v_mov_b32 v3, 0", f"s_mov_b64 exec, 1", f"buffer_store_dword v2, v3, {WS}, s55 offen sc1",
                                           f"s_mov_b64 exec, -1", f"s_branch Lm_pu_ok"])
                for o in nxt[cuts[t][0]:cuts[t][1]]: E(o)
            r = vWB + 12 * (i & 1)
            c = '0' if i == 0 else f"v[{vSA}:{vSA+3}]"
            A(f"v_mfma_f32_16x16x32_bf16 v[{vSA}:{vSA+3}], v[{vONE}:{vONE+3}], v[{r}:{r+3}], {c}")
            if i == 17:
                V(f"buffer_load_dwordx2 v[{vST}:{vST+1}], v{vST+2}, {WS}, s47 offen {sc}", 'st')
            if i == 18:
                A(f"v_lshlrev_b32 v{vOF}, 10, v19")
                A(f"v_lshl_add_u32 v{vOF}, v11, 4, v{vOF}")
                A(f"s_lshl_b32 s3, {sRB2}, 16")
                A(f"s_lshl_b32 s43, {sDB}, 7")
                A(f"s_lshl_b32 s40, {sW}, 5")
                A(f"s_add_u32 s43, s43, s40")
                A(f"s_add_u32 s3, s3, s43")
                A(f"v_add_u32 v{vOF}, s3, v{vOF}")
                A(f"v_add_u32 v{vOF+1}, 32768, v{vOF}")
                A(f"v_lshl_add_u32 v2, v11, 3, s43")
                A(f"s_lshl_b32 s39, {sRB2}, 10")
                A(f"s_add_u32 s39, s39, {WS_ST}")
                V(f"global_load_dwordx2 v[{vX+8}:{vX+9}], v2, {pB2}", 'st')
                V(f"global_load_dwordx2 v[{vX+10}:{vX+11}], v2, {pB2} offset:16", 'st')
            if i == self.x_at:
                V(f"buffer_load_dwordx2 v[{vS2}:{vS2+1}], v{vST+2}, {WS}, s39 offen {sc}", 'st')
                V(f"buffer_load_dwordx2 v[{vS2+2}:{vS2+3}], v{vST+2}, {WS}, s39 offen offset:512 {sc}", 'st')
            if i == self.x_at + 1: V(f"buffer_load_dwordx4 v[{vX}:{vX+3}], v{vOF}, {X}, 0 offen", 'st')
            if i == self.x_at + 2: V(f"buffer_load_dwordx4 v[{vX+4}:{vX+7}], v{vOF+1}, {X}, 0 offen", 'st')
            if i == 24 and self.sent:
                A(f"v_and_b32 v2, 3, {vLANE}")
                A(f"v_lshlrev_b32 v2, 3, v2")
                A(f"v_lshrrev_b32_e64 v2, v2, {sTAG}")
                for j in range(4):
                    A(f"v_lshlrev_b32 v3, {15 - 2*j}, v2")
                    A(f"v_and_b32 v3, 0x8000, v3")
                    A(f"v_lshlrev_b32 v{vMS+j}, {30 - 2*j}, v2")
                    A(f"v_and_b32 v{vMS+j}, 0x80000000, v{vMS+j}")
                    A(f"v_or_b32 v{vMS+j}, v{vMS+j}, v3")
            if i == 24 and not self.sent:
                A(f"s_lshl_b32 s3, {sRB}, 1")
                A(f"s_lshr_b32 s43, {sW}, 1")
                A(f"s_add_u32 s3, s3, s43")
                A(f"s_lshl_b32 s3, s3, 5")
                A(f"s_lshl_b32 s43, {sCB}, 1")
                A(f"s_add_u32 s3, s3, s43")
                A(f"s_and_b32 s43, {sW}, 1")
                A(f"s_add_u32 s3, s3, s43")
                A(f"s_lshl_b32 s3, s3, 7")
                A(f"s_add_u32 s38, s3, {WS_FH}")
                def msk(w):
                    lo = (22 * w) // 6; hi = min((22 * w + 21) // 6, 14)
                    return sum(3 << (2 * c) for c in range(lo, hi + 1))
                A(f"s_mov_b32 s37, {msk(0):#x}")
                for w in (1, 2, 3):
                    A(f"s_cmp_eq_u32 {sW}, {w}")
                    A(f"s_cselect_b32 s37, {msk(w):#x}, s37")
                A(f"s_lshl_b32 s36, {sRB2}, 12")
                A(f"s_add_u32 s36, s36, {WS_FH}")
                A(f"v_lshlrev_b32 v{vMS}, 7, v19")
                A(f"v_mov_b32 v{vMS+1}, {sTAG}")
                A(f"v_mov_b32 v{vMS+2}, 0")
                A(f"v_lshl_add_u32 v{vMS+3}, {sW}, 2, v{vCN}")
            if i == 25:
                A(f"s_lshl_b32 s3, {sRB}, 2")
                A(f"s_add_u32 s3, s3, {sW}")
                A(f"s_mul_i32 s3, s3, {HK}")
                A(f"s_lshl_b32 s3, s3, 10")
                A(f"s_add_u32 s3, s3, {WS_H}")
                A(f"s_mul_i32 s43, {sCB}, 3")
                A(f"v_lshlrev_b32 v2, 3, v19")
                A(f"v_add_u32 v2, {L_SB}, v2")
                for k in range(3): A(f"v_lshl_add_u32 v{8+k}, s{44+k}, 8, v2")
                for k in range(3):
                    A(f"s_add_u32 s{44+k}, s{44+k}, s43")
                    A(f"s_cmp_lt_u32 s{44+k}, 43")
                    A(f"s_cselect_b32 s54, s3, {OOB:#x}")
                    A(f"s_lshl_b32 s{44+k}, s{44+k}, 11")
                    A(f"s_add_u32 s{44+k}, s{44+k}, s54")
            if i == 26:
                for k in range(16): A(f"v_mov_b32 v{vEX+k}, 0")
            if i == 29:
                vm.need(['st', 'b1'])
                A.label("Lg1_st")
                A(f"v_cmp_ne_u32 vcc, {sTAG}, v{vST+1}")
                A(f"s_cbranch_vccnz Lg1_st_r")
                A.label("Lg1_st_ok")
                self.stubs.append(["Lg1_st_r:", f"s_sub_u32 s41, s41, 8", f"s_cbranch_scc1 Lg1_st_ok", f"s_sleep 4",
                                   f"buffer_load_dwordx2 v[{vST}:{vST+1}], v{vST+2}, {WS}, s47 offen {sc}", f"s_waitcnt vmcnt(0)", f"s_branch Lg1_st"])
                vBX = vEX + 12
                A(f"v_xor_b32 v{vBX+1}, 0x8000, v{vST}")
                A(f"v_alignbit_b32 v{vBX}, v{vBX+1}, v{vBX+1}, 16")
                A(f"v_and_b32 v{vBX+1}, 0xffff, v{vBX+1}")
        A.stamp('g1 loop end')
        vBX = vEX + 12
        A(f"v_cvt_pk_bf16_f32 v2, v{vSA}, v{vSA}")
        A(f"v_and_b32 v2, 0xffff0000, v2")
        A(f"v_sub_f32 v3, v{vSA}, v2")
        A(f"s_mov_b32 exec_hi, 0")
        A(f"v_cvt_pk_bf16_f32 v{vEX+1}, v3, v{vBX+2}")
        A(f"v_or_b32 v{vEX}, v2, v{vB1}")
        L(f"ds_write_b64 v8, v[{vEX}:{vEX+1}]", 'exw')
        A(f"s_mov_b32 exec_hi, -1")
        A(f"v_mfma_f32_32x32x16_bf16 v[{vACC}:{vACC+15}], v[{vEX}:{vEX+3}], v[{vBX}:{vBX+3}], v[{vACC}:{vACC+15}]")
        vH0, vH1, vA2, vHF, HD = 7, 6, 32, 96, self.HD
        lg.drain()
        A(f"s_barrier")
        A(f"s_mov_b32 exec_hi, 0")
        for k in (1, 2): L(f"ds_read_b64 v[{vEX+4*k}:{vEX+4*k+1}], v{8+k}", ('exr', k))
        A(f"s_mov_b32 exec_hi, -1")
        A(f"v_add_u32 v{vH1}, {HK*1024}, v{vH0}")
        A(f"v_mov_b32 v4, v{vOF}")
        A(f"v_mov_b32 v5, v{vOF+1}")
        def tile(k):
            a = vACC + 16 * k
            for half in range(2):
                for p in range(8 * half, 8 * half + 8): A(f"v_mul_f32_e64 v{a+p}, v{a+p}, |v{a+p}|")
                for p in range(4 * half, 4 * half + 4): A(f"v_cvt_pk_bf16_f32 v{a+p}, v{a+2*p}, v{a+2*p+1}")
                for p in range(4 * half, 4 * half + 4): A(f"v_pk_max_i16 v{a+p}, v{a+p}, 0")
                if self.sent:
                    for p in range(4 * half, 4 * half + 4): A(f"v_or_b32 v{a+p}, v{a+p}, v{vMS + (p & 3)}")
                V(f"buffer_store_dwordx4 v[{a+4*half}:{a+4*half+3}], v7, {WS}, s{44+k} offen offset:{1024*half} {sc}", 'hst')
        for k in (1, 2):
            lg.need(('exr', k))
            a = vACC + 16 * k
            A(f"v_mfma_f32_32x32x16_bf16 v[{a}:{a+15}], v[{vEX+4*k}:{vEX+4*k+3}], v[{vBX}:{vBX+3}], v[{a}:{a+15}]")
        tile(0); tile(1); tile(2)
        A.stamp('g1 stored')
        W = lambda st: self.w2_ops(st, vDS, W2)
        for o in W(2): E(o)
        A(f"s_mul_i32 s51, {sRB2}, {2*HK*1024}")
        A(f"s_mul_i32 s3, {sW}, {NST*2048}")
        A(f"s_add_u32 s51, s51, s3")
        A(f"s_add_u32 s51, s51, {WS_H}")
        A(f"s_add_u32 s55, s51, {10*2048}")
        A(f"s_cmp_eq_u32 {sW}, 3")
        A(f"s_cselect_b32 s55, {OOB:#x}, s55")
        WREG = {0: 160, 1: 176, 2: 192}
        def rd2_ops(p, kk):
            ar = W2AREA[p]; ops = []; dst = (WREG[p] + 8 * kk) if p in WREG else treg(p, kk)
            a, off = (vRA, ar) if ar < 65536 else ((vRA + 2, ar - 65536) if ar < L_BX else (vRA + 4, ar - L_BX))
            off += kk * 2048
            for dt in range(2):
                r = dst + 4 * dt
                ops.append(([f"ds_read_b64_tr_b16 v[{r}:{r+1}], v{a+dt} offset:{off}"], lg, ('t', p, kk)))
                ops.append(([f"ds_read_b64_tr_b16 v[{r+2}:{r+3}], v{a+dt} offset:{off+1024}"], lg, ('t', p, kk)))
            return ops
        for o in rd2_ops(0, 0) + rd2_ops(0, 1): E(o)
        A(f"v_lshlrev_b32 v12, 3, v19")
        A(f"v_lshl_add_u32 v28, v11, 15, v12")
        A(f"v_and_b32 v13, 1, {vLANE}")
        A(f"v_lshlrev_b32 v13, 4, v13")
        A(f"v_lshrrev_b32_e64 v29, v13, {sTAG}")
        A(f"v_lshrrev_b32 v31, 8, v29")
        A.label("Lg2_st")
        A(f"v_xor_b32 v14, {sTAG}, v{vS2+1}")
        A(f"v_xor_b32 v30, {sTAG}, v{vS2+3}")
        A(f"v_or_b32 v14, v14, v30")
        A(f"v_cmp_ne_u32 vcc, 0, v14")
        A(f"s_cbranch_vccnz Lg2_st_r")
        A.label("Lg2_st_ok")
        self.stubs.append(["Lg2_st_r:", f"s_sub_u32 s41, s41, 8", f"s_cbranch_scc1 Lg2_st_ok", f"s_sleep 4",
                           f"buffer_load_dwordx2 v[{vS2}:{vS2+1}], v{vST+2}, {WS}, s39 offen {sc}", f"buffer_load_dwordx2 v[{vS2+2}:{vS2+3}], v{vST+2}, {WS}, s39 offen offset:512 {sc}",
                           f"s_waitcnt vmcnt(0)", f"s_branch Lg2_st"])
        def ldh_ops(p, kk):
            r = vHF + 16 * (p % HD) + 8 * kk
            so = 's55' if p == 10 else 's43'
            return [([f"s_add_u32 s43, s51, {p*2048}"][:(1 - tt) if p < 10 else 0] +
                     [f"buffer_load_dwordx4 v[{r+4*tt}:{r+4*tt+3}], v{[vH0, vH1][tt]}, {WS}, {so} offen offset:{1024*kk} {sc}"], vm, ('h', p, kk)) for tt in range(2)]
        for tt in range(2):
            b = vX + 4 * tt
            A(f"v_permlane32_swap_b32 v{b}, v{b+2}")
            A(f"v_permlane32_swap_b32 v{b+1}, v{b+3}")
        for tt in range(2):
            A(f"v_and_b32 v{8+tt}, 0xffff0000, v{vS2+2*tt}")
            A(f"v_mul_f32 v{8+tt}, v{8+tt}, v{8+tt}")
            A(f"v_rcp_f32 v{2+tt}, v{8+tt}")
        lg.drain()
        for o in rd2_ops(1, 0) + rd2_ops(1, 1): E(o)
        for j in range(4):
            A(f"v_lshlrev_b32 v{80+2*j}, 16, v{vX+8+j}")
            A(f"v_and_b32 v{81+2*j}, 0xffff0000, v{vX+8+j}")
        for tt in range(2):
            a = vA2 + 16 * tt
            for j in range(4):
                A(f"v_lshlrev_b32 v{a+2*j}, 16, v{vX+4*tt+j}")
                A(f"v_and_b32 v{a+2*j+1}, 0xffff0000, v{vX+4*tt+j}")
            for j in range(8): A(f"v_add_f32 v{a+j}, v{a+j}, v{80+j}")
            for j in range(8): A(f"v_mul_f32 v{a+j}, v{a+j}, v{8+tt}")
            for j in range(8, 16): A(f"v_mov_b32 v{a+j}, 0")
        A(f"s_lshl_b32 s3, {sDB}, 19")
        A(f"s_lshl_b32 s44, {sW}, 17")
        A(f"s_add_u32 s3, s3, s44")
        A(f"s_lshl_b32 s44, {sRB2}, 9")
        A(f"s_add_u32 s3, s3, s44")
        A(f"s_add_u32 s47, s3, {WS_YT}")
        if not self.sent:
            vm.need('hst')
            A(f"s_mov_b64 exec, 1")
            V(f"buffer_store_dword v{vMS+1}, v{vMS+2}, {WS}, s38 offen sc1", 'flag')
            A(f"s_mov_b64 exec, -1")
        A.stamp('g2 flag')
        vm.need(('w2', 2))
        lg.drain()
        for o in rd2_ops(2, 0) + rd2_ops(2, 1): E(o)
        pollop = ([f"s_mov_b32 exec_lo, s37", f"s_mov_b32 exec_hi, 0", f"buffer_load_dword v30, v{vMS}, {WS}, s36 offen sc1", f"s_mov_b64 exec, -1"], vm, 'poll')
        lg.drain()
        early = [7, 8, 9][:self.n_early]
        if self.early_gate: self.soft_wait("m_bu", C_U, 4, vCN, vTM, slp=2)
        for st_ in early:
            for o in W(st_): E(o)
        self.soft_wait("m_kd", C_BUILT, 4, vCN, vTM, slp=2)
        A.stamp('g2 kd')
        wq = ([] if self.w_by_l else [3, 4, 5, 6]) + [7, 8, 9][self.n_early:]
        grp = [W(wq.pop(0)) for _ in range(min(self.w_pre, len(wq)))]
        if not self.sent: grp.insert(self.poll_at, [pollop])
        for g_ in grp:
            for o in g_: E(o)
        wl = []
        for st_ in wq: wl += [W(st_)[:2], [(W(st_)[0][0][:2] + W(st_)[2][0], vm, ('w2', st_)), W(st_)[3]]]
        if not self.sent:
            vm.need('poll')
            A.label("Lg2_ph")
            A(f"v_cmp_ne_u32 vcc, {sTAG}, v30")
            A(f"s_and_b32 s3, vcc_lo, s37")
            A(f"s_cbranch_scc1 Lg2_ph_r")
            A.label("Lg2_ph_ok")
            self.stubs.append(["Lg2_ph_r:", f"s_sub_u32 s41, s41, 8", f"s_cbranch_scc1 Lg2_ph_ok", f"s_sleep 1", f"s_mov_b32 exec_lo, s3", f"s_mov_b32 exec_hi, 0",
                               f"buffer_load_dword v30, v{vMS}, {WS}, s36 offen sc1", f"s_mov_b64 exec, -1", f"s_waitcnt vmcnt(0)", f"s_branch Lg2_ph"])
        A.stamp('g2 h ok')
        for p in range(HD):
            for o in ldh_ops(p, 0) + ldh_ops(p, 1): E(o)
        vY = 224
        def ldy_ops():
            ops = []
            for q in range(2):
                for e2 in range(2):
                    for tt in range(2):
                        r = vY + 8 * tt + 4 * q + 2 * e2
                        ops.append(([f"s_add_u32 s44, s47, {(4*q+e2)*16384}"][:1 - tt] + [f"buffer_load_dwordx2 v[{r}:{r+1}], v28, {WS}, s44 offen offset:{256*tt} {sc}"], vm, 'y'))
            return ops
        def treg(p, kk): return [208, 216][(2 * p + kk) & 1]
        yq = ldy_ops()
        def check(p, kk):
            r = vHF + 16 * (p % HD) + 8 * kk
            vm.need(('h', p, kk))
            A.label(f"Lhc{p}_{kk}")
            for j in range(8): A(f"v_xor_b32 v{r+j}, v{r+j}, v{vMS + (j & 3)}")
            A(f"v_or3_b32 v15, v{r}, v{r+1}, v{r+2}")
            A(f"v_or3_b32 v14, v{r+3}, v{r+4}, v{r+5}")
            A(f"v_or3_b32 v15, v15, v{r+6}, v{r+7}")
            A(f"v_or_b32 v15, v15, v14")
            A(f"v_and_b32 v15, s40, v15")
            A(f"v_cmp_ne_u32 vcc, 0, v15")
            if p == 10:
                A(f"s_cmp_eq_u32 {sW}, 3")
                A(f"s_cbranch_scc1 Lhk{p}_{kk}")
            A(f"s_cbranch_vccnz Lhr{p}_{kk}")
            A.label(f"Lhk{p}_{kk}")
            self.stubs.append([f"Lhr{p}_{kk}:", f"s_sub_u32 s41, s41, 8", f"s_cbranch_scc1 Lhk{p}_{kk}", f"s_sleep {self.h_sleep}", f"s_add_u32 s3, s51, {p*2048}",
                          f"buffer_load_dwordx4 v[{r}:{r+3}], v{vH0}, {WS}, s3 offen offset:{1024*kk} {sc}",
                          f"buffer_load_dwordx4 v[{r+4}:{r+7}], v{vH1}, {WS}, s3 offen offset:{1024*kk} {sc}",
                          f"s_waitcnt vmcnt(0)", f"s_branch Lhc{p}_{kk}"])
        if self.sent:
            A(f"s_mov_b32 s40, 0x80008000")
            check(0, 0)
        for p in range(NST):
            for kk in range(2):
                np_, nkk = (p, 1) if kk == 0 else (p + 1, 0)
                rds = rd2_ops(np_, nkk) if (np_ < NST and np_ not in WREG) else []
                fill = []
                pp, pkk = (p, 0) if kk == 1 else (p - 1, 1)
                if pp >= 0 and pp + HD < NST: fill += ldh_ops(pp + HD, pkk)
                if (p, kk) == (4, 0): wl += [W(10)[:2], [(W(10)[0][0][:2] + W(10)[2][0], vm, ('w2', 10)), W(10)[3]]]
                if wl: fill += wl.pop(0)
                if p >= self.y_at and yq:
                    fill += yq[:self.y_per]; yq = yq[self.y_per:]
                if (p, kk) == (2, 0) and self.w_by_l: L(f"ds_read_b32 v15, v{vMS+3} offset:{C_FULL}", 'wf')
                vm.need(('h', p, kk))
                if p == 0 and kk == 0: A.stamp('g2 st0')
                if kk == 0: A.stamp(f'_P{p}')
                lg.need(('t', p, kk))
                w0 = (WREG[p] + 8 * kk) if p in WREG else treg(p, kk)
                last = (p == NST - 1 and kk == 1)
                n = 0
                for dt in ((1, 0) if last else (0, 1)):
                    for tt in range(2):
                        a = vA2 + 32 * dt + 16 * tt
                        w = w0 + 4 * dt
                        h = vHF + 16 * (p % HD) + 8 * kk + 4 * tt
                        c = '0' if (p == 0 and kk == 0 and dt == 1) else f"v[{a}:{a+15}]"
                        A(f"v_mfma_f32_32x32x16_bf16 v[{a}:{a+15}], v[{w}:{w+3}], v[{h}:{h+3}], {c}")
                        n += 1
                        if n == 1:
                            if (np_, nkk) == (3, 0) and self.w_by_l:
                                lg.need('wf')
                                A.label("Lwf")
                                A(f"v_readfirstlane_b32 s3, v15")
                                A(f"s_cmp_eq_u32 s3, 0")
                                A(f"s_cbranch_scc1 Lwf_r")
                                A.label("Lwf_ok")
                                self.stubs.append(["Lwf_r:", f"s_sub_u32 s41, s41, 1", f"s_cbranch_scc1 Lwf_ok", f"s_sleep 1", f"ds_read_b32 v15, v{vMS+3} offset:{C_FULL}",
                                                   f"s_waitcnt lgkmcnt(0)", f"s_branch Lwf"])
                            if rds and nkk == 0:
                                assert self.w_by_l or sum(1 for t_ in vm.log if t_ == ('w2', np_)) == 4, np_
                                vm.need(('w2', np_))
                            for o in rds: E(o)
                        elif not self.sent:
                            k = (len(fill) + (4 - n)) // (5 - n)
                            for o in fill[:k]: E(o)
                            fill = fill[k:]
                        elif n <= 3:
                            k = (len(fill) + (3 - n)) // (4 - n)
                            for o in fill[:k]: E(o)
                            fill = fill[k:]
                        elif np_ < NST:
                            check(np_, nkk)
        assert not yq
        A.stamp('g2 loop end')
        PA = {1: 16384, 2: 32768, 3: 49152}
        vP = vY
        A(f"v_add_u32 v12, {sM2}, v{vH0}")
        for i in (1, 2, 3):
            A(f"s_xor_b32 s3, {sW}, {i}")
            A(f"s_lshl_b32 s3, s3, 12")
            A(f"v_add_u32 v{20+i}, s3, v{vH0}")
        for i in (2, 3, 1):
            for tt in range(2):
                for qq in range(2):
                    a = vA2 + 32 * (i >> 1) + 16 * tt + 8 * (i & 1) + 4 * qq
                    L(f"ds_write_b128 v12, v[{a}:{a+3}] offset:{PA[i] + tt*2048 + qq*1024}", 'pw')
        vm.need('y')
        A.label("Lyc")
        for j in range(0, 16, 2):
            A(f"v_xor_b32 v14, v{vY+j}, v29")
            A(f"v_xor_b32 v15, v{vY+j+1}, v31")
            if j == 0: A(f"v_or_b32 v13, v14, v15")
            else: A(f"v_or3_b32 v13, v13, v14, v15")
        A(f"v_and_b32 v13, 0xff, v13")
        A(f"v_cmp_ne_u32 vcc, 0, v13")
        A(f"s_cbranch_vccnz Lyr")
        A.label("Lyk")
        st = ["Lyr:", f"s_sub_u32 s41, s41, 8", f"s_cbranch_scc1 Lyk", f"s_sleep 2"]
        for o in ldy_ops(): st += o[0]
        self.stubs.append(st + [f"s_waitcnt vmcnt(0)", f"s_branch Lyc"])
        A.stamp('g2 y ok')
        lg.drain()
        A(f"s_barrier")
        A.stamp('g2 bar')
        RR = {1: 96, 2: 112, 3: 128}
        for i in (1, 2, 3):
            for k in range(4):
                r = RR[i] + 4 * k
                L(f"ds_read_b128 v[{r}:{r+3}], v{20+i} offset:{PA[i] + k*1024}", ('pr', i))
        for i in (1, 2, 3):
            lg.need(('pr', i))
            for tt in range(2):
                for j in range(4):
                    a = vA2 + 16 * tt + 2 * j
                    r = RR[i] + 8 * tt + 2 * j
                    A(f"v_pk_add_f32 v[{a}:{a+1}], v[{a}:{a+1}], v[{r}:{r+1}]")
        for tt in range(2):
            for j in range(4):
                a = vA2 + 16 * tt + 2 * j
                A(f"v_pk_fma_f32 v[{a}:{a+1}], v[{a}:{a+1}], v[2:3], v[{vP+8*tt+2*j}:{vP+8*tt+2*j+1}] op_sel:[0,{tt},0] op_sel_hi:[1,{tt},1]")
            for j in range(4):
                a = vA2 + 16 * tt + 2 * j
                A(f"v_cvt_pk_bf16_f32 v{16+4*tt+j}, v{a}, v{a+1}")
            b = 16 + 4 * tt
            A(f"v_permlane32_swap_b32 v{b}, v{b+2}")
            A(f"v_permlane32_swap_b32 v{b+1}, v{b+3}")
            A(f"buffer_store_dwordx4 v[{b}:{b+3}], v{4+tt}, {OUT}, 0 offen {self.osc}")
    u_at = 1

class Lr(Role):
    rot = 'cx'
    touch = 1
    zdum = 1
    plan = [10, 8, 4, 4, 3, 3]
    kprio = 3
    dprio = 0
    cprio = 3
    w_by_l = 0
    w_every = 3
    w_cert = 72
    l_n = 3
    kper = 4
    spread = 1
    poll_sleep = 8
    def run(self):
        A = self.A; vm = self.vm; lg = self.lg; E = self.emit; V = self.V; L = self.L
        pLA, pAI, pCR, pCI, pLDT, pDSK = 's[10:11]', 's[12:13]', 's[14:15]', 's[16:17]', 's[18:19]', 's[20:21]'
        X, W1, W2, WS, UBS = 's[24:27]', 's[56:59]', 's[60:63]', 's[44:47]', 's[8:11]'
        sLDT, sDSK, sCH, sHW = 's28', 's29', 's22', 's23'
        sKX, sKW, sMX, sMW, sPERM = 's38', 's39', 's40', 's41', 's54'
        vXS, vWS_, vDS = 228, 232, 236
        vKA, vKB, vKW, vKZ, vTW, vCT, vCH, vUA, vUB, vUL, vPW, vPR, vUD, vCN = range(240, 254)
        A(f"s_load_dwordx16 s[8:23], s[0:1], 0")
        A(f"s_load_dwordx2 s[56:57], s[0:1], 64")
        A(f"s_load_dwordx2 s[44:45], s[0:1], 112")
        A(f"s_load_dwordx2 s[60:61], s[0:1], 80")
        self.ids()
        for base, size in ((24, 0x200000), (56, W1_SIZE), (60, W1_SIZE), (44, WS_SIZE)):
            A(f"s_mov_b32 s{base+2}, {size}")
            A(f"s_mov_b32 s{base+3}, 0x20000")
        A(f"s_and_b32 s31, {sW}, 1")
        A(f"s_lshl_b32 s30, {sQ}, 1")
        A(f"s_add_u32 s3, s31, s30")
        A(f"s_lshl_b32 s3, s3, 8")
        A(f"v_lshl_add_u32 v16, {vLANE}, 2, s3")
        A(f"s_lshl_b32 s30, {sQ}, 2")
        if self.rot == 'cx': A(f"s_add_u32 s3, {sCB}, {sID}")
        elif self.rot == 'cxa':
            A(f"s_lshl_b32 s3, {sRB}, 2")
            A(f"s_add_u32 s3, s3, {sCB}")
            A(f"s_add_u32 s3, s3, {sID}")
        elif self.rot == 'ca':
            A(f"s_lshl_b32 s3, {sRB}, 2")
            A(f"s_add_u32 s3, s3, {sCB}")
        elif self.rot == 'x': A(f"s_mov_b32 s3, {sID}")
        elif self.rot == 'c': A(f"s_mov_b32 s3, {sCB}")
        else: A(f"s_mov_b32 s3, 0")
        A(f"s_and_b32 s3, s3, 7")
        A(f"s_mul_i32 s3, s3, 0x11111111")
        A(f"s_add_u32 {sPERM}, s3, 0x76543210")
        A(f"s_mul_i32 s3, {sW}, {16*2752}")
        A(f"s_mul_i32 s43, {sCB}, 192")
        A(f"s_add_u32 s3, s3, s43")
        A(f"s_movk_i32 s43, {2752 - 192}")
        if self.zdum:
            A(f"s_mul_i32 s42, {sCB}, 12")
            A(f"s_sub_i32 s42, 172, s42")
            A(f"v_mov_b32 v29, {OOB:#x}")
        A(f"v_lshl_add_u32 v31, {vLANE}, 4, s3")
        for i in range(3):
            A(f"v_add_u32 v3, {64*i}, {vLANE}")
            A(f"v_mul_u32_u24 v3, 0x5556, v3")
            A(f"v_lshrrev_b32 v3, 18, v3")
            A(f"v_mad_u32_u24 v{vWS_+i}, v3, s43, v31")
            if self.zdum:
                A(f"v_mul_u32_u24 v3, 12, v3")
                A(f"v_sub_u32 v3, {vLANE}, v3")
                A(f"v_add_u32 v3, {64*i}, v3")
                A(f"v_cmp_le_i32 vcc, s42, v3")
                A(f"v_cndmask_b32 v{vWS_+i}, v{vWS_+i}, v29, vcc")
        A(f"v_lshrrev_b32 v3, 3, {vLANE}")
        A(f"v_lshrrev_b32 v30, 4, {vLANE}")
        A(f"v_and_b32 v31, 7, {vLANE}")
        A(f"v_xor_b32 v31, v31, v30")
        A(f"v_lshlrev_b32 v31, 4, v31")
        A(f"v_lshl_add_u32 v31, v3, 10, v31")
        A(f"s_lshl_b32 s3, {sRB}, 17")
        A(f"s_lshl_b32 s43, {sW}, 15")
        A(f"s_add_u32 s3, s3, s43")
        if self.zdum:
            A(f"s_cmp_eq_u32 {sCB}, 15")
            A(f"s_cselect_b32 s3, {OOB:#x}, s3")
        A(f"v_add_u32 v{vXS}, s3, v31")
        A(f"v_xor_b32 v{vXS+1}, 64, v{vXS}")
        A(f"v_add_u32 v{vXS+1}, {8192-1024}, v{vXS+1}")
        A(f"v_add_u32 v{vXS+2}, {2*(8192-1024)}, v{vXS}")
        A(f"v_add_u32 v{vXS+3}, {2*(8192-1024)}, v{vXS+1}")
        A(f"s_lshl_b32 {sMX}, {sW}, 12")
        A(f"s_add_u32 {sMX}, {sMX}, {XOFF}")
        A(f"s_mul_i32 {sMW}, {sW}, 3072")
        A(f"s_waitcnt lgkmcnt(0)")
        V(f"global_load_dword v4, v16, {pLA}", 'par')
        V(f"global_load_dword v5, v16, {pAI}", 'par')
        V(f"global_load_dword v6, v16, {pCR}", 'par')
        V(f"global_load_dword v7, v16, {pCI}", 'par')
        A(f"s_load_dword {sLDT}, {pLDT}, s30")
        A(f"s_load_dword {sDSK}, {pDSK}, s30")
        A(f"s_mov_b32 s24, s8")
        A(f"s_mov_b32 s25, s9")
        A(f"s_mov_b32 {sCH}, s31")
        A(f"s_lshr_b32 {sHW}, {sW}, 1")
        A(f"s_barrier")
        def st_ops(s):
            w = [([f"s_add_u32 m0, {sMW}, {slot_of(s)}", f"s_bfe_u32 s3, {sPERM}, {(4*s) | (3<<16):#x}", f"s_mul_i32 {sKW}, s3, {64*2752}", f"s_lshl_b32 {sKX}, s3, 7"][:4 if i == 0 else 0]
                  + [f"buffer_load_dwordx4 v{vWS_+i}, {W1}, {sKW} offen offset:{1024*i} lds"], vm, ('st', s)) for i in range(3)]
            x = [([f"s_add_u32 m0, {sMX}, {slot_of(s)}"][:1 if i == 0 else 0]
                  + [f"buffer_load_dwordx4 v{vXS+i}, {X}, {sKX} offen offset:{1024*i} lds"], vm, ('st', s)) for i in range(4)]
            return w + x
        for o in st_ops(0): E(o)
        def nibp(lst): return sum(lst[7 - p] << (4 * p) for p in range(8))
        N0 = nibp(list(range(8))); N1 = nibp([0,0,1,2,2,2,3,4]); N2 = nibp([0,0,0,1,1,1,2,2]); N4 = nibp([0,0,0,0,0,1,1,1])
        A(f"v_mov_b32 v{vCN}, {L_CNT}")
        A(f"v_and_b32 v20, 7, {vLANE}")
        A(f"v_lshlrev_b32 v20, 2, v20")
        A(f"v_bfe_u32 v21, {vLANE}, 3, 2")
        A(f"s_cmp_lt_u32 {sW}, 2")
        A(f"s_mov_b32 s51, {N4:#x}")
        A(f"s_cselect_b32 s32, {N0:#x}, s51")
        A(f"s_cselect_b32 s33, {N1:#x}, s51")
        A(f"s_cselect_b32 s55, {N2:#x}, s51")
        A(f"s_mov_b32 s51, {(26<<24)|(24<<16)|(22<<8)|20:#x}")
        A(f"s_cselect_b32 s51, {(17<<24)|(14<<16)|(9<<8)|0:#x}, s51")
        A(f"s_cselect_b32 s36, 0, 0xaaaaaaaa")
        A(f"s_mov_b32 s37, 0")
        A(f"v_cmp_eq_u32 vcc, 1, v21")
        A(f"v_mov_b32 v22, s55")
        A(f"v_mov_b32 v23, s33")
        A(f"v_cndmask_b32 v22, v22, v23, vcc")
        A(f"v_cmp_eq_u32 vcc, 0, v21")
        A(f"v_mov_b32 v23, s32")
        A(f"v_lshlrev_b32 v21, 3, v21")
        A(f"v_cndmask_b32 v22, v22, v23, vcc")
        A(f"v_bfe_u32 v22, v22, v20, 4")
        A(f"v_bfe_u32 v23, s51, v21, 8")
        A(f"v_add_u32 v22, v22, v23")
        A(f"v_lshrrev_b32 v23, 5, {vLANE}")
        A(f"s_mul_i32 s31, {sCH}, {60*TROW}")
        A(f"s_add_u32 s31, s31, {L_TAB}")
        A(f"v_lshl_add_u32 v24, v23, 4, s31")
        A(f"s_movk_i32 s30, {TROW}")
        A(f"v_mad_u32_u24 v{vKA}, v22, s30, v24")
        A(f"v_and_b32 v22, 31, {vLANE}")
        A(f"v_mad_u32_u24 v{vKB}, v22, s30, v24")
        A(f"s_mul_i32 s30, {sHW}, {28*TROW}")
        A(f"s_add_u32 s31, s31, s30")
        A(f"v_lshl_add_u32 v{vTW}, {vLANE}, 3, s31")
        A(f"s_mul_i32 s31, {sCH}, {KREV_SZ}")
        A(f"s_add_u32 s31, s31, {L_KREV}")
        A(f"v_lshl_add_u32 v{vKZ}, {vLANE}, 4, s31")
        A(f"s_lshl_b32 s30, {sHW}, 11")
        A(f"s_sub_u32 s32, s31, s30")
        A(f"s_add_u32 s32, s32, {4080 - 1536}")
        A(f"v_lshlrev_b32 v22, 4, v22")
        A(f"v_sub_u32 v22, s32, v22")
        A(f"v_lshl_add_u32 v{vKW}, v23, 3, v22")
        for o in st_ops(1)[:3]: E(o)
        A(f"v_and_b32 v20, 15, {vLANE}")
        A(f"s_lshl_b32 s32, {sHW}, 8")
        A(f"s_add_u32 s31, s31, s32")
        A(f"s_add_u32 s31, s31, 480")
        A(f"v_lshlrev_b32 v22, 5, v20")
        A(f"v_sub_u32 v22, s31, v22")
        A(f"v_lshl_add_u32 v{vCT}, v30, 4, v22")
        A(f"s_mul_i32 s31, {sCH}, {4*CPY}")
        A(f"s_add_u32 s31, s31, {L_U}")
        A(f"s_add_u32 s33, s31, s32")
        A(f"v_bfe_u32 v22, {vLANE}, 2, 2")
        A(f"v_and_b32 v24, 3, {vLANE}")
        A(f"v_mul_u32_u24 v25, {CPY}, v22")
        A(f"v_lshl_add_u32 v25, v30, 4, v25")
        A(f"v_lshl_add_u32 v25, v24, 3, v25")
        A(f"v_add_u32 v{vCH}, s33, v25")
        A(f"v_lshlrev_b32 v25, 2, v30")
        A(f"v_xor_b32 v25, v25, {vLANE}")
        A(f"s_lshl_b32 s3, {sW}, 13")
        A(f"s_add_u32 s3, s3, {L_PART}")
        A(f"v_lshl_add_u32 v{vPW}, v25, 4, s3")
        A(f"v_bfe_u32 v26, {vLANE}, 1, 2")
        A(f"v_lshrrev_b32 v25, 3, {vLANE}")
        A(f"v_lshlrev_b32 v27, 2, v26")
        A(f"v_xor_b32 v25, v25, v27")
        A(f"v_lshlrev_b32 v25, 4, v25")
        A(f"v_lshl_add_u32 v25, v26, 8, v25")
        A(f"v_and_b32 v24, 1, {vLANE}")
        A(f"v_lshl_add_u32 v25, v24, 3, v25")
        A(f"s_lshl_b32 s3, {sW}, 11")
        A(f"s_add_u32 s3, s3, {L_PART}")
        A(f"v_add_u32 v{vPR}, s3, v25")
        A(f"s_lshl_b32 s3, {sW}, 10")
        A(f"s_add_u32 s3, s3, {L_U}")
        A(f"v_lshl_add_u32 v{vUD}, {vLANE}, 2, s3")
        A(f"v_lshrrev_b32 v25, 1, {vLANE}")
        A(f"s_lshl_b32 s3, {sW}, 6")
        A(f"v_add_u32 v25, s3, v25")
        A(f"s_lshl_b32 s3, {sQ}, 5")
        A(f"s_sub_u32 s3, s3, 16384")
        A(f"v_lshlrev_b32 v26, 13, v25")
        A(f"v_lshl_add_u32 v26, v24, 4, v26")
        A(f"v_add_u32 v{vUA}, s3, v26")
        A(f"v_add_u32 v{vUB}, 8192, v{vUA}")
        A(f"v_mul_u32_u24 v26, {4*CPY}, v24")
        A(f"v_lshl_add_u32 v26, v25, 4, v26")
        A(f"v_add_u32 v{vUL}, {L_U}, v26")
        self.w2_src(vDS, 20, 21, 22)
        LOG2E = '0x3fb8aa3b'
        A(f"s_waitcnt lgkmcnt(0)")
        A(f"s_mov_b32 s8, s44")
        A(f"s_mov_b32 s9, s45")
        A(f"s_mov_b32 s10, {UB_SIZE}")
        A(f"s_mov_b32 s11, 0x20000")
        A(f"s_lshl_b32 s30, {sLDT}, 16")
        A(f"s_and_b32 s31, {sLDT}, 0xffff0000")
        A(f"s_cmp_eq_u32 {sCH}, 0")
        A(f"s_cselect_b32 {sLDT}, s30, s31")
        A(f"s_and_b32 s12, {sDSK}, 0xffff0000")
        A(f"s_lshl_b32 {sDSK}, {sDSK}, 16")
        A(f"v_mov_b32 v16, {LOG2E}")
        A(f"v_mul_f32 v17, {sLDT}, v16")
        A(f"v_exp_f32 v17, v17")
        A(f"s_cmp_lt_u32 {sW}, 2")
        A(f"s_cselect_b32 s32, 1.0, 0x41000000")
        A(f"s_cselect_b32 s33, 0x43780000, s32")
        A(f"s_cselect_b32 s55, 0xbe22f983, 0.15915494")
        A(f"v_cvt_pk_bf16_f32 v17, v17, v17")
        A(f"v_lshlrev_b32 v17, 16, v17")
        vm.need('par')
        A.stamp('par loaded')
        A(f"v_lshlrev_b32 v20, 16, v4")
        A(f"v_and_b32 v21, 0xffff0000, v4")
        A(f"v_mul_f32 v20, v20, v16")
        A(f"v_mul_f32 v21, v21, v16")
        A(f"v_exp_f32 v20, v20")
        A(f"v_exp_f32 v21, v21")
        A(f"v_lshlrev_b32 v22, 16, v5")
        A(f"v_and_b32 v23, 0xffff0000, v5")
        A(f"v_cvt_pk_bf16_f32 v18, v20, v21")
        A(f"v_mul_f32 v22, v22, v17")
        A(f"v_mul_f32 v23, v23, v17")
        A(f"v_lshlrev_b32 v20, 16, v18")
        A(f"v_and_b32 v21, 0xffff0000, v18")
        A(f"v_mul_f32 v22, s55, v22")
        A(f"v_mul_f32 v23, s55, v23")
        A(f"v_mul_f32 v20, v20, v17")
        A(f"v_mul_f32 v21, v21, v17")
        A(f"v_mul_f32_e64 v20, -v20, v16")
        A(f"v_mul_f32_e64 v21, -v21, v16")
        MR = {1: 24, 248: 28, 2: 32, 4: 36, 8: 40}
        for (inc, sreg, tb) in ((1, 's32', 56), (248, 's33', 60)):
            for i in range(2):
                A(f"v_mul_f32 v{tb+i}, {sreg}, v{20+i}")
                A(f"v_mul_f32 v{tb+2+i}, {sreg}, v{22+i}")
        for tb in (56, 60):
            for i in range(2):
                A(f"v_exp_f32 v{tb+i}, v{tb+i}")
                A(f"v_fract_f32 v{tb+2+i}, v{tb+2+i}")
        for (inc, tb) in ((1, 56), (248, 60)):
            for i in range(2):
                m = MR[inc] + 2 * i
                A(f"v_cos_f32 v{m}, v{tb+2+i}")
                A(f"v_sin_f32 v{m+1}, v{tb+2+i}")
        for (inc, tb) in ((1, 56), (248, 60)):
            for i in range(2):
                m = MR[inc] + 2 * i
                A(f"v_mul_f32 v{m}, v{m}, v{tb+i}")
                A(f"v_mul_f32 v{m+1}, v{m+1}, v{tb+i}")
        def cmul2(dst, a, m):
            l1 = []; l2 = []
            for i in range(2):
                d, x, y = dst + 2 * i, a + 2 * i, m + 2 * i
                l1.append(f"v_mul_f32_e64 v{d}, -v{x+1}, v{y+1}")
                l1.append(f"v_mul_f32 v{d+1}, v{x}, v{y+1}")
                l2.append(f"v_fmac_f32 v{d}, v{x}, v{y}")
                l2.append(f"v_fmac_f32 v{d+1}, v{x+1}, v{y}")
            return l1, l2
        A(f"s_cbranch_scc1 Lkg_h")
        for r in range(32, 44): A(f"v_mov_b32 v{r}, v{24 + (r & 3)}")
        A(f"v_mov_b32 v48, 1.0")
        A(f"v_mov_b32 v49, 0")
        A(f"v_mov_b32 v50, 1.0")
        A(f"v_mov_b32 v51, 0")
        A(f"s_branch Lkg_go")
        A.label("Lkg_h")
        A(f"v_add_f32 v17, v17, v17")
        A(f"v_lshlrev_b32 v48, 16, v6")
        A(f"v_lshlrev_b32 v49, 16, v7")
        A(f"v_and_b32 v50, 0xffff0000, v6")
        A(f"v_and_b32 v51, 0xffff0000, v7")
        for (d, s_) in ((2, 1), (4, 2), (8, 4)):
            l1, l2 = cmul2(MR[d], MR[s_], MR[s_])
            for x in l1 + l2: A(x)
        A(f"v_mul_f32 v48, v48, v17")
        A(f"v_mul_f32_e64 v49, -v49, v17")
        A(f"v_mul_f32 v50, v50, v17")
        A(f"v_mul_f32_e64 v51, -v51, v17")
        A.label("Lkg_go")
        dma = st_ops(1)[3:] + st_ops(2)
        if self.touch:
            dma.append(([f"s_mul_i32 s3, {sQ}, 5504", f"s_mul_i32 s30, {sW}, 1408", f"s_add_u32 s3, s3, s30", f"v_lshlrev_b32 v19, 7, {vLANE}", f"s_mov_b64 exec, 0x7ff",
                         f"buffer_load_dword v3, v19, {W2}, s3 offen", f"s_mov_b64 exec, -1"], vm, 'touch'))
        W = lambda st: self.w2_ops(st, vDS, W2)
        def W2h(st, h):
            o = W(st)
            return [(o[0][0][:2] + o[2*h][0][-1:], vm, ('w2', st)), o[2*h+1]]
        cur, nxt = 48, 52
        step = 0
        def chain_step(ndma):
            nonlocal cur, nxt, step
            pk = 64 + 2 * step
            if step < 31:
                l1, l2 = cmul2(nxt, cur, MR[HINC[step]])
                for x in l1: A(x)
            A(f"v_cvt_pk_bf16_f32 v{pk}, v{cur}, v{cur+1}")
            A(f"v_cvt_pk_bf16_f32 v{pk+1}, v{cur+2}, v{cur+3}")
            for _ in range(ndma):
                if dma: E(dma.pop(0))
            if step < 31:
                for x in l2: A(x)
            cur, nxt = nxt, cur
            step += 1
        extra = {b_: [] for b_ in range(-1, 5)}
        cert = {}
        for b, n in zip(range(-1, 5), self.plan):
            for k in range(n):
                if step < 32: chain_step(-(-len(dma) // (n - k)))
            while dma: E(dma.pop(0))
            A.stamp(f"_I{b}")
            vm.need([('st', b + 1)] + cert.get(b, []))
            A.stamp(f"_W{b}")
            A(f"s_barrier")
            if 0 <= b: dma.extend(st_ops(b + 3))
            dma.extend(extra[b])
        L(f"ds_read_b32 v60, v{vCN} offset:{C_TAG}", 'tag')
        A(f"v_lshlrev_b32 v20, 4, {vLANE}")
        A(f"s_mov_b32 s33, {WS_FU}")
        V(f"buffer_load_dwordx4 v[128:131], v20, {WS}, s33 offen sc1", 'pu')
        while dma: E(dma.pop(0))
        while step < 32: chain_step(0)
        A.stamp('kg chain')
        for r in range(24, 28): A(f"v_mov_b32 v{r}, 0")
        lg.drain()
        A(f"v_readfirstlane_b32 {sTAG}, v60")
        vm.need([('st', 6), 'pu'])
        A(f"s_barrier")
        def u_check():
            for k in range(4): A(f"v_xor_b32 v{132+k}, {sTAG}, v{128+k}")
            A(f"v_or3_b32 v132, v132, v133, v134")
            A(f"v_or_b32 v132, v132, v135")
            A(f"v_cmp_ne_u32 vcc, 0, v132")
        def u_loads(tg):
            A(f"s_mov_b32 s30, {32*8192}")
            A(f"v_add_u32 v22, s30, v{vUA}")
            A(f"v_add_u32 v23, s30, v{vUB}")
            A(f"s_cmp_lg_u32 {sW}, 3")
            A(f"s_cbranch_scc1 Lc_no3{tg}")
            A(f"s_mov_b64 exec, 15")
            A(f"buffer_load_dwordx4 v[144:147], v22, {UBS}, s30 offen sc1")
            A(f"buffer_load_dwordx2 v[148:149], v23, {UBS}, s30 offen sc1")
            A(f"s_mov_b64 exec, 1")
            A(f"s_cmp_lg_u32 {sID}, 0")
            A(f"s_cbranch_scc1 Lc_no3{tg}")
            A(f"v_mov_b32 v28, {sTAG}")
            A(f"v_mov_b32 v29, {WS_EP}")
            A(f"buffer_store_dword v28, v29, {WS}, 0 offen sc1")
            A.label(f"Lc_no3{tg}")
            A(f"s_mov_b32 exec_lo, 0xc000c000")
            A(f"s_mov_b32 exec_hi, 0xc000c000")
            A(f"buffer_load_dwordx2 v[132:133], v{vUB}, {UBS}, 0 offen sc1")
            A(f"buffer_load_dwordx2 v[140:141], v23, {UBS}, 0 offen sc1")
            A(f"s_mov_b64 exec, -1")
            A(f"buffer_load_dwordx4 v[128:131], v{vUA}, {UBS}, 0 offen sc1")
            A(f"buffer_load_dwordx4 v[136:139], v22, {UBS}, 0 offen sc1")
        for o in W(0): E(o)
        vm.need(('st', 7))
        A(f"s_barrier")
        for o in W(1): E(o)
        u_check()
        A(f"s_mov_b32 s39, 1")
        A(f"s_cbranch_vccnz Lc_skipu")
        A(f"s_mov_b32 s39, 0")
        u_loads('a')
        A(f"s_waitcnt vmcnt(4)")
        A(f"s_branch Lc_exb")
        A.label("Lc_skipu")
        A(f"s_waitcnt vmcnt(0)")
        A.label("Lc_exb")
        vm.q = []
        A.stamp('u ok')
        A(f"s_barrier")
        A.stamp('ex ok')
        if self.dprio: A(f"s_setprio {self.dprio}")
        for st_ in range(28): A(f"ds_write_b64 v{vTW}, v[{64+2*st_}:{65+2*st_}] offset:{st_*TROW}")
        A(f"s_cmp_lt_u32 {sW}, 2")
        A(f"s_cbranch_scc1 Lc_h28")
        for st_ in range(28, 32): A(f"ds_write_b64 v{vTW}, v[{64+2*st_}:{65+2*st_}] offset:{st_*TROW}")
        A.label("Lc_h28")
        self.soft_arrive(C_TABW, vCN, 21)
        def build(tg):
            A(f"s_waitcnt vmcnt(0)")
            for i in range(3):
                w = 128 + 8 * i; t = 152 + 12 * i
                if i == 2:
                    A(f"s_cmp_lg_u32 {sW}, 3")
                    A(f"s_cbranch_scc1 Lc_nob{tg}")
                    A(f"s_mov_b64 exec, 15")
                else:
                    A(f"v_mov_b32_dpp v{w+4}, v{w} row_shl:2 row_mask:0xf bank_mask:0xf")
                    A(f"v_mov_b32_dpp v{w+5}, v{w+1} row_shl:2 row_mask:0xf bank_mask:0xf")
                for j in range(4): A(f"v_alignbyte_b32 v{t+j}, v{w+j+1}, v{w+j}, 2")
                off = 512 * i
                A(f"ds_write_b128 v{vUL}, v[{w+2}:{w+5}] offset:{off + 3*CPY}")
                for j in range(4): A(f"v_mov_b32 v{t+4+j}, v{w+j+1}")
                A(f"ds_write_b128 v{vUL}, v[{t}:{t+3}] offset:{off}")
                for j in range(4): A(f"v_alignbyte_b32 v{t+8+j}, v{w+j+2}, v{w+j+1}, 2")
                A(f"ds_write_b128 v{vUL}, v[{t+4}:{t+7}] offset:{off + CPY}")
                A(f"ds_write_b128 v{vUL}, v[{t+8}:{t+11}] offset:{off + 2*CPY}")
            A(f"s_mov_b64 exec, -1")
            A.label(f"Lc_nob{tg}")
            self.soft_arrive(C_U, vCN, 21)
        A(f"s_cmp_lg_u32 s39, 0")
        A(f"s_cbranch_scc1 Lc_nobuild")
        A.label("Lc_build")
        build('')
        A(f"s_cmp_lg_u32 s39, 0")
        A(f"s_cbranch_scc1 Lc_built")
        A.label("Lc_nobuild")
        A(f"s_setprio 0")
        self.soft_wait("l_tabw", C_TABW, 4, vCN, 21, slp=1)
        A(f"s_setprio {self.kprio}")
        def rdk(k):
            r = 64 + 8 * (k % 8)
            L(f"ds_read_b128 v[{r}:{r+3}], v{vKA} offset:{32*k}", ('k', k))
            L(f"ds_read_b128 v[{r+4}:{r+7}], v{vKB} offset:{28*TROW + 32*k}", ('k', k))
        for k in range(7): rdk(k)
        for k in range(16):
            lg.need(('k', k))
            r = 64 + 8 * (k % 8)
            c = '0' if k == 0 else 'v[32:47]'
            A(f"v_mfma_f32_32x32x16_bf16 v[32:47], v[{r}:{r+3}], v[{r+4}:{r+7}], {c}")
            if k + 7 < 16: rdk(k + 7)
            if k == 10:
                A(f"s_mov_b64 exec, 0x3fffffff")
                L(f"ds_write_b128 v{vKZ}, v[24:27] offset:4096", 'w')
                A(f"s_mov_b64 exec, -1")
        for q in range(4): A(f"v_cndmask_b32 v{32+4*q+3}, v{32+4*q+3}, v{32+4*q+2}, s[36:37]")
        for q in range(4):
            A(f"v_cvt_pk_bf16_f32 v{48+2*q}, v{32+4*q}, v{33+4*q}")
            A(f"v_cvt_pk_bf16_f32 v{49+2*q}, v{34+4*q}, v{35+4*q}")
            L(f"ds_write_b64 v{vKW}, v[{48+2*q}:{49+2*q}] offset:{512*(3-q)}", 'w')
        self.soft_arrive(C_BUILT, vCN, 21)
        self.soft_arrive(C_U, vCN, 21)
        A.stamp('kg done')
        A(f"s_setprio 0")
        A(f"s_cmp_eq_u32 s39, 0")
        A(f"s_cbranch_scc1 Lc_built")
        A(f"s_mov_b32 s31, {SPIN}")
        A.label("Lc_poll")
        A(f"s_mov_b64 exec, vcc")
        A(f"buffer_load_dwordx4 v[128:131], v20, {WS}, s33 offen sc1")
        A(f"s_mov_b64 exec, -1")
        A(f"s_waitcnt vmcnt(0)")
        u_check()
        A(f"s_sub_u32 s31, s31, 1")
        A(f"s_cbranch_scc1 Lc_poll_ok")
        A(f"s_cbranch_vccz Lc_poll_ok")
        A(f"s_sleep {self.poll_sleep}")
        A(f"s_branch Lc_poll")
        A.label("Lc_poll_ok")
        u_loads('b')
        A(f"s_branch Lc_build")
        A.label("Lc_built")
        A(f"s_waitcnt lgkmcnt(0)")
        for r in range(32, 64): A(f"v_mov_b32 v{r}, 0")
        A(f"s_setprio 0")
        self.soft_wait("l_built", C_U, 8, vCN, 21, slp=1)
        A(f"s_setprio {self.cprio}")
        A.stamp('cv built')
        def frag_ops(b, rho, i):
            T = 64 + 64 * b + 4 * i; H = 96 + 64 * b + 4 * i
            return [(f"ds_read_b128 v[{T}:{T+3}], v{vCT} offset:{512*(7-i) + 64*rho}", ('f', rho, i)),
                    (f"ds_read_b64_tr_b16 v[{H}:{H+1}], v{vCH} offset:{512*i + 64*rho}", ('f', rho, i)),
                    (f"ds_read_b64_tr_b16 v[{H+2}:{H+3}], v{vCH} offset:{512*i + 8 + 64*rho}", ('f', rho, i))]
        pend = [o for rho in range(4) for i in range(8) for o in frag_ops(rho & 1, rho, i)]
        for p in range(4):
            for c_ in range(2):
                pend.append((f"ds_read_b32 v{192+2*p+c_}, v{vUD} offset:{c_*4*CPY + 3*CPY + 24 + 256*p}", ('ud', 4, 0)))
        for o in pend[:12]: L(*o)
        pend = pend[12:]
        arrived = False
        wd = (W(3) + W(4) + W(5) + W(6)) if self.w_by_l else []
        nm = 0
        for rho in range(4):
            b = rho & 1
            for n in range(8):
                lg.need(('f', rho, n))
                pairs = [(s_, d) for s_ in range(8) for d in range(8) if s_ + d <= 7 and max(s_, d) == n]
                for (s_, d) in pairs:
                    a = 32 + 4 * (s_ + d)
                    A(f"v_mfma_f32_16x16x32_bf16 v[{a}:{a+3}], v[{96+64*b+4*s_}:{99+64*b+4*s_}], v[{64+64*b+4*d}:{67+64*b+4*d}], v[{a}:{a+3}]")
                    nm += 1
                    if wd and nm % self.w_every == 0: E(wd.pop(0))
                    if nm == self.w_cert and self.w_by_l:
                        assert not wd
                        vm.drain()
                        A(f"v_lshl_add_u32 v22, {sW}, 2, v{vCN}")
                        self.post_word(22, C_FULL, 1, 21)
                    k = 3 if (pend and pend[0][1][1] == rho) else 1
                    for _ in range(k):
                        if pend and pend[0][1][1] <= rho + 1:
                            if len(lg.q) >= 14:
                                A("s_waitcnt lgkmcnt(8)"); lg.q = lg.q[-8:]
                            L(*pend.pop(0))
                    if not pend and not arrived:
                        self.soft_arrive(C_CVD, vCN, 21); arrived = True
        A.stamp('cv loop')
        A(f"s_lshl_b32 s32, {sQ}, 14")
        A(f"s_lshl_b32 s30, {sW}, 12")
        A(f"s_add_u32 s32, s32, s30")
        A(f"s_add_u32 s32, s32, {WS_YT}")
        A(f"v_xor_b32 v23, 128, v{vPR}")
        self.soft_wait("l_cvd", C_CVD, 4, vCN, 21, slp=1)
        for a in range(8): L(f"ds_write_b128 v{vPW}, v[{32+4*a}:{35+4*a}] offset:{1024*a}", 'w')
        self.soft_arrive(C_PART, vCN, 21)
        lg.need(('ud', 4, 0))
        for k in range(8):
            A(f"v_lshlrev_b32 v{200+2*k}, 16, v{192+k}")
            A(f"v_and_b32 v{201+2*k}, 0xffff0000, v{192+k}")
        self.soft_wait("l_part", C_PART, 4, vCN, 21, slp=1)
        for p in range(4):
            if p == 3: lg.need(('pr', 0))
            for c_ in range(2):
                for part in range(2):
                    r = 64 + 8 * p + 4 * c_ + 2 * part
                    L(f"ds_read_b64 v[{r}:{r+1}], v{[vPR, 23][p & 1]} offset:{1024*(p >> 1) + 8192*c_ + 16384*part}", ('pr', p))
        A("s_setprio 3")
        A(f"s_movk_i32 s31, 0xff")
        for e in range(4): A(f"v_lshrrev_b32_e64 v{24+e}, {8*e}, {sTAG}")
        for p in range(4):
            lg.need(('pr', p))
            r = 64 + 8 * p; o_ = 96 + 4 * p
            for e in range(2):
                for c_ in range(2): A(f"v_add_f32 v{o_+2*e+c_}, v{r+4*c_+e}, v{r+4*c_+2+e}")
            for e in range(2):
                for c_ in range(2): A(f"v_fmac_f32 v{o_+2*e+c_}, {[sDSK, 's12'][c_]}, v{200+4*p+2*c_+e}")
            for e in range(4): A(f"v_bfi_b32 v{o_+e}, s31, v{24+e}, v{o_+e}")
            A(f"buffer_store_dwordx4 v[{o_}:{o_+3}], v20, {WS}, s32 offen offset:{1024*p} sc1")
        A.stamp('y stored')
```

```python
import sys
from asmlib import Asm
import blocks_h as U
from layout import *
KN = "parallel_sum__ssm_conv_s4d__dense_activation_squared_relu__prompt_kernel"
HDR = open("parallel_sum__ssm_conv_s4d__dense_activation_squared_relu__prompt.s.ref").read().split("; Override launch")[0]
opt = dict(a.split('=', 1) for a in sys.argv[2:] if '=' in a)
A = Asm()
A.stamps = '-s' in sys.argv
if opt.get('st'): A.stamp_filter = opt['st']
if opt.get('spin'): U.SPIN = int(opt['spin'])
def cfg(o):
    for k, v in opt.items():
        if hasattr(type(o), k):
            d = getattr(type(o), k)
            setattr(o, k, v if isinstance(d, str) else ([int(x) for x in v.split(',')] if isinstance(d, list) else int(v)))
    return o
A(f".globl {KN}\n.p2align 8\n.type {KN},@function")
A.label(KN)
A("s_cmp_ge_u32 s2, 256")
A("s_cbranch_scc1 Lexit")
A("v_lshrrev_b32 v2, 6, v0")
A("v_and_b32 v1, 63, v0")
A("v_readfirstlane_b32 s3, v2")
A("s_mov_b32 s4, s2")
A("s_and_b32 s5, s3, 3")
lfirst = int(opt.get('lfirst', 0))
A("s_cmp_ge_u32 s3, 4")
A("s_cbranch_scc0 Lrole_m" if lfirst else "s_cbranch_scc1 Lrole_d")
def role(cls, srd, k, prio):
    A.stamp_begin()
    if opt.get(prio): A(f"s_setprio {opt[prio]}")
    r = cfg(cls(A))
    r.run()
    A.stamp_end(srd, WS_STAMP + 0x20000 * k, 's2', 's5')
    A("s_endpgm")
    for st in r.stubs:
        for l_ in st: A(l_)
if not lfirst: role(U.M, 's[20:23]', 0, 'mprio')
A.label("Lrole_d")
if opt.get('cpf'):
    per = int(opt['cpf'])
    A("s_cmp_lg_u32 s5, 0")
    A("s_cbranch_scc1 Lnocpf")
    A("s_getpc_b64 s[8:9]")
    A.label("Lpc")
    A(f"s_sub_u32 s8, s8, Lpc-{KN}")
    A("s_subb_u32 s9, s9, 0")
    A("s_lshr_b32 s10, s2, 3")
    A(f"s_mul_i32 s10, s10, {per}")
    if per > 6: A(f"s_and_b32 s10, s10, 255")
    A("v_add_u32 v3, s10, v1")
    A(f"v_min_u32 v3, (Lexit-{KN})/128, v3")
    A("v_lshlrev_b32 v3, 7, v3")
    A("v_mov_b32 v5, s9")
    A("v_add_co_u32 v4, vcc, s8, v3")
    A("v_addc_co_u32 v5, vcc, 0, v5, vcc")
    A(f"s_mov_b64 exec, {(1 << per) - 1:#x}")
    A("global_load_dword v2, v[4:5], off")
    A("s_mov_b64 exec, -1")
    A.label("Lnocpf")
role(U.Lr, 's[44:47]', 1, 'lprio')
if lfirst:
    A(".p2align 6")
    A.label("Lrole_m")
    role(U.M, 's[20:23]', 0, 'mprio')
A.label("Lexit")
A("s_endpgm")
n = A.fix_hazards(verbose='-v' in sys.argv)
print("hazard pads:", n)
out = HDR
out += f"; @launch grid=(256,1,1) block=(512,1,1) lds={U.LDS_TOTAL}\n"
out += '.amdgcn_target "amdgcn-amd-amdhsa--gfx950"\n.text\n' + A.text()
out += f'''.section .rodata,"a"
.p2align 6
.amdhsa_kernel {KN}
  .amdhsa_next_free_vgpr 256
  .amdhsa_next_free_sgpr {102 if A.stamps else 64}
  .amdhsa_accum_offset 256
  .amdhsa_group_segment_fixed_size 0
  .amdhsa_kernarg_size 120
  .amdhsa_user_sgpr_count 2
  .amdhsa_user_sgpr_kernarg_segment_ptr 1
  .amdhsa_system_sgpr_workgroup_id_x 1
.end_amdhsa_kernel
'''
open(sys.argv[1], "w").write(out)
```

```python
from layout import *
from asmlib import Queue

SPIN = 200000
NOUY = 0
W1_SIZE = 512 * 1376 * 2
OOB = 0x7ff00000
SLOT = 28672
XOFF = 12288
L_B = 3 * SLOT
KREV_SZ = 4576
TROW = 528
CPY = 4160
L_TAB = 0
L_U = L_B
L_PART = L_U
L_BX = L_U + 8 * CPY
L_MISC = L_BX + 32768
L_SB = L_MISC
L_CNT = L_MISC + 768
L_KREV = L_MISC + 1024
L_LN = L_KREV
LDS_TOTAL = 163840
def slot_of(s): return ((s + 1) % 3) * SLOT
NST = 11
W2AREA = {0: L_BX, 1: L_BX + 16384, 2: 65536, 3: 0, 4: 16384, 5: 32768, 6: 49152, 7: L_BX, 8: L_BX + 16384, 9: 65536, 10: 0}
HINC = [1]*8 + [248] + [2]*4 + [248, 4, 4, 248, 4, 4, 248, 8, 248, 8, 248, 8, 248, 8] + [8]*4
C_LN, C_EX, C_BUILT, C_CVD, C_PART, C_Y, C_TABW, C_TABF, C_U, C_FIN, C_TAG = range(0, 44, 4)
C_FULL, C_FREE = 64, 80
sID, sW, sTAG, sQ = 's4', 's5', 's6', 's7'
sRB, sCB, sRB2, sDB, sM2 = 's34', 's35', 's48', 's49', 's52'
vLANE = 'v1'

class Role:
    def __init__(self, A):
        self.A = A
        self.vm = Queue(A, 'vmcnt', 63); self.lg = Queue(A, 'lgkmcnt', 15)
        self.stubs = []
    def emit(self, op):
        lines, q, tag = op
        for l in lines: self.A(l)
        if q is not None: q.push(tag)
    def V(self, line, tag): self.A(line); self.vm.push(tag)
    def L(self, line, tag): self.A(line); self.lg.push(tag)
    def soft_arrive(self, off, vc, vt):
        A = self.A
        A(f"v_mov_b32 v{vt}, 1")
        A(f"s_mov_b64 exec, 1")
        self.L(f"ds_add_u32 v{vc}, v{vt} offset:{off}", 'sa')
        A(f"s_mov_b64 exec, -1")
    def soft_wait(self, name, off, target, vc, vt, slp=0):
        A = self.A
        A(f"s_mov_b32 s42, {SPIN*8}")
        A.label(f"L{name}")
        A(f"ds_read_b32 v{vt}, v{vc} offset:{off}")
        A(f"s_waitcnt lgkmcnt(0)")
        A(f"v_readfirstlane_b32 s3, v{vt}")
        A(f"s_sub_u32 s42, s42, 1")
        A(f"s_cbranch_scc1 L{name}_ok")
        A(f"s_cmp_ge_u32 s3, {target}")
        A(f"s_cbranch_scc1 L{name}_ok")
        if slp: A(f"s_sleep {slp}")
        A(f"s_branch L{name}")
        A.label(f"L{name}_ok")
        self.lg.q = []
    def post_word(self, vaddr, off, val, vt):
        A = self.A
        A(f"v_mov_b32 v{vt}, {val}")
        A(f"s_mov_b64 exec, 1")
        self.L(f"ds_write_b32 v{vaddr}, v{vt} offset:{off}", 'sa')
        A(f"s_mov_b64 exec, -1")
    def ids(self):
        A = self.A
        A(f"s_and_b32 s3, {sID}, 7")
        A(f"s_lshr_b32 {sQ}, {sID}, 3")
        A(f"s_lshl_b32 s43, s3, 5")
        A(f"s_add_u32 {sQ}, {sQ}, s43")
        A(f"s_bfe_u32 s34, {sID}, 0x10003")
        A(f"s_lshl_b32 s43, s3, 1")
        A(f"s_add_u32 s34, s34, s43")
        A(f"s_lshr_b32 s35, {sID}, 4")
        A(f"s_bfe_u32 s48, {sID}, 0x20003")
        A(f"s_lshl_b32 s43, s3, 2")
        A(f"s_add_u32 s48, s48, s43")
        A(f"s_lshr_b32 s49, {sID}, 5")
        A(f"s_lshl_b32 s52, {sW}, 12")

    def w2_src(self, vD, t0, t1, t2):
        A = self.A
        A(f"v_lshrrev_b32 v{t0}, 3, {vLANE}")
        A(f"v_and_b32 v{t1}, 7, {vLANE}")
        A(f"v_bfe_u32 v{t2}, {vLANE}, 4, 1")
        A(f"v_lshlrev_b32 v{t2}, 2, v{t2}")
        A(f"v_xor_b32 v{t1}, v{t1}, v{t2}")
        A(f"v_lshlrev_b32 v{t1}, 4, v{t1}")
        A(f"v_lshl_add_u32 v{t1}, v{t0}, 10, v{t1}")
        A(f"s_lshl_b32 s3, s49, 7")
        A(f"v_add_u32 v{vD}, s3, v{t1}")
        for i in (1, 2, 3): A(f"v_add_u32 v{vD+i}, {7168*i}, v{vD}")
        A(f"s_mul_i32 s50, {sW}, {NST*32768}")
    def w2_ops(self, st, vD, W2):
        return [([f"s_add_u32 m0, s52, {W2AREA[st]}", f"s_add_u32 s53, s50, {st*32768}"][:2 if i == 0 else 0]
                 + [f"buffer_load_dwordx4 v{vD+i}, {W2}, s53 offen offset:{1024*i} lds"], self.vm, ('w2', st)) for i in range(4)]

class M(Role):
    y_at = 8
    y_per = 2
    h_sleep = 2
    HD = 4
    n_early = 3
    t0_first = 0
    e0 = 18
    xl_at = 22
    st_at = 17
    w2_gate = 0
    osc = 'nt'
    sent = 0
    early_gate = 1
    w_by_l = 0
    poll_at = 1
    wait_built = 1
    h_first = 0
    w_pre = 2
    h_delay = 0
    x_at = 21
    def run(self):
        A = self.A; vm = self.vm; lg = self.lg; E = self.emit; V = self.V; L = self.L
        X, W2, WS, OUT, B1 = 's[8:11]', 's[16:19]', 's[20:23]', 's[24:27]', 's[28:31]'
        pB2 = 's[32:33]'
        sc = 'sc1'
        vXA, vWA, vONE, vSA, vB1, vACC, vWB, vXB = 12, 16, 20, 24, 28, 32, 80, 104
        vX, vS2, vOF = 192, 204, 208
        vST, vEX, vFU = 112, 116, 132
        vRA, vMS, vCN, vTM, vDS = 240, 246, 250, 251, 252
        A(f"s_load_dwordx2 s[8:9], s[0:1], 0")
        A(f"s_load_dwordx2 s[20:21], s[0:1], 112")
        A(f"s_load_dwordx2 s[28:29], s[0:1], 72")
        A(f"s_load_dwordx2 s[32:33], s[0:1], 88")
        A(f"s_load_dwordx2 s[16:17], s[0:1], 80")
        A(f"s_load_dwordx2 s[24:25], s[0:1], 96")
        self.ids()
        for base, size in ((8, 0x200000), (20, WS_SIZE), (16, W1_SIZE), (24, 0x200000), (28, 2752)):
            A(f"s_mov_b32 s{base+2}, {size}")
            A(f"s_mov_b32 s{base+3}, 0x20000")
        A(f"s_lshl_b32 s3, {sQ}, 13")
        A(f"s_lshl_b32 s43, {sW}, 11")
        A(f"s_add_u32 s3, s3, s43")
        vLO, vLW, vLR, vL3 = 136, 137, 138, 139
        R = 140; F = 32; T = 48
        A(f"v_lshl_add_u32 v{vLO}, {vLANE}, 4, s3")
        A(f"v_mov_b32 v{vST+3}, {WS_EP}")
        A(f"v_mov_b32 v{vCN}, {L_CNT}")
        A(f"v_mov_b32 v2, 0")
        A(f"v_lshl_add_u32 v3, {vLANE}, 2, v{vCN}")
        A(f"ds_write_b32 v3, v2")
        A(f"s_waitcnt lgkmcnt(0)")
        V(f"buffer_load_dwordx4 v[{R}:{R+3}], v{vLO}, {X}, 0 offen", 'lnx')
        V(f"buffer_load_dwordx4 v[{R+4}:{R+7}], v{vLO}, {X}, 0 offen offset:1024", 'lnx')
        V(f"buffer_load_dword v{vST+3}, v{vST+3}, {WS}, 0 offen sc1", 'ep')
        A(f"s_barrier")
        A(f"s_cmp_eq_u32 {sW}, 3")
        A(f"s_cselect_b32 s44, 0, {sW}")
        A(f"s_add_u32 s45, s44, 1")
        A(f"s_cmp_eq_u32 s45, 3")
        A(f"s_cselect_b32 s45, 0, s45")
        A(f"s_add_u32 s46, s45, 1")
        A(f"s_cmp_eq_u32 s46, 3")
        A(f"s_cselect_b32 s46, 0, s46")
        A(f"v_lshrrev_b32 v30, 4, {vLANE}")
        A(f"v_and_b32 v19, 31, {vLANE}")
        A(f"v_bfe_u32 v31, {vLANE}, 1, 3")
        A(f"v_lshrrev_b32 v11, 5, {vLANE}")
        A(f"v_xor_b32 v31, v31, v11")
        A(f"v_lshlrev_b32 v31, 4, v31")
        A(f"v_lshl_add_u32 v31, v19, 7, v31")
        A(f"s_add_u32 s3, {sM2}, {XOFF}")
        A(f"v_add_u32 v{vXA}, s3, v31")
        for k in (1, 2, 3): A(f"v_xor_b32 v{vXA+k}, {32*k}, v{vXA}")
        A(f"v_bfe_u32 v3, {vLANE}, 2, 2")
        A(f"v_lshl_add_u32 v2, v11, 3, v3")
        A(f"v_mul_u32_u24 v2, 192, v2")
        A(f"v_and_b32 v31, 1, v30")
        A(f"v_lshl_add_u32 v2, v31, 5, v2")
        A(f"v_and_b32 v29, 3, {vLANE}")
        A(f"v_lshl_add_u32 v2, v29, 3, v2")
        for i in range(3): A(f"v_lshl_add_u32 v{vWA+i}, s{44+i}, 6, v2")
        for i in range(3): A(f"v_add_u32 v{4+i}, {2*SLOT}, v{vWA+i}")
        A(f"v_lshl_add_u32 v2, v11, 2, v3")
        A(f"v_lshlrev_b32 v2, 7, v2")
        A(f"v_xor_b32 v31, {sW}, v31")
        A(f"v_and_b32 v8, 2, v3")
        A(f"v_xor_b32 v31, v31, v8")
        A(f"v_lshl_add_u32 v2, v31, 5, v2")
        A(f"v_lshl_add_u32 v2, v29, 3, v2")
        A(f"v_add_u32 v{vRA}, {sM2}, v2")
        A(f"v_xor_b32 v{vRA+1}, 64, v{vRA}")
        A(f"v_add_u32 v{vRA+2}, 65536, v{vRA}")
        A(f"v_add_u32 v{vRA+3}, 65536, v{vRA+1}")
        A(f"v_add_u32 v{vRA+4}, {L_BX}, v{vRA}")
        A(f"v_add_u32 v{vRA+5}, {L_BX}, v{vRA+1}")
        LNROW = 1088; STS = 8 * LNROW
        A(f"v_mul_u32_u24 v{vLR}, {LNROW}, v3")
        A(f"v_xor_b32 v3, v3, v30")
        A(f"v_and_b32 v3, 1, v3")
        A(f"v_cmp_eq_u32 vcc, 0, v3")
        A(f"v_mov_b32 v31, 0x3f803f80")
        A(f"s_mul_i32 s3, {sW}, {2*LNROW}")
        A(f"s_add_u32 s3, s3, {L_LN}")
        A(f"v_lshl_add_u32 v{vLW}, {vLANE}, 4, s3")
        for i in range(4): A(f"v_cndmask_b32 v{vONE+i}, 0, v31, vcc")
        A(f"v_lshl_add_u32 v{vLR}, v30, 5, v{vLR}")
        A(f"v_lshl_add_u32 v{vLR}, v29, 3, v{vLR}")
        A(f"s_lshl_b32 s3, {sW}, 8")
        A(f"s_add_u32 s3, s3, {L_LN}")
        A(f"v_add_u32 v{vLR}, s3, v{vLR}")
        self.w2_src(vDS, 2, 3, 8)
        A(f"v_mov_b32 v{T+12}, 0x3b000000")
        vm.need(['lnx', 'ep'])
        A.stamp('ln loaded')
        A(f"v_readfirstlane_b32 {sTAG}, v{vST+3}")
        for r in range(2):
            for i in range(4):
                A(f"v_lshlrev_b32 v{F+8*r+2*i}, 16, v{R+4*r+i}")
                A(f"v_and_b32 v{F+8*r+2*i+1}, 0xffff0000, v{R+4*r+i}")
        A(f"s_or_b32 {sTAG}, {sTAG}, 1")
        A(f"s_add_u32 {sTAG}, {sTAG}, {TAG_INC:#x}")
        for r in range(2):
            b = F + 8 * r
            A(f"v_pk_add_f32 v[{T+4*r}:{T+4*r+1}], v[{b}:{b+1}], v[{b+2}:{b+3}]")
            A(f"v_pk_mul_f32 v[{T+4*r+2}:{T+4*r+3}], v[{b}:{b+1}], v[{b}:{b+1}]")
        for i in (1, 2, 3):
            for r in range(2):
                b = F + 8 * r + 2 * i
                if i >= 2: A(f"v_pk_add_f32 v[{T+4*r}:{T+4*r+1}], v[{T+4*r}:{T+4*r+1}], v[{b}:{b+1}]")
                A(f"v_pk_fma_f32 v[{T+4*r+2}:{T+4*r+3}], v[{b}:{b+1}], v[{b}:{b+1}], v[{T+4*r+2}:{T+4*r+3}]")
        for k in range(4): A(f"v_add_f32 v{T+8+k}, v{T+2*k}, v{T+2*k+1}")
        for ctl in ("row_shr:1 row_mask:0xf bank_mask:0xf bound_ctrl:0", "row_shr:2 row_mask:0xf bank_mask:0xf bound_ctrl:0",
                    "row_shr:4 row_mask:0xf bank_mask:0xf bound_ctrl:0", "row_shr:8 row_mask:0xf bank_mask:0xf bound_ctrl:0",
                    "row_bcast:15 row_mask:0xa bank_mask:0xf", "row_bcast:31 row_mask:0xc bank_mask:0xf"):
            for k in range(4): A(f"v_add_f32_dpp v{T+8+k}, v{T+8+k}, v{T+8+k} {ctl}")
        for k in range(4): A(f"v_readlane_b32 s{56+k}, v{T+8+k}, 63")
        Mn, Vv, P = T, T + 2, T + 4
        for r in range(2):
            A(f"v_mul_f32 v{Mn+r}, s{56+2*r}, v{T+12}")
            A(f"v_mul_f32 v{Vv+r}, s{57+2*r}, v{T+12}")
        for r in range(2): A(f"v_fma_f32 v{Vv+r}, -v{Mn+r}, v{Mn+r}, v{Vv+r}")
        for r in range(2): A(f"v_max_f32 v{Vv+r}, 0, v{Vv+r}")
        for r in range(2): A(f"v_cvt_pk_bf16_f32 v{P+r}, v{Mn+r}, v{Vv+r}")
        for r in range(2): A(f"v_and_b32 v{Vv+r}, 0xffff0000, v{P+r}")
        for r in range(2): A(f"v_add_f32 v{Vv+r}, 0x3727c5ac, v{Vv+r}")
        A(f"v_cvt_pk_bf16_f32 v{P+2}, v{Vv}, v{Vv+1}")
        A(f"v_lshlrev_b32 v{Vv}, 16, v{P+2}")
        A(f"v_and_b32 v{Vv+1}, 0xffff0000, v{P+2}")
        for r in range(2): A(f"v_sqrt_f32 v{Vv+r}, v{Vv+r}")
        for r in range(2): A(f"v_lshlrev_b32 v{Mn+r}, 16, v{P+r}")
        Gq = 148
        for r in range(2):
            A(f"v_cvt_pk_bf16_f32 v{Gq+2*r}, v{Mn+r}, v{Vv+r}")
            A(f"v_mov_b32 v{Gq+2*r+1}, {sTAG}")
        for r in range(2): A(f"v_and_b32 v{Vv+r}, 0xffff0000, v{Gq+2*r}")
        RS = T + 14
        for r in range(2): A(f"v_rcp_f32 v{RS+2*r}, v{Vv+r}")
        A(f"s_lshl_b32 s3, {sW}, 4")
        A(f"s_add_u32 s3, s3, {L_LN}")
        A(f"v_mov_b32 v{vL3}, s3")
        A(f"s_mov_b64 exec, 1")
        L(f"ds_write_b128 v{vL3}, v[{Gq}:{Gq+3}] offset:{STS}", 'lnw')
        L(f"ds_write_b32 v{vCN}, v{Gq+1} offset:{C_TAG}", 'lnw')
        A(f"s_mov_b64 exec, -1")
        for r in range(2): A(f"v_mul_f32_e64 v{RS+2*r+1}, -v{Mn+r}, v{RS+2*r}")
        for r in range(2):
            for i in range(4):
                b = F + 8 * r + 2 * i
                A(f"v_pk_fma_f32 v[{b}:{b+1}], v[{b}:{b+1}], v[{RS+2*r}:{RS+2*r+1}], v[{RS+2*r}:{RS+2*r+1}] op_sel:[0,0,1] op_sel_hi:[1,0,1]")
            for i in range(4):
                b = F + 8 * r + 2 * i
                A(f"v_cvt_pk_bf16_f32 v{R+4*r+i}, v{b}, v{b+1}")
            L(f"ds_write_b128 v{vLW}, v[{R+4*r}:{R+4*r+3}] offset:{LNROW*r}", 'lnw')
        self.soft_arrive(C_LN, vCN, vTM)
        A(f"v_lshlrev_b32 v7, 4, {vLANE}")
        A(f"v_add_u32 v{vLW}, {L_LN}, v7")
        A(f"s_lshl_b32 s55, {sQ}, 7")
        A(f"s_add_u32 s54, s55, {WS_ST}")
        A(f"s_lshl_b32 s55, {sQ}, 2")
        A(f"s_add_u32 s55, s55, {WS_FU}")
        self.soft_wait("m_ln", C_LN, 4, vCN, vTM)
        for i in range(2):
            L(f"ds_read_b64_tr_b16 v[{R+4*i}:{R+4*i+1}], v{vLR} offset:{128*i}", 'lnr')
            L(f"ds_read_b64_tr_b16 v[{R+4*i+2}:{R+4*i+3}], v{vLR} offset:{128*i+4*LNROW}", 'lnr')
        L(f"ds_read_b128 v[{Gq}:{Gq+3}], v{vLW} offset:{STS}", 'lnr')
        A(f"s_cmp_eq_u32 {sW}, 0")
        lg.need('lnr')
        A(f"s_cbranch_scc0 Lm_nost")
        A(f"s_mov_b64 exec, 15")
        A(f"buffer_store_dwordx4 v[{Gq}:{Gq+3}], v7, {WS}, s54 offen sc1")
        A(f"s_mov_b64 exec, -1")
        A.label("Lm_nost")
        V(f"buffer_store_dwordx4 v[{R}:{R+3}], v{vLO}, {WS}, 0 offen sc1", 'ust')
        V(f"buffer_store_dwordx4 v[{R+4}:{R+7}], v{vLO}, {WS}, 0 offen offset:1024 sc1", 'ust')
        A(f"v_lshlrev_b32 v29, 1, v19")
        A(f"s_mul_i32 s3, {sCB}, 192")
        A(f"s_lshl_b32 s43, s44, 6")
        A(f"s_add_u32 s3, s3, s43")
        V(f"buffer_load_ushort v{vB1}, v29, {B1}, s3 offen", 'b1')
        A.stamp('ln done')
        def rd_ops(i):
            s, ks = i >> 2, i & 3
            so = slot_of(s)
            xr = vXB + 4 * (i & 1)
            ops = [([f"ds_read_b128 v[{xr}:{xr+3}], v{vXA+ks} offset:{so}"], lg, ('f', i, 0))]
            base, off = (vWA, so) if so < 2 * SLOT else (4, 0)
            off += ks * 3072
            for t in range(3):
                r = vWB + 12 * (i & 1) + 4 * t
                ops.append(([f"ds_read_b64_tr_b16 v[{r}:{r+1}], v{base+t} offset:{off}"], lg, ('f', i, t)))
                ops.append(([f"ds_read_b64_tr_b16 v[{r+2}:{r+3}], v{base+t} offset:{off+768}"], lg, ('f', i, t)))
            return ops
        A(f"s_mov_b32 s41, {SPIN*8}")
        A(f"s_barrier")
        A.stamp('g1 st0')
        for o in rd_ops(0): E(o)
        A(f"v_and_b32 v{vST+2}, 24, v19")
        A(f"v_add_lshl_u32 v{vST+2}, v{vST+2}, v19, 3")
        A(f"s_lshl_b32 s3, {sRB}, 11")
        A(f"s_lshl_b32 s43, {sW}, 9")
        A(f"s_add_u32 s47, s3, s43")
        A(f"s_add_u32 s47, s47, {WS_ST}")
        for i in range(32):
            s, ks = i >> 2, i & 3
            nxt = rd_ops(i + 1) if i < 31 else []
            x = vXB + 4 * (i & 1)
            cuts = [(0, 3), (3, 5), (5, 7)]
            for t in range(3):
                lg.need(('f', i, t))
                r = vWB + 12 * (i & 1) + 4 * t
                a = vACC + 16 * t
                c = '0' if i == 0 else f"v[{a}:{a+15}]"
                A(f"v_mfma_f32_32x32x16_bf16 v[{a}:{a+15}], v[{r}:{r+3}], v[{x}:{x+3}], {c}")
                if t == 0 and ks == 3 and s < 7:
                    A.stamp(f'_A{s}')
                    if s == self.u_at: vm.need('ust')
                    lg.drain()
                    A(f"s_barrier")
                    A.stamp(f'_B{s}')
                    if s == self.u_at:
                        A(f"s_cmp_eq_u32 {sW}, 0")
                        A(f"s_cbranch_scc1 Lm_pu")
                        A.label("Lm_pu_ok")
                        self.stubs.append(["Lm_pu:", f"v_mov_b32 v2, {sTAG}", f"v_mov_b32 v3, 0", f"s_mov_b64 exec, 1", f"buffer_store_dword v2, v3, {WS}, s55 offen sc1",
                                           f"s_mov_b64 exec, -1", f"s_branch Lm_pu_ok"])
                for o in nxt[cuts[t][0]:cuts[t][1]]: E(o)
            r = vWB + 12 * (i & 1)
            c = '0' if i == 0 else f"v[{vSA}:{vSA+3}]"
            A(f"v_mfma_f32_16x16x32_bf16 v[{vSA}:{vSA+3}], v[{vONE}:{vONE+3}], v[{r}:{r+3}], {c}")
            if i == self.st_at:
                V(f"buffer_load_dwordx2 v[{vST}:{vST+1}], v{vST+2}, {WS}, s47 offen {sc}", 'st')
            if i == self.e0:
                A(f"v_lshlrev_b32 v{vOF}, 10, v19")
                A(f"v_lshl_add_u32 v{vOF}, v11, 4, v{vOF}")
                A(f"s_lshl_b32 s3, {sRB2}, 16")
                A(f"s_lshl_b32 s43, {sDB}, 7")
                A(f"s_lshl_b32 s40, {sW}, 5")
                A(f"s_add_u32 s43, s43, s40")
                A(f"s_add_u32 s3, s3, s43")
                A(f"v_add_u32 v{vOF}, s3, v{vOF}")
                A(f"v_add_u32 v{vOF+1}, 32768, v{vOF}")
                A(f"v_lshl_add_u32 v2, v11, 3, s43")
                A(f"s_lshl_b32 s39, {sRB2}, 10")
                A(f"s_add_u32 s39, s39, {WS_ST}")
                V(f"global_load_dwordx2 v[{vX+8}:{vX+9}], v2, {pB2}", 'st')
                V(f"global_load_dwordx2 v[{vX+10}:{vX+11}], v2, {pB2} offset:16", 'st')
            if i == self.x_at:
                V(f"buffer_load_dwordx2 v[{vS2}:{vS2+1}], v{vST+2}, {WS}, s39 offen {sc}", 'st')
                V(f"buffer_load_dwordx2 v[{vS2+2}:{vS2+3}], v{vST+2}, {WS}, s39 offen offset:512 {sc}", 'st')
            if i == self.xl_at: V(f"buffer_load_dwordx4 v[{vX}:{vX+3}], v{vOF}, {X}, 0 offen", 'st')
            if i == self.xl_at + 1: V(f"buffer_load_dwordx4 v[{vX+4}:{vX+7}], v{vOF+1}, {X}, 0 offen", 'st')
            if i == self.e0 + 1 and self.sent:
                A(f"v_and_b32 v2, 3, {vLANE}")
                A(f"v_lshlrev_b32 v2, 3, v2")
                A(f"v_lshrrev_b32_e64 v2, v2, {sTAG}")
                for j in range(4):
                    A(f"v_lshlrev_b32 v3, {15 - 2*j}, v2")
                    A(f"v_and_b32 v3, 0x8000, v3")
                    A(f"v_lshlrev_b32 v{vMS+j}, {30 - 2*j}, v2")
                    A(f"v_and_b32 v{vMS+j}, 0x80000000, v{vMS+j}")
                    A(f"v_or_b32 v{vMS+j}, v{vMS+j}, v3")
            if i == self.e0 + 1 and not self.sent:
                A(f"s_lshl_b32 s3, {sRB}, 1")
                A(f"s_lshr_b32 s43, {sW}, 1")
                A(f"s_add_u32 s3, s3, s43")
                A(f"s_lshl_b32 s3, s3, 5")
                A(f"s_lshl_b32 s43, {sCB}, 1")
                A(f"s_add_u32 s3, s3, s43")
                A(f"s_and_b32 s43, {sW}, 1")
                A(f"s_add_u32 s3, s3, s43")
                A(f"s_lshl_b32 s3, s3, 7")
                A(f"s_add_u32 s38, s3, {WS_FH}")
                def msk(w):
                    lo = (22 * w) // 6; hi = min((22 * w + 21) // 6, 14)
                    return sum(3 << (2 * c) for c in range(lo, hi + 1))
                A(f"s_mov_b32 s37, {msk(0):#x}")
                for w in (1, 2, 3):
                    A(f"s_cmp_eq_u32 {sW}, {w}")
                    A(f"s_cselect_b32 s37, {msk(w):#x}, s37")
                A(f"s_lshl_b32 s36, {sRB2}, 12")
                A(f"s_add_u32 s36, s36, {WS_FH}")
                A(f"v_lshlrev_b32 v{vMS}, 7, v19")
                A(f"v_mov_b32 v{vMS+1}, {sTAG}")
                A(f"v_mov_b32 v{vMS+2}, 0")
                A(f"v_lshl_add_u32 v{vMS+3}, {sW}, 2, v{vCN}")
            if i == self.e0 + 3:
                A(f"s_lshl_b32 s3, {sRB}, 2")
                A(f"s_add_u32 s3, s3, {sW}")
                A(f"s_mul_i32 s3, s3, {HK}")
                A(f"s_lshl_b32 s3, s3, 10")
                A(f"s_add_u32 s3, s3, {WS_H}")
                A(f"s_mul_i32 s43, {sCB}, 3")
                A(f"v_lshlrev_b32 v2, 3, v19")
                A(f"v_add_u32 v2, {L_SB}, v2")
                for k in range(3): A(f"v_lshl_add_u32 v{8+k}, s{44+k}, 8, v2")
                for k in range(3):
                    A(f"s_add_u32 s{44+k}, s{44+k}, s43")
                    A(f"s_cmp_lt_u32 s{44+k}, 43")
                    A(f"s_cselect_b32 s54, s3, {OOB:#x}")
                    A(f"s_lshl_b32 s{44+k}, s{44+k}, 11")
                    A(f"s_add_u32 s{44+k}, s{44+k}, s54")
            if i == self.e0 + 4:
                for k in range(16): A(f"v_mov_b32 v{vEX+k}, 0")
            if i == 29:
                vm.need(['st', 'b1'])
                A.label("Lg1_st")
                A(f"v_cmp_ne_u32 vcc, {sTAG}, v{vST+1}")
                A(f"s_cbranch_vccnz Lg1_st_r")
                A.label("Lg1_st_ok")
                self.stubs.append(["Lg1_st_r:", f"s_sub_u32 s41, s41, 8", f"s_cbranch_scc1 Lg1_st_ok", f"s_sleep 4",
                                   f"buffer_load_dwordx2 v[{vST}:{vST+1}], v{vST+2}, {WS}, s47 offen {sc}", f"s_waitcnt vmcnt(0)", f"s_branch Lg1_st"])
                vBX = vEX + 12
                A(f"v_xor_b32 v{vBX+1}, 0x8000, v{vST}")
                A(f"v_alignbit_b32 v{vBX}, v{vBX+1}, v{vBX+1}, 16")
                A(f"v_and_b32 v{vBX+1}, 0xffff, v{vBX+1}")
        A.stamp('g1 loop end')
        vBX = vEX + 12
        A(f"v_cvt_pk_bf16_f32 v2, v{vSA}, v{vSA}")
        A(f"v_and_b32 v2, 0xffff0000, v2")
        A(f"v_sub_f32 v3, v{vSA}, v2")
        A(f"s_mov_b32 exec_hi, 0")
        A(f"v_cvt_pk_bf16_f32 v{vEX+1}, v3, v{vBX+2}")
        A(f"v_or_b32 v{vEX}, v2, v{vB1}")
        L(f"ds_write_b64 v8, v[{vEX}:{vEX+1}]", 'exw')
        A(f"s_mov_b32 exec_hi, -1")
        A(f"v_mfma_f32_32x32x16_bf16 v[{vACC}:{vACC+15}], v[{vEX}:{vEX+3}], v[{vBX}:{vBX+3}], v[{vACC}:{vACC+15}]")
        vH0, vH1, vA2, vHF, HD = 7, 6, 32, 96, self.HD
        A(f"v_add_u32 v{vH1}, {HK*1024}, v{vH0}")
        A(f"v_mov_b32 v4, v{vOF}")
        A(f"v_mov_b32 v5, v{vOF+1}")
        def tile(k):
            a = vACC + 16 * k
            for half in range(2):
                for p in range(8 * half, 8 * half + 8): A(f"v_mul_f32_e64 v{a+p}, v{a+p}, |v{a+p}|")
                for p in range(4 * half, 4 * half + 4): A(f"v_cvt_pk_bf16_f32 v{a+p}, v{a+2*p}, v{a+2*p+1}")
                for p in range(4 * half, 4 * half + 4): A(f"v_pk_max_i16 v{a+p}, v{a+p}, 0")
                if self.sent:
                    for p in range(4 * half, 4 * half + 4): A(f"v_or_b32 v{a+p}, v{a+p}, v{vMS + (p & 3)}")
                V(f"buffer_store_dwordx4 v[{a+4*half}:{a+4*half+3}], v7, {WS}, s{44+k} offen offset:{1024*half} {sc}", 'hst')
        if self.t0_first: tile(0)
        lg.drain()
        A(f"s_barrier")
        A(f"s_mov_b32 exec_hi, 0")
        for k in (1, 2): L(f"ds_read_b64 v[{vEX+4*k}:{vEX+4*k+1}], v{8+k}", ('exr', k))
        A(f"s_mov_b32 exec_hi, -1")
        for k in (1, 2):
            lg.need(('exr', k))
            a = vACC + 16 * k
            A(f"v_mfma_f32_32x32x16_bf16 v[{a}:{a+15}], v[{vEX+4*k}:{vEX+4*k+3}], v[{vBX}:{vBX+3}], v[{a}:{a+15}]")
        if not self.t0_first: tile(0)
        tile(1); tile(2)
        A.stamp('g1 stored')
        W = lambda st: self.w2_ops(st, vDS, W2)
        if not self.w2_gate:
            for o in W(2): E(o)
        A(f"s_mul_i32 s51, {sRB2}, {2*HK*1024}")
        A(f"s_mul_i32 s3, {sW}, {NST*2048}")
        A(f"s_add_u32 s51, s51, s3")
        A(f"s_add_u32 s51, s51, {WS_H}")
        A(f"s_add_u32 s55, s51, {10*2048}")
        A(f"s_cmp_eq_u32 {sW}, 3")
        A(f"s_cselect_b32 s55, {OOB:#x}, s55")
        WREG = {0: 160, 1: 176, 2: 192}
        def rd2_ops(p, kk):
            ar = W2AREA[p]; ops = []; dst = (WREG[p] + 8 * kk) if p in WREG else treg(p, kk)
            a, off = (vRA, ar) if ar < 65536 else ((vRA + 2, ar - 65536) if ar < L_BX else (vRA + 4, ar - L_BX))
            off += kk * 2048
            for dt in range(2):
                r = dst + 4 * dt
                ops.append(([f"ds_read_b64_tr_b16 v[{r}:{r+1}], v{a+dt} offset:{off}"], lg, ('t', p, kk)))
                ops.append(([f"ds_read_b64_tr_b16 v[{r+2}:{r+3}], v{a+dt} offset:{off+1024}"], lg, ('t', p, kk)))
            return ops
        for o in rd2_ops(0, 0) + rd2_ops(0, 1): E(o)
        A(f"v_lshlrev_b32 v12, 3, v19")
        A(f"v_lshl_add_u32 v28, v11, 15, v12")
        A(f"v_and_b32 v13, 1, {vLANE}")
        A(f"v_lshlrev_b32 v13, 4, v13")
        A(f"v_lshrrev_b32_e64 v29, v13, {sTAG}")
        A(f"v_lshrrev_b32 v31, 8, v29")
        A.label("Lg2_st")
        A(f"v_xor_b32 v14, {sTAG}, v{vS2+1}")
        A(f"v_xor_b32 v30, {sTAG}, v{vS2+3}")
        A(f"v_or_b32 v14, v14, v30")
        A(f"v_cmp_ne_u32 vcc, 0, v14")
        A(f"s_cbranch_vccnz Lg2_st_r")
        A.label("Lg2_st_ok")
        self.stubs.append(["Lg2_st_r:", f"s_sub_u32 s41, s41, 8", f"s_cbranch_scc1 Lg2_st_ok", f"s_sleep 4",
                           f"buffer_load_dwordx2 v[{vS2}:{vS2+1}], v{vST+2}, {WS}, s39 offen {sc}", f"buffer_load_dwordx2 v[{vS2+2}:{vS2+3}], v{vST+2}, {WS}, s39 offen offset:512 {sc}",
                           f"s_waitcnt vmcnt(0)", f"s_branch Lg2_st"])
        def ldh_ops(p, kk):
            r = vHF + 16 * (p % HD) + 8 * kk
            so = 's55' if p == 10 else 's43'
            return [([f"s_add_u32 s43, s51, {p*2048}"][:(1 - tt) if p < 10 else 0] +
                     [f"buffer_load_dwordx4 v[{r+4*tt}:{r+4*tt+3}], v{[vH0, vH1][tt]}, {WS}, {so} offen offset:{1024*kk} {sc}"], vm, ('h', p, kk)) for tt in range(2)]
        for tt in range(2):
            b = vX + 4 * tt
            A(f"v_permlane32_swap_b32 v{b}, v{b+2}")
            A(f"v_permlane32_swap_b32 v{b+1}, v{b+3}")
        for tt in range(2):
            A(f"v_and_b32 v{8+tt}, 0xffff0000, v{vS2+2*tt}")
            A(f"v_mul_f32 v{8+tt}, v{8+tt}, v{8+tt}")
            A(f"v_rcp_f32 v{2+tt}, v{8+tt}")
        lg.drain()
        for o in rd2_ops(1, 0) + rd2_ops(1, 1): E(o)
        for j in range(4):
            A(f"v_lshlrev_b32 v{80+2*j}, 16, v{vX+8+j}")
            A(f"v_and_b32 v{81+2*j}, 0xffff0000, v{vX+8+j}")
        for tt in range(2):
            a = vA2 + 16 * tt
            for j in range(4):
                A(f"v_lshlrev_b32 v{a+2*j}, 16, v{vX+4*tt+j}")
                A(f"v_and_b32 v{a+2*j+1}, 0xffff0000, v{vX+4*tt+j}")
            for j in range(8): A(f"v_add_f32 v{a+j}, v{a+j}, v{80+j}")
            for j in range(8): A(f"v_mul_f32 v{a+j}, v{a+j}, v{8+tt}")
            for j in range(8, 16): A(f"v_mov_b32 v{a+j}, 0")
        A(f"s_lshl_b32 s3, {sDB}, 19")
        A(f"s_lshl_b32 s44, {sW}, 17")
        A(f"s_add_u32 s3, s3, s44")
        A(f"s_lshl_b32 s44, {sRB2}, 9")
        A(f"s_add_u32 s3, s3, s44")
        A(f"s_add_u32 s47, s3, {WS_YT}")
        if not self.sent:
            vm.need('hst')
            A(f"s_mov_b64 exec, 1")
            V(f"buffer_store_dword v{vMS+1}, v{vMS+2}, {WS}, s38 offen sc1", 'flag')
            A(f"s_mov_b64 exec, -1")
        A.stamp('g2 flag')
        if not self.w2_gate:
            vm.need(('w2', 2))
            lg.drain()
            for o in rd2_ops(2, 0) + rd2_ops(2, 1): E(o)
        pollop = ([f"s_mov_b32 exec_lo, s37", f"s_mov_b32 exec_hi, 0", f"buffer_load_dword v30, v{vMS}, {WS}, s36 offen sc1", f"s_mov_b64 exec, -1"], vm, 'poll')
        lg.drain()
        if self.w2_gate:
            del WREG[2]
            seq = [2, 7, 8]
        else: seq = [7, 8, 9]
        early = seq[:self.n_early]
        if self.early_gate: self.soft_wait("m_bu", C_U, 4, vCN, vTM, slp=2)
        for st_ in early:
            for o in W(st_): E(o)
        self.soft_wait("m_kd", C_BUILT, 4, vCN, vTM, slp=2)
        A.stamp('g2 kd')
        wq = sorted([3, 4, 5, 6] + seq[self.n_early:])
        grp = [W(wq.pop(0)) for _ in range(min(self.w_pre, len(wq)))]
        if not self.sent: grp.insert(self.poll_at, [pollop])
        for g_ in grp:
            for o in g_: E(o)
        wl = []
        for st_ in wq: wl += [W(st_)[:2], [(W(st_)[0][0][:2] + W(st_)[2][0], vm, ('w2', st_)), W(st_)[3]]]
        if not self.sent:
            vm.need('poll')
            A.label("Lg2_ph")
            A(f"v_cmp_ne_u32 vcc, {sTAG}, v30")
            A(f"s_and_b32 s3, vcc_lo, s37")
            A(f"s_cbranch_scc1 Lg2_ph_r")
            A.label("Lg2_ph_ok")
            self.stubs.append(["Lg2_ph_r:", f"s_sub_u32 s41, s41, 8", f"s_cbranch_scc1 Lg2_ph_ok", f"s_sleep 1", f"s_mov_b32 exec_lo, s3", f"s_mov_b32 exec_hi, 0",
                               f"buffer_load_dword v30, v{vMS}, {WS}, s36 offen sc1", f"s_mov_b64 exec, -1", f"s_waitcnt vmcnt(0)", f"s_branch Lg2_ph"])
        A.stamp('g2 h ok')
        for p in range(HD):
            for o in ldh_ops(p, 0) + ldh_ops(p, 1): E(o)
        vY = 224
        def ldy_ops():
            ops = []
            for q in range(2):
                for e2 in range(2):
                    for tt in range(2):
                        r = vY + 8 * tt + 4 * q + 2 * e2
                        ops.append(([f"s_add_u32 s44, s47, {(4*q+e2)*16384}"][:1 - tt] + [f"buffer_load_dwordx2 v[{r}:{r+1}], v28, {WS}, s44 offen offset:{256*tt} {sc}"], vm, 'y'))
            return ops
        def treg(p, kk): return [208, 216][(2 * p + kk) & 1]
        yq = ldy_ops()
        def check(p, kk):
            r = vHF + 16 * (p % HD) + 8 * kk
            vm.need(('h', p, kk))
            A.label(f"Lhc{p}_{kk}")
            for j in range(8): A(f"v_xor_b32 v{r+j}, v{r+j}, v{vMS + (j & 3)}")
            A(f"v_or3_b32 v15, v{r}, v{r+1}, v{r+2}")
            A(f"v_or3_b32 v14, v{r+3}, v{r+4}, v{r+5}")
            A(f"v_or3_b32 v15, v15, v{r+6}, v{r+7}")
            A(f"v_or_b32 v15, v15, v14")
            A(f"v_and_b32 v15, s40, v15")
            A(f"v_cmp_ne_u32 vcc, 0, v15")
            if p == 10:
                A(f"s_cmp_eq_u32 {sW}, 3")
                A(f"s_cbranch_scc1 Lhk{p}_{kk}")
            A(f"s_cbranch_vccnz Lhr{p}_{kk}")
            A.label(f"Lhk{p}_{kk}")
            self.stubs.append([f"Lhr{p}_{kk}:", f"s_sub_u32 s41, s41, 8", f"s_cbranch_scc1 Lhk{p}_{kk}", f"s_sleep {self.h_sleep}", f"s_add_u32 s3, s51, {p*2048}",
                          f"buffer_load_dwordx4 v[{r}:{r+3}], v{vH0}, {WS}, s3 offen offset:{1024*kk} {sc}",
                          f"buffer_load_dwordx4 v[{r+4}:{r+7}], v{vH1}, {WS}, s3 offen offset:{1024*kk} {sc}",
                          f"s_waitcnt vmcnt(0)", f"s_branch Lhc{p}_{kk}"])
        if self.sent:
            A(f"s_mov_b32 s40, 0x80008000")
            check(0, 0)
        for p in range(NST):
            for kk in range(2):
                np_, nkk = (p, 1) if kk == 0 else (p + 1, 0)
                rds = rd2_ops(np_, nkk) if (np_ < NST and np_ not in WREG) else []
                fill = []
                pp, pkk = (p, 0) if kk == 1 else (p - 1, 1)
                if pp >= 0 and pp + HD < NST: fill += ldh_ops(pp + HD, pkk)
                if (p, kk) == (3, 0) and self.w2_gate: wl += [W(9)[:2], [(W(9)[0][0][:2] + W(9)[2][0], vm, ('w2', 9)), W(9)[3]]]
                if (p, kk) == (4, 0): wl += [W(10)[:2], [(W(10)[0][0][:2] + W(10)[2][0], vm, ('w2', 10)), W(10)[3]]]
                if wl: fill += wl.pop(0)
                if p >= self.y_at and yq:
                    fill += yq[:self.y_per]; yq = yq[self.y_per:]
                if (p, kk) == (2, 0) and self.w_by_l: L(f"ds_read_b32 v15, v{vMS+3} offset:{C_FULL}", 'wf')
                vm.need(('h', p, kk))
                if p == 0 and kk == 0: A.stamp('g2 st0')
                if kk == 0: A.stamp(f'_P{p}')
                lg.need(('t', p, kk))
                w0 = (WREG[p] + 8 * kk) if p in WREG else treg(p, kk)
                last = (p == NST - 1 and kk == 1)
                n = 0
                for dt in ((1, 0) if last else (0, 1)):
                    for tt in range(2):
                        a = vA2 + 32 * dt + 16 * tt
                        w = w0 + 4 * dt
                        h = vHF + 16 * (p % HD) + 8 * kk + 4 * tt
                        c = '0' if (p == 0 and kk == 0 and dt == 1) else f"v[{a}:{a+15}]"
                        A(f"v_mfma_f32_32x32x16_bf16 v[{a}:{a+15}], v[{w}:{w+3}], v[{h}:{h+3}], {c}")
                        n += 1
                        if n == 1:
                            if (np_, nkk) == (3, 0) and self.w_by_l:
                                lg.need('wf')
                                A.label("Lwf")
                                A(f"v_readfirstlane_b32 s3, v15")
                                A(f"s_cmp_eq_u32 s3, 0")
                                A(f"s_cbranch_scc1 Lwf_r")
                                A.label("Lwf_ok")
                                self.stubs.append(["Lwf_r:", f"s_sub_u32 s41, s41, 1", f"s_cbranch_scc1 Lwf_ok", f"s_sleep 1", f"ds_read_b32 v15, v{vMS+3} offset:{C_FULL}",
                                                   f"s_waitcnt lgkmcnt(0)", f"s_branch Lwf"])
                            if rds and nkk == 0:
                                assert self.w_by_l or sum(1 for t_ in vm.log if t_ == ('w2', np_)) == 4, np_
                                vm.need(('w2', np_))
                            for o in rds: E(o)
                        elif not self.sent:
                            k = (len(fill) + (4 - n)) // (5 - n)
                            for o in fill[:k]: E(o)
                            fill = fill[k:]
                        elif n <= 3:
                            k = (len(fill) + (3 - n)) // (4 - n)
                            for o in fill[:k]: E(o)
                            fill = fill[k:]
                        elif np_ < NST:
                            check(np_, nkk)
        assert not yq
        A.stamp('g2 loop end')
        PA = {1: 16384, 2: 32768, 3: 49152}
        vP = vY
        A(f"v_add_u32 v12, {sM2}, v{vH0}")
        for i in (1, 2, 3):
            A(f"s_xor_b32 s3, {sW}, {i}")
            A(f"s_lshl_b32 s3, s3, 12")
            A(f"v_add_u32 v{20+i}, s3, v{vH0}")
        for i in (2, 3, 1):
            for tt in range(2):
                for qq in range(2):
                    a = vA2 + 32 * (i >> 1) + 16 * tt + 8 * (i & 1) + 4 * qq
                    L(f"ds_write_b128 v12, v[{a}:{a+3}] offset:{PA[i] + tt*2048 + qq*1024}", 'pw')
        vm.need('y')
        A.label("Lyc")
        for j in range(0, 16, 2):
            A(f"v_xor_b32 v14, v{vY+j}, v29")
            A(f"v_xor_b32 v15, v{vY+j+1}, v31")
            if j == 0: A(f"v_or_b32 v13, v14, v15")
            else: A(f"v_or3_b32 v13, v13, v14, v15")
        A(f"v_and_b32 v13, 0xff, v13")
        A(f"v_cmp_ne_u32 vcc, 0, v13")
        if not NOUY: A(f"s_cbranch_vccnz Lyr")
        A.label("Lyk")
        st = ["Lyr:", f"s_sub_u32 s41, s41, 8", f"s_cbranch_scc1 Lyk", f"s_sleep 2"]
        for o in ldy_ops(): st += o[0]
        self.stubs.append(st + [f"s_waitcnt vmcnt(0)", f"s_branch Lyc"])
        A.stamp('g2 y ok')
        lg.drain()
        A(f"s_barrier")
        A.stamp('g2 bar')
        RR = {1: 96, 2: 112, 3: 128}
        for i in (1, 2, 3):
            for k in range(4):
                r = RR[i] + 4 * k
                L(f"ds_read_b128 v[{r}:{r+3}], v{20+i} offset:{PA[i] + k*1024}", ('pr', i))
        for i in (1, 2, 3):
            lg.need(('pr', i))
            for tt in range(2):
                for j in range(4):
                    a = vA2 + 16 * tt + 2 * j
                    r = RR[i] + 8 * tt + 2 * j
                    A(f"v_pk_add_f32 v[{a}:{a+1}], v[{a}:{a+1}], v[{r}:{r+1}]")
        for tt in range(2):
            for j in range(4):
                a = vA2 + 16 * tt + 2 * j
                A(f"v_pk_fma_f32 v[{a}:{a+1}], v[{a}:{a+1}], v[2:3], v[{vP+8*tt+2*j}:{vP+8*tt+2*j+1}] op_sel:[0,{tt},0] op_sel_hi:[1,{tt},1]")
            for j in range(4):
                a = vA2 + 16 * tt + 2 * j
                A(f"v_cvt_pk_bf16_f32 v{16+4*tt+j}, v{a}, v{a+1}")
            b = 16 + 4 * tt
            A(f"v_permlane32_swap_b32 v{b}, v{b+2}")
            A(f"v_permlane32_swap_b32 v{b+1}, v{b+3}")
            A(f"buffer_store_dwordx4 v[{b}:{b+3}], v{4+tt}, {OUT}, 0 offen {self.osc}")
    u_at = 1

class Lr(Role):
    rot = 'cx'
    touch = 1
    zdum = 1
    pu_late = 1
    l2pf = 0
    pf_plan = [2, 1, 1, 1, 1, 1]
    plan = [10, 8, 4, 4, 3, 3]
    kprio = 3
    dprio = 0
    cprio = 3
    w_by_l = 0
    w_every = 3
    w_cert = 72
    l_n = 3
    kper = 4
    spread = 1
    poll_sleep = 8
    def run(self):
        A = self.A; vm = self.vm; lg = self.lg; E = self.emit; V = self.V; L = self.L
        pLA, pAI, pCR, pCI, pLDT, pDSK = 's[10:11]', 's[12:13]', 's[14:15]', 's[16:17]', 's[18:19]', 's[20:21]'
        X, W1, W2, WS, UBS = 's[24:27]', 's[56:59]', 's[60:63]', 's[44:47]', 's[8:11]'
        sLDT, sDSK, sCH, sHW = 's28', 's29', 's22', 's23'
        sKX, sKW, sMX, sMW, sPERM = 's38', 's39', 's40', 's41', 's54'
        vXS, vWS_, vDS = 228, 232, 236
        vKA, vKB, vKW, vKZ, vTW, vCT, vCH, vUA, vUB, vUL, vPW, vPR, vUD, vCN = range(240, 254)
        A(f"s_load_dwordx16 s[8:23], s[0:1], 0")
        A(f"s_load_dwordx2 s[56:57], s[0:1], 64")
        A(f"s_load_dwordx2 s[44:45], s[0:1], 112")
        A(f"s_load_dwordx2 s[60:61], s[0:1], 80")
        self.ids()
        for base, size in ((24, 0x200000), (56, W1_SIZE), (60, W1_SIZE), (44, WS_SIZE)):
            A(f"s_mov_b32 s{base+2}, {size}")
            A(f"s_mov_b32 s{base+3}, 0x20000")
        A(f"s_and_b32 s31, {sW}, 1")
        A(f"s_lshl_b32 s30, {sQ}, 1")
        A(f"s_add_u32 s3, s31, s30")
        A(f"s_lshl_b32 s3, s3, 8")
        A(f"v_lshl_add_u32 v16, {vLANE}, 2, s3")
        A(f"s_lshl_b32 s30, {sQ}, 2")
        if self.rot == 'cx': A(f"s_add_u32 s3, {sCB}, {sID}")
        elif self.rot == 'cxa':
            A(f"s_lshl_b32 s3, {sRB}, 2")
            A(f"s_add_u32 s3, s3, {sCB}")
            A(f"s_add_u32 s3, s3, {sID}")
        elif self.rot == 'ca':
            A(f"s_lshl_b32 s3, {sRB}, 2")
            A(f"s_add_u32 s3, s3, {sCB}")
        elif self.rot == 'x': A(f"s_mov_b32 s3, {sID}")
        elif self.rot == 'c': A(f"s_mov_b32 s3, {sCB}")
        else: A(f"s_mov_b32 s3, 0")
        A(f"s_and_b32 s3, s3, 7")
        A(f"s_mul_i32 s3, s3, 0x11111111")
        A(f"s_add_u32 {sPERM}, s3, 0x76543210")
        A(f"s_mul_i32 s3, {sW}, {16*2752}")
        A(f"s_mul_i32 s43, {sCB}, 192")
        A(f"s_add_u32 s3, s3, s43")
        A(f"s_movk_i32 s43, {2752 - 192}")
        if self.zdum:
            A(f"s_mul_i32 s42, {sCB}, 12")
            A(f"s_sub_i32 s42, 172, s42")
            A(f"v_mov_b32 v29, {OOB:#x}")
        A(f"v_lshl_add_u32 v31, {vLANE}, 4, s3")
        for i in range(3):
            A(f"v_add_u32 v3, {64*i}, {vLANE}")
            A(f"v_mul_u32_u24 v3, 0x5556, v3")
            A(f"v_lshrrev_b32 v3, 18, v3")
            A(f"v_mad_u32_u24 v{vWS_+i}, v3, s43, v31")
            if self.zdum:
                A(f"v_mul_u32_u24 v3, 12, v3")
                A(f"v_sub_u32 v3, {vLANE}, v3")
                A(f"v_add_u32 v3, {64*i}, v3")
                A(f"v_cmp_le_i32 vcc, s42, v3")
                A(f"v_cndmask_b32 v{vWS_+i}, v{vWS_+i}, v29, vcc")
        A(f"v_lshrrev_b32 v3, 3, {vLANE}")
        A(f"v_lshrrev_b32 v30, 4, {vLANE}")
        A(f"v_and_b32 v31, 7, {vLANE}")
        A(f"v_xor_b32 v31, v31, v30")
        A(f"v_lshlrev_b32 v31, 4, v31")
        A(f"v_lshl_add_u32 v31, v3, 10, v31")
        A(f"s_lshl_b32 s3, {sRB}, 17")
        A(f"s_lshl_b32 s43, {sW}, 15")
        A(f"s_add_u32 s3, s3, s43")
        if self.zdum:
            A(f"s_cmp_eq_u32 {sCB}, 15")
            A(f"s_cselect_b32 s3, {OOB:#x}, s3")
        A(f"v_add_u32 v{vXS}, s3, v31")
        A(f"v_xor_b32 v{vXS+1}, 64, v{vXS}")
        A(f"v_add_u32 v{vXS+1}, {8192-1024}, v{vXS+1}")
        A(f"v_add_u32 v{vXS+2}, {2*(8192-1024)}, v{vXS}")
        A(f"v_add_u32 v{vXS+3}, {2*(8192-1024)}, v{vXS+1}")
        A(f"s_lshl_b32 {sMX}, {sW}, 12")
        A(f"s_add_u32 {sMX}, {sMX}, {XOFF}")
        A(f"s_mul_i32 {sMW}, {sW}, 3072")
        A(f"s_waitcnt lgkmcnt(0)")
        V(f"global_load_dword v4, v16, {pLA}", 'par')
        V(f"global_load_dword v5, v16, {pAI}", 'par')
        V(f"global_load_dword v6, v16, {pCR}", 'par')
        V(f"global_load_dword v7, v16, {pCI}", 'par')
        A(f"s_load_dword {sLDT}, {pLDT}, s30")
        A(f"s_load_dword {sDSK}, {pDSK}, s30")
        A(f"s_mov_b32 s24, s8")
        A(f"s_mov_b32 s25, s9")
        A(f"s_mov_b32 {sCH}, s31")
        A(f"s_lshr_b32 {sHW}, {sW}, 1")
        A(f"s_barrier")
        def st_ops(s):
            w = [([f"s_add_u32 m0, {sMW}, {slot_of(s)}", f"s_bfe_u32 s3, {sPERM}, {(4*s) | (3<<16):#x}", f"s_mul_i32 {sKW}, s3, {64*2752}", f"s_lshl_b32 {sKX}, s3, 7"][:4 if i == 0 else 0]
                  + [f"buffer_load_dwordx4 v{vWS_+i}, {W1}, {sKW} offen offset:{1024*i} lds"], vm, ('st', s)) for i in range(3)]
            x = [([f"s_add_u32 m0, {sMX}, {slot_of(s)}"][:1 if i == 0 else 0]
                  + [f"buffer_load_dwordx4 v{vXS+i}, {X}, {sKX} offen offset:{1024*i} lds"], vm, ('st', s)) for i in range(4)]
            return w + x
        for o in st_ops(0): E(o)
        def nibp(lst): return sum(lst[7 - p] << (4 * p) for p in range(8))
        N0 = nibp(list(range(8))); N1 = nibp([0,0,1,2,2,2,3,4]); N2 = nibp([0,0,0,1,1,1,2,2]); N4 = nibp([0,0,0,0,0,1,1,1])
        A(f"v_mov_b32 v{vCN}, {L_CNT}")
        A(f"v_and_b32 v20, 7, {vLANE}")
        A(f"v_lshlrev_b32 v20, 2, v20")
        A(f"v_bfe_u32 v21, {vLANE}, 3, 2")
        A(f"s_cmp_lt_u32 {sW}, 2")
        A(f"s_mov_b32 s51, {N4:#x}")
        A(f"s_cselect_b32 s32, {N0:#x}, s51")
        A(f"s_cselect_b32 s33, {N1:#x}, s51")
        A(f"s_cselect_b32 s55, {N2:#x}, s51")
        A(f"s_mov_b32 s51, {(26<<24)|(24<<16)|(22<<8)|20:#x}")
        A(f"s_cselect_b32 s51, {(17<<24)|(14<<16)|(9<<8)|0:#x}, s51")
        A(f"s_cselect_b32 s36, 0, 0xaaaaaaaa")
        A(f"s_mov_b32 s37, 0")
        A(f"v_cmp_eq_u32 vcc, 1, v21")
        A(f"v_mov_b32 v22, s55")
        A(f"v_mov_b32 v23, s33")
        A(f"v_cndmask_b32 v22, v22, v23, vcc")
        A(f"v_cmp_eq_u32 vcc, 0, v21")
        A(f"v_mov_b32 v23, s32")
        A(f"v_lshlrev_b32 v21, 3, v21")
        A(f"v_cndmask_b32 v22, v22, v23, vcc")
        A(f"v_bfe_u32 v22, v22, v20, 4")
        A(f"v_bfe_u32 v23, s51, v21, 8")
        A(f"v_add_u32 v22, v22, v23")
        A(f"v_lshrrev_b32 v23, 5, {vLANE}")
        A(f"s_mul_i32 s31, {sCH}, {60*TROW}")
        A(f"s_add_u32 s31, s31, {L_TAB}")
        A(f"v_lshl_add_u32 v24, v23, 4, s31")
        A(f"s_movk_i32 s30, {TROW}")
        A(f"v_mad_u32_u24 v{vKA}, v22, s30, v24")
        A(f"v_and_b32 v22, 31, {vLANE}")
        A(f"v_mad_u32_u24 v{vKB}, v22, s30, v24")
        A(f"s_mul_i32 s30, {sHW}, {28*TROW}")
        A(f"s_add_u32 s31, s31, s30")
        A(f"v_lshl_add_u32 v{vTW}, {vLANE}, 3, s31")
        A(f"s_mul_i32 s31, {sCH}, {KREV_SZ}")
        A(f"s_add_u32 s31, s31, {L_KREV}")
        A(f"v_lshl_add_u32 v{vKZ}, {vLANE}, 4, s31")
        A(f"s_lshl_b32 s30, {sHW}, 11")
        A(f"s_sub_u32 s32, s31, s30")
        A(f"s_add_u32 s32, s32, {4080 - 1536}")
        A(f"v_lshlrev_b32 v22, 4, v22")
        A(f"v_sub_u32 v22, s32, v22")
        A(f"v_lshl_add_u32 v{vKW}, v23, 3, v22")
        for o in st_ops(1)[:3]: E(o)
        A(f"v_and_b32 v20, 15, {vLANE}")
        A(f"s_lshl_b32 s32, {sHW}, 8")
        A(f"s_add_u32 s31, s31, s32")
        A(f"s_add_u32 s31, s31, 480")
        A(f"v_lshlrev_b32 v22, 5, v20")
        A(f"v_sub_u32 v22, s31, v22")
        A(f"v_lshl_add_u32 v{vCT}, v30, 4, v22")
        A(f"s_mul_i32 s31, {sCH}, {4*CPY}")
        A(f"s_add_u32 s31, s31, {L_U}")
        A(f"s_add_u32 s33, s31, s32")
        A(f"v_bfe_u32 v22, {vLANE}, 2, 2")
        A(f"v_and_b32 v24, 3, {vLANE}")
        A(f"v_mul_u32_u24 v25, {CPY}, v22")
        A(f"v_lshl_add_u32 v25, v30, 4, v25")
        A(f"v_lshl_add_u32 v25, v24, 3, v25")
        A(f"v_add_u32 v{vCH}, s33, v25")
        A(f"v_lshlrev_b32 v25, 2, v30")
        A(f"v_xor_b32 v25, v25, {vLANE}")
        A(f"s_lshl_b32 s3, {sW}, 13")
        A(f"s_add_u32 s3, s3, {L_PART}")
        A(f"v_lshl_add_u32 v{vPW}, v25, 4, s3")
        A(f"v_bfe_u32 v26, {vLANE}, 1, 2")
        A(f"v_lshrrev_b32 v25, 3, {vLANE}")
        A(f"v_lshlrev_b32 v27, 2, v26")
        A(f"v_xor_b32 v25, v25, v27")
        A(f"v_lshlrev_b32 v25, 4, v25")
        A(f"v_lshl_add_u32 v25, v26, 8, v25")
        A(f"v_and_b32 v24, 1, {vLANE}")
        A(f"v_lshl_add_u32 v25, v24, 3, v25")
        A(f"s_lshl_b32 s3, {sW}, 11")
        A(f"s_add_u32 s3, s3, {L_PART}")
        A(f"v_add_u32 v{vPR}, s3, v25")
        A(f"s_lshl_b32 s3, {sW}, 10")
        A(f"s_add_u32 s3, s3, {L_U}")
        A(f"v_lshl_add_u32 v{vUD}, {vLANE}, 2, s3")
        A(f"v_lshrrev_b32 v25, 1, {vLANE}")
        A(f"s_lshl_b32 s3, {sW}, 6")
        A(f"v_add_u32 v25, s3, v25")
        A(f"s_lshl_b32 s3, {sQ}, 5")
        A(f"s_sub_u32 s3, s3, 16384")
        A(f"v_lshlrev_b32 v26, 13, v25")
        A(f"v_lshl_add_u32 v26, v24, 4, v26")
        A(f"v_add_u32 v{vUA}, s3, v26")
        A(f"v_add_u32 v{vUB}, 8192, v{vUA}")
        A(f"v_mul_u32_u24 v26, {4*CPY}, v24")
        A(f"v_lshl_add_u32 v26, v25, 4, v26")
        A(f"v_add_u32 v{vUL}, {L_U}, v26")
        self.w2_src(vDS, 20, 21, 22)
        LOG2E = '0x3fb8aa3b'
        A(f"s_waitcnt lgkmcnt(0)")
        A(f"s_mov_b32 s8, s44")
        A(f"s_mov_b32 s9, s45")
        A(f"s_mov_b32 s10, {UB_SIZE}")
        A(f"s_mov_b32 s11, 0x20000")
        A(f"s_lshl_b32 s30, {sLDT}, 16")
        A(f"s_and_b32 s31, {sLDT}, 0xffff0000")
        A(f"s_cmp_eq_u32 {sCH}, 0")
        A(f"s_cselect_b32 {sLDT}, s30, s31")
        A(f"s_and_b32 s12, {sDSK}, 0xffff0000")
        A(f"s_lshl_b32 {sDSK}, {sDSK}, 16")
        A(f"v_mov_b32 v16, {LOG2E}")
        A(f"v_mul_f32 v17, {sLDT}, v16")
        A(f"v_exp_f32 v17, v17")
        A(f"s_cmp_lt_u32 {sW}, 2")
        A(f"s_cselect_b32 s32, 1.0, 0x41000000")
        A(f"s_cselect_b32 s33, 0x43780000, s32")
        A(f"s_cselect_b32 s55, 0xbe22f983, 0.15915494")
        A(f"v_cvt_pk_bf16_f32 v17, v17, v17")
        A(f"v_lshlrev_b32 v17, 16, v17")
        vm.need('par')
        A.stamp('par loaded')
        A(f"v_lshlrev_b32 v20, 16, v4")
        A(f"v_and_b32 v21, 0xffff0000, v4")
        A(f"v_mul_f32 v20, v20, v16")
        A(f"v_mul_f32 v21, v21, v16")
        A(f"v_exp_f32 v20, v20")
        A(f"v_exp_f32 v21, v21")
        A(f"v_lshlrev_b32 v22, 16, v5")
        A(f"v_and_b32 v23, 0xffff0000, v5")
        A(f"v_cvt_pk_bf16_f32 v18, v20, v21")
        A(f"v_mul_f32 v22, v22, v17")
        A(f"v_mul_f32 v23, v23, v17")
        A(f"v_lshlrev_b32 v20, 16, v18")
        A(f"v_and_b32 v21, 0xffff0000, v18")
        A(f"v_mul_f32 v22, s55, v22")
        A(f"v_mul_f32 v23, s55, v23")
        A(f"v_mul_f32 v20, v20, v17")
        A(f"v_mul_f32 v21, v21, v17")
        A(f"v_mul_f32_e64 v20, -v20, v16")
        A(f"v_mul_f32_e64 v21, -v21, v16")
        MR = {1: 24, 248: 28, 2: 32, 4: 36, 8: 40}
        for (inc, sreg, tb) in ((1, 's32', 56), (248, 's33', 60)):
            for i in range(2):
                A(f"v_mul_f32 v{tb+i}, {sreg}, v{20+i}")
                A(f"v_mul_f32 v{tb+2+i}, {sreg}, v{22+i}")
        for tb in (56, 60):
            for i in range(2):
                A(f"v_exp_f32 v{tb+i}, v{tb+i}")
                A(f"v_fract_f32 v{tb+2+i}, v{tb+2+i}")
        for (inc, tb) in ((1, 56), (248, 60)):
            for i in range(2):
                m = MR[inc] + 2 * i
                A(f"v_cos_f32 v{m}, v{tb+2+i}")
                A(f"v_sin_f32 v{m+1}, v{tb+2+i}")
        for (inc, tb) in ((1, 56), (248, 60)):
            for i in range(2):
                m = MR[inc] + 2 * i
                A(f"v_mul_f32 v{m}, v{m}, v{tb+i}")
                A(f"v_mul_f32 v{m+1}, v{m+1}, v{tb+i}")
        def cmul2(dst, a, m):
            l1 = []; l2 = []
            for i in range(2):
                d, x, y = dst + 2 * i, a + 2 * i, m + 2 * i
                l1.append(f"v_mul_f32_e64 v{d}, -v{x+1}, v{y+1}")
                l1.append(f"v_mul_f32 v{d+1}, v{x}, v{y+1}")
                l2.append(f"v_fmac_f32 v{d}, v{x}, v{y}")
                l2.append(f"v_fmac_f32 v{d+1}, v{x+1}, v{y}")
            return l1, l2
        A(f"s_cbranch_scc1 Lkg_h")
        for r in range(32, 44): A(f"v_mov_b32 v{r}, v{24 + (r & 3)}")
        A(f"v_mov_b32 v48, 1.0")
        A(f"v_mov_b32 v49, 0")
        A(f"v_mov_b32 v50, 1.0")
        A(f"v_mov_b32 v51, 0")
        A(f"s_branch Lkg_go")
        A.label("Lkg_h")
        A(f"v_add_f32 v17, v17, v17")
        A(f"v_lshlrev_b32 v48, 16, v6")
        A(f"v_lshlrev_b32 v49, 16, v7")
        A(f"v_and_b32 v50, 0xffff0000, v6")
        A(f"v_and_b32 v51, 0xffff0000, v7")
        for (d, s_) in ((2, 1), (4, 2), (8, 4)):
            l1, l2 = cmul2(MR[d], MR[s_], MR[s_])
            for x in l1 + l2: A(x)
        A(f"v_mul_f32 v48, v48, v17")
        A(f"v_mul_f32_e64 v49, -v49, v17")
        A(f"v_mul_f32 v50, v50, v17")
        A(f"v_mul_f32_e64 v51, -v51, v17")
        A.label("Lkg_go")
        dma = st_ops(1)[3:] + st_ops(2)
        if self.touch:
            dma.append(([f"s_mul_i32 s3, {sQ}, 5504", f"s_mul_i32 s30, {sW}, 1408", f"s_add_u32 s3, s3, s30", f"v_lshlrev_b32 v19, 7, {vLANE}", f"s_mov_b64 exec, 0x7ff",
                         f"buffer_load_dword v3, v19, {W2}, s3 offen", f"s_mov_b64 exec, -1"], vm, 'touch'))
        W = lambda st: self.w2_ops(st, vDS, W2)
        def W2h(st, h):
            o = W(st)
            return [(o[0][0][:2] + o[2*h][0][-1:], vm, ('w2', st)), o[2*h+1]]
        cur, nxt = 48, 52
        step = 0
        def chain_step(ndma):
            nonlocal cur, nxt, step
            pk = 64 + 2 * step
            if step < 31:
                l1, l2 = cmul2(nxt, cur, MR[HINC[step]])
                for x in l1: A(x)
            A(f"v_cvt_pk_bf16_f32 v{pk}, v{cur}, v{cur+1}")
            A(f"v_cvt_pk_bf16_f32 v{pk+1}, v{cur+2}, v{cur+3}")
            for _ in range(ndma):
                if dma: E(dma.pop(0))
            if step < 31:
                for x in l2: A(x)
            cur, nxt = nxt, cur
            step += 1
        extra = {b_: [] for b_ in range(-1, 5)}
        cert = {}
        if self.l2pf:
            A(f"v_lshlrev_b32 v227, 7, {vLANE}")
            A(f"s_and_b32 s13, {sRB}, 1")
            A(f"s_lshl_b32 s13, s13, 14")
            A(f"s_add_u32 s13, s13, s50")
        pfn = [0]
        def idle_pf(nsteps, tg):
            if not self.l2pf or nsteps == 0: return
            A(f"s_cmp_lg_u32 {sCB}, 15")
            A(f"s_cbranch_scc1 Lpf{tg}")
            for _ in range(nsteps):
                for j in range(2):
                    A(f"s_add_u32 s3, s13, {pfn[0]*32768 + j*8192}")
                    A(f"buffer_load_dword v3, v227, {W2}, s3 offen")
                pfn[0] += 1
            A.label(f"Lpf{tg}")
        for b, n in zip(range(-1, 5), self.plan):
            for k in range(n):
                if step < 32: chain_step(-(-len(dma) // (n - k)))
            while dma: E(dma.pop(0))
            A.stamp(f"_I{b}")
            vm.need([('st', b + 1)] + cert.get(b, []))
            idle_pf(self.pf_plan[b + 1], b + 1)
            A.stamp(f"_W{b}")
            A(f"s_barrier")
            if 0 <= b: dma.extend(st_ops(b + 3))
            dma.extend(extra[b])
        L(f"ds_read_b32 v60, v{vCN} offset:{C_TAG}", 'tag')
        A(f"v_lshlrev_b32 v20, 4, {vLANE}")
        A(f"s_mov_b32 s33, {WS_FU}")
        if not self.pu_late: V(f"buffer_load_dwordx4 v[128:131], v20, {WS}, s33 offen sc1", 'pu')
        while dma: E(dma.pop(0))
        if self.l2pf:
            rem = NST - pfn[0]
            lanes = 8 * rem
            A(f"s_lshr_b32 s3, {sID}, 3")
            A(f"s_lshl_b32 s3, s3, 10")
            A(f"s_add_u32 s3, s3, s50")
            A(f"s_add_u32 s3, s3, {pfn[0]*32768}")
            A(f"v_lshrrev_b32 v226, 3, {vLANE}")
            A(f"v_and_b32 v227, 7, {vLANE}")
            A(f"v_lshlrev_b32 v227, 7, v227")
            A(f"v_lshl_add_u32 v227, v226, 15, v227")
            for j in range((lanes + 63) // 64):
                nl = min(64, lanes - 64 * j)
                if nl < 64:
                    A(f"s_mov_b32 exec_lo, {((1 << min(nl, 32)) - 1):#x}")
                    A(f"s_mov_b32 exec_hi, {((1 << max(nl - 32, 0)) - 1):#x}")
                if j: A(f"s_add_u32 s3, s3, {8*32768}")
                V(f"buffer_load_dword v3, v227, {W2}, s3 offen", 'touch')
                A(f"s_mov_b64 exec, -1")
        while step < 32: chain_step(0)
        A.stamp('kg chain')
        for r in range(24, 28): A(f"v_mov_b32 v{r}, 0")
        lg.drain()
        A(f"v_readfirstlane_b32 {sTAG}, v60")
        vm.need([('st', 6), 'pu'])
        A(f"s_barrier")
        def u_check():
            for k in range(4): A(f"v_xor_b32 v{132+k}, {sTAG}, v{128+k}")
            A(f"v_or3_b32 v132, v132, v133, v134")
            A(f"v_or_b32 v132, v132, v135")
            A(f"v_cmp_ne_u32 vcc, 0, v132")
            if NOUY: A("s_mov_b64 vcc, 0")
        def u_loads(tg):
            A(f"s_mov_b32 s30, {32*8192}")
            A(f"v_add_u32 v22, s30, v{vUA}")
            A(f"v_add_u32 v23, s30, v{vUB}")
            A(f"s_cmp_lg_u32 {sW}, 3")
            A(f"s_cbranch_scc1 Lc_no3{tg}")
            A(f"s_mov_b64 exec, 15")
            A(f"buffer_load_dwordx4 v[144:147], v22, {UBS}, s30 offen sc1")
            A(f"buffer_load_dwordx2 v[148:149], v23, {UBS}, s30 offen sc1")
            A(f"s_mov_b64 exec, 1")
            A(f"s_cmp_lg_u32 {sID}, 0")
            A(f"s_cbranch_scc1 Lc_no3{tg}")
            A(f"v_mov_b32 v28, {sTAG}")
            A(f"v_mov_b32 v29, {WS_EP}")
            A(f"buffer_store_dword v28, v29, {WS}, 0 offen sc1")
            A.label(f"Lc_no3{tg}")
            A(f"s_mov_b32 exec_lo, 0xc000c000")
            A(f"s_mov_b32 exec_hi, 0xc000c000")
            A(f"buffer_load_dwordx2 v[132:133], v{vUB}, {UBS}, 0 offen sc1")
            A(f"buffer_load_dwordx2 v[140:141], v23, {UBS}, 0 offen sc1")
            A(f"s_mov_b64 exec, -1")
            A(f"buffer_load_dwordx4 v[128:131], v{vUA}, {UBS}, 0 offen sc1")
            A(f"buffer_load_dwordx4 v[136:139], v22, {UBS}, 0 offen sc1")
        if self.pu_late: V(f"buffer_load_dwordx4 v[128:131], v20, {WS}, s33 offen sc1", 'pu')
        for o in W(0): E(o)
        vm.need(('st', 7))
        A(f"s_barrier")
        for o in W(1): E(o)
        vm.need('pu')
        u_check()
        A(f"s_mov_b32 s39, 1")
        A(f"s_cbranch_vccnz Lc_skipu")
        A(f"s_mov_b32 s39, 0")
        u_loads('a')
        A(f"s_waitcnt vmcnt(4)")
        A(f"s_branch Lc_exb")
        A.label("Lc_skipu")
        A(f"s_waitcnt vmcnt(0)")
        A(f"s_mov_b64 exec, vcc")
        A(f"buffer_load_dwordx4 v[128:131], v20, {WS}, s33 offen sc1")
        A(f"s_mov_b64 exec, -1")
        A.label("Lc_exb")
        vm.q = []
        A.stamp('u ok')
        A(f"s_barrier")
        A.stamp('ex ok')
        if self.dprio: A(f"s_setprio {self.dprio}")
        for st_ in range(28): A(f"ds_write_b64 v{vTW}, v[{64+2*st_}:{65+2*st_}] offset:{st_*TROW}")
        A(f"s_cmp_lt_u32 {sW}, 2")
        A(f"s_cbranch_scc1 Lc_h28")
        for st_ in range(28, 32): A(f"ds_write_b64 v{vTW}, v[{64+2*st_}:{65+2*st_}] offset:{st_*TROW}")
        A.label("Lc_h28")
        self.soft_arrive(C_TABW, vCN, 21)
        def build(tg):
            A(f"s_waitcnt vmcnt(0)")
            for i in range(3):
                w = 128 + 8 * i; t = 152 + 12 * i
                if i == 2:
                    A(f"s_cmp_lg_u32 {sW}, 3")
                    A(f"s_cbranch_scc1 Lc_nob{tg}")
                    A(f"s_mov_b64 exec, 15")
                else:
                    A(f"v_mov_b32_dpp v{w+4}, v{w} row_shl:2 row_mask:0xf bank_mask:0xf")
                    A(f"v_mov_b32_dpp v{w+5}, v{w+1} row_shl:2 row_mask:0xf bank_mask:0xf")
                for j in range(4): A(f"v_alignbyte_b32 v{t+j}, v{w+j+1}, v{w+j}, 2")
                off = 512 * i
                A(f"ds_write_b128 v{vUL}, v[{w+2}:{w+5}] offset:{off + 3*CPY}")
                for j in range(4): A(f"v_mov_b32 v{t+4+j}, v{w+j+1}")
                A(f"ds_write_b128 v{vUL}, v[{t}:{t+3}] offset:{off}")
                for j in range(4): A(f"v_alignbyte_b32 v{t+8+j}, v{w+j+2}, v{w+j+1}, 2")
                A(f"ds_write_b128 v{vUL}, v[{t+4}:{t+7}] offset:{off + CPY}")
                A(f"ds_write_b128 v{vUL}, v[{t+8}:{t+11}] offset:{off + 2*CPY}")
            A(f"s_mov_b64 exec, -1")
            A.label(f"Lc_nob{tg}")
            self.soft_arrive(C_U, vCN, 21)
        A(f"s_cmp_eq_u32 s39, 0")
        A(f"s_cbranch_scc1 Lc_build")
        A(f"s_waitcnt vmcnt(0)")
        u_check()
        A(f"s_cbranch_vccnz Lc_nobuild")
        A(f"s_mov_b32 s39, 2")
        u_loads('c')
        A(f"s_branch Lc_nobuild")
        A.label("Lc_build")
        build('')
        A(f"s_cmp_lg_u32 s39, 0")
        A(f"s_cbranch_scc1 Lc_built")
        A.label("Lc_nobuild")
        A(f"s_setprio 0")
        self.soft_wait("l_tabw", C_TABW, 4, vCN, 21, slp=1)
        A(f"s_setprio {self.kprio}")
        def rdk(k):
            r = 64 + 8 * (k % 8)
            L(f"ds_read_b128 v[{r}:{r+3}], v{vKA} offset:{32*k}", ('k', k))
            L(f"ds_read_b128 v[{r+4}:{r+7}], v{vKB} offset:{28*TROW + 32*k}", ('k', k))
        for k in range(7): rdk(k)
        for k in range(16):
            lg.need(('k', k))
            r = 64 + 8 * (k % 8)
            c = '0' if k == 0 else 'v[32:47]'
            A(f"v_mfma_f32_32x32x16_bf16 v[32:47], v[{r}:{r+3}], v[{r+4}:{r+7}], {c}")
            if k + 7 < 16: rdk(k + 7)
            if k == 10:
                A(f"s_mov_b64 exec, 0x3fffffff")
                L(f"ds_write_b128 v{vKZ}, v[24:27] offset:4096", 'w')
                A(f"s_mov_b64 exec, -1")
        for q in range(4): A(f"v_cndmask_b32 v{32+4*q+3}, v{32+4*q+3}, v{32+4*q+2}, s[36:37]")
        for q in range(4):
            A(f"v_cvt_pk_bf16_f32 v{48+2*q}, v{32+4*q}, v{33+4*q}")
            A(f"v_cvt_pk_bf16_f32 v{49+2*q}, v{34+4*q}, v{35+4*q}")
            L(f"ds_write_b64 v{vKW}, v[{48+2*q}:{49+2*q}] offset:{512*(3-q)}", 'w')
        self.soft_arrive(C_BUILT, vCN, 21)
        self.soft_arrive(C_U, vCN, 21)
        A.stamp('kg done')
        A(f"s_setprio 0")
        A(f"s_cmp_eq_u32 s39, 0")
        A(f"s_cbranch_scc1 Lc_built")
        A(f"s_cmp_eq_u32 s39, 2")
        A(f"s_cbranch_scc1 Lc_build")
        A(f"s_mov_b32 s31, {SPIN}")
        A.label("Lc_poll")
        A(f"s_mov_b64 exec, vcc")
        A(f"buffer_load_dwordx4 v[128:131], v20, {WS}, s33 offen sc1")
        A(f"s_mov_b64 exec, -1")
        A(f"s_waitcnt vmcnt(0)")
        u_check()
        A(f"s_sub_u32 s31, s31, 1")
        A(f"s_cbranch_scc1 Lc_poll_ok")
        A(f"s_cbranch_vccz Lc_poll_ok")
        A(f"s_sleep {self.poll_sleep}")
        A(f"s_branch Lc_poll")
        A.label("Lc_poll_ok")
        u_loads('b')
        A(f"s_branch Lc_build")
        A.label("Lc_built")
        A(f"s_waitcnt lgkmcnt(0)")
        for r in range(32, 64): A(f"v_mov_b32 v{r}, 0")
        A(f"s_setprio 0")
        self.soft_wait("l_built", C_U, 8, vCN, 21, slp=1)
        A(f"s_setprio {self.cprio}")
        A.stamp('cv built')
        def frag_ops(b, rho, i):
            T = 64 + 64 * b + 4 * i; H = 96 + 64 * b + 4 * i
            return [(f"ds_read_b128 v[{T}:{T+3}], v{vCT} offset:{512*(7-i) + 64*rho}", ('f', rho, i)),
                    (f"ds_read_b64_tr_b16 v[{H}:{H+1}], v{vCH} offset:{512*i + 64*rho}", ('f', rho, i)),
                    (f"ds_read_b64_tr_b16 v[{H+2}:{H+3}], v{vCH} offset:{512*i + 8 + 64*rho}", ('f', rho, i))]
        pend = [o for rho in range(4) for i in range(8) for o in frag_ops(rho & 1, rho, i)]
        for p in range(4):
            for c_ in range(2):
                pend.append((f"ds_read_b32 v{192+2*p+c_}, v{vUD} offset:{c_*4*CPY + 3*CPY + 24 + 256*p}", ('ud', 4, 0)))
        for o in pend[:12]: L(*o)
        pend = pend[12:]
        arrived = False
        wd = (W(3) + W(4) + W(5) + W(6)) if self.w_by_l else []
        nm = 0
        for rho in range(4):
            b = rho & 1
            for n in range(8):
                lg.need(('f', rho, n))
                pairs = [(s_, d) for s_ in range(8) for d in range(8) if s_ + d <= 7 and max(s_, d) == n]
                for (s_, d) in pairs:
                    a = 32 + 4 * (s_ + d)
                    A(f"v_mfma_f32_16x16x32_bf16 v[{a}:{a+3}], v[{96+64*b+4*s_}:{99+64*b+4*s_}], v[{64+64*b+4*d}:{67+64*b+4*d}], v[{a}:{a+3}]")
                    nm += 1
                    if wd and nm % self.w_every == 0: E(wd.pop(0))
                    if nm == self.w_cert and self.w_by_l:
                        assert not wd
                        vm.drain()
                        A(f"v_lshl_add_u32 v22, {sW}, 2, v{vCN}")
                        self.post_word(22, C_FULL, 1, 21)
                    k = 3 if (pend and pend[0][1][1] == rho) else 1
                    for _ in range(k):
                        if pend and pend[0][1][1] <= rho + 1:
                            if len(lg.q) >= 14:
                                A("s_waitcnt lgkmcnt(8)"); lg.q = lg.q[-8:]
                            L(*pend.pop(0))
                    if not pend and not arrived:
                        self.soft_arrive(C_CVD, vCN, 21); arrived = True
        A.stamp('cv loop')
        A(f"s_lshl_b32 s32, {sQ}, 14")
        A(f"s_lshl_b32 s30, {sW}, 12")
        A(f"s_add_u32 s32, s32, s30")
        A(f"s_add_u32 s32, s32, {WS_YT}")
        A(f"v_xor_b32 v23, 128, v{vPR}")
        self.soft_wait("l_cvd", C_CVD, 4, vCN, 21, slp=1)
        for a in range(8): L(f"ds_write_b128 v{vPW}, v[{32+4*a}:{35+4*a}] offset:{1024*a}", 'w')
        self.soft_arrive(C_PART, vCN, 21)
        lg.need(('ud', 4, 0))
        for k in range(8):
            A(f"v_lshlrev_b32 v{200+2*k}, 16, v{192+k}")
            A(f"v_and_b32 v{201+2*k}, 0xffff0000, v{192+k}")
        self.soft_wait("l_part", C_PART, 4, vCN, 21, slp=1)
        for p in range(4):
            if p == 3: lg.need(('pr', 0))
            for c_ in range(2):
                for part in range(2):
                    r = 64 + 8 * p + 4 * c_ + 2 * part
                    L(f"ds_read_b64 v[{r}:{r+1}], v{[vPR, 23][p & 1]} offset:{1024*(p >> 1) + 8192*c_ + 16384*part}", ('pr', p))
        A("s_setprio 3")
        A(f"s_movk_i32 s31, 0xff")
        for e in range(4): A(f"v_lshrrev_b32_e64 v{24+e}, {8*e}, {sTAG}")
        for p in range(4):
            lg.need(('pr', p))
            r = 64 + 8 * p; o_ = 96 + 4 * p
            for e in range(2):
                for c_ in range(2): A(f"v_add_f32 v{o_+2*e+c_}, v{r+4*c_+e}, v{r+4*c_+2+e}")
            for e in range(2):
                for c_ in range(2): A(f"v_fmac_f32 v{o_+2*e+c_}, {[sDSK, 's12'][c_]}, v{200+4*p+2*c_+e}")
            for e in range(4): A(f"v_bfi_b32 v{o_+e}, s31, v{24+e}, v{o_+e}")
            A(f"buffer_store_dwordx4 v[{o_}:{o_+3}], v20, {WS}, s32 offen offset:{1024*p} sc1")
        A.stamp('y stored')
```

```python
import sys
from asmlib import Asm
import blocks_h as U
from layout import *
KN = "parallel_sum__ssm_conv_s4d__dense_activation_squared_relu__prompt_kernel"
HDR = open("parallel_sum__ssm_conv_s4d__dense_activation_squared_relu__prompt.s.ref").read().split("; Override launch")[0]
opt = dict(a.split('=', 1) for a in sys.argv[2:] if '=' in a)
A = Asm()
A.stamps = '-s' in sys.argv
if opt.get('amp'): A.amp_name = opt['amp'].replace('_', ' ')
if opt.get('ampf'): A.amp_from = opt['ampf'].replace('_', ' ')
if opt.get('st'): A.stamp_filter = opt['st']
if opt.get('nouy'): U.NOUY = 1
if opt.get('spin'): U.SPIN = int(opt['spin'])
def cfg(o):
    for k, v in opt.items():
        if hasattr(type(o), k):
            d = getattr(type(o), k)
            setattr(o, k, v if isinstance(d, str) else ([int(x) for x in v.split(',')] if isinstance(d, list) else int(v)))
    return o
A(f".globl {KN}\n.p2align 8\n.type {KN},@function")
A.label(KN)
A("s_cmp_ge_u32 s2, 256")
A("s_cbranch_scc1 Lexit")
if opt.get('half'):
    A("s_and_b32 s3, s2, 7")
    A(f"s_cmp_ge_u32 s3, {opt['half']}")
    A("s_cbranch_scc1 Lexit")
A("v_lshrrev_b32 v2, 6, v0")
A("v_and_b32 v1, 63, v0")
A("v_readfirstlane_b32 s3, v2")
A("s_mov_b32 s4, s2")
A("s_and_b32 s5, s3, 3")
lfirst = int(opt.get('lfirst', 0))
A("s_cmp_ge_u32 s3, 4")
A("s_cbranch_scc0 Lrole_m" if lfirst else "s_cbranch_scc1 Lrole_d")
def role(cls, srd, k, prio):
    A.stamp_begin()
    if opt.get(prio): A(f"s_setprio {opt[prio]}")
    r = cfg(cls(A))
    r.run()
    A.stamp_end(srd, WS_STAMP + 0x20000 * k, 's2', 's5')
    A("s_endpgm")
    for st in r.stubs:
        for l_ in st: A(l_)
if not lfirst: role(U.M, 's[20:23]', 0, 'mprio')
A.label("Lrole_d")
if opt.get('cpf'):
    per = int(opt['cpf'])
    A("s_cmp_lg_u32 s5, 0")
    A("s_cbranch_scc1 Lnocpf")
    A("s_getpc_b64 s[8:9]")
    A.label("Lpc")
    A(f"s_sub_u32 s8, s8, Lpc-{KN}")
    A("s_subb_u32 s9, s9, 0")
    A("s_lshr_b32 s10, s2, 3")
    A(f"s_mul_i32 s10, s10, {per}")
    if per > 6: A(f"s_and_b32 s10, s10, 255")
    A("v_add_u32 v3, s10, v1")
    A(f"v_min_u32 v3, (Lexit-{KN})/128, v3")
    A("v_lshlrev_b32 v3, 7, v3")
    A("v_mov_b32 v5, s9")
    A("v_add_co_u32 v4, vcc, s8, v3")
    A("v_addc_co_u32 v5, vcc, 0, v5, vcc")
    A(f"s_mov_b64 exec, {(1 << per) - 1:#x}")
    A("global_load_dword v2, v[4:5], off")
    A("s_mov_b64 exec, -1")
    A.label("Lnocpf")
role(U.Lr, 's[44:47]', 1, 'lprio')
if lfirst:
    A(".p2align 6")
    A.label("Lrole_m")
    role(U.M, 's[20:23]', 0, 'mprio')
A.label("Lexit")
A("s_endpgm")
n = A.fix_hazards(verbose='-v' in sys.argv)
print("hazard pads:", n)
out = HDR
out += f"; @launch grid=(256,1,1) block=(512,1,1) lds={U.LDS_TOTAL}\n"
out += '.amdgcn_target "amdgcn-amd-amdhsa--gfx950"\n.text\n' + A.text()
out += f'''.section .rodata,"a"
.p2align 6
.amdhsa_kernel {KN}
  .amdhsa_next_free_vgpr 256
  .amdhsa_next_free_sgpr {102 if (A.stamps or A.amp_name) else 64}
  .amdhsa_accum_offset 256
  .amdhsa_group_segment_fixed_size 0
  .amdhsa_kernarg_size 120
  .amdhsa_user_sgpr_count 2
  .amdhsa_user_sgpr_kernarg_segment_ptr 1
  .amdhsa_system_sgpr_workgroup_id_x 1
.end_amdhsa_kernel
'''
open(sys.argv[1], "w").write(out)
```

```python
import re

def _regs(tok):
    tok = tok.strip()
    tok = tok.lstrip('-')
    m = re.match(r'^abs\((.*)\)$', tok)
    if m: tok = m.group(1)
    tok = tok.strip('|')
    m = re.match(r'^([vsa])\[(\d+):(\d+)\]$', tok)
    if m: return [(m.group(1), i) for i in range(int(m.group(2)), int(m.group(3)) + 1)]
    m = re.match(r'^([vsa])(\d+)$', tok)
    if m: return [(m.group(1), int(m.group(2)))]
    if tok in ('vcc', 'vcc_lo', 'vcc_hi'): return [('x', 'vcc')]
    if tok in ('exec', 'exec_lo', 'exec_hi'): return [('x', 'exec')]
    if tok == 'm0': return [('x', 'm0')]
    return []

TRANS = ('v_exp_f32', 'v_log_f32', 'v_rcp_f32', 'v_rsq_f32', 'v_sqrt_f32', 'v_sin_f32', 'v_cos_f32')

class Ins:
    def __init__(self, text):
        self.text = text
        t = text.split(';')[0].strip()
        self.is_label = t.endswith(':')
        self.op = ''
        self.dst = []; self.src = []
        self.kind = 'other'
        if self.is_label or not t or t.startswith('.'):
            self.kind = 'label' if self.is_label else 'none'
            return
        parts = t.split(None, 1)
        self.op = op = parts[0]
        rest = parts[1] if len(parts) > 1 else ''
        ops = []; cur = ''; depth = 0
        for ch in rest:
            if ch == '[': depth += 1
            if ch == ']': depth -= 1
            if ch == ',' and depth == 0: ops.append(cur); cur = ''
            else: cur += ch
        if cur: ops.append(cur)
        clean = []
        for o in ops:
            o = o.strip()
            clean.append(o.split()[0] if o else o)
        self.mods = rest
        R = [_regs(o) for o in clean]
        flat = lambda L: [r for x in L for r in x]
        if op.startswith('v_mfma'):
            self.kind = 'mfma'; self.dst = R[0]; self.srcab = R[1] + R[2]; self.srcc = R[3]; self.src = flat(R[1:])
            self.passes = 8 if '32x32' in op else 4
        elif op.startswith('v_cmp'):
            self.kind = 'valu'; self.dst = R[0]; self.src = flat(R[1:])
            if op.startswith('v_cmpx'): self.dst = self.dst + [('x', 'exec')]
        elif op.startswith('v_readfirstlane') or op.startswith('v_readlane'):
            self.kind = 'valu'; self.dst = R[0]; self.src = flat(R[1:]); self.rl = True
        elif op.startswith('v_permlane') or op.startswith('v_swap'):
            self.kind = 'valu'; self.dst = R[0] + R[1]; self.src = R[0] + R[1]
        elif op.startswith('v_'):
            self.kind = 'valu'
            nd = 1
            if '_co_' in op or op.startswith('v_div_scale') or op.startswith('v_mad_u64'): nd = 2
            self.dst = flat(R[:nd]); self.src = flat(R[nd:])
            if op.startswith('v_fmac') or op.startswith('v_dot2c') or op.startswith('v_pk_fmac') or 'dpp' in op or 'row_' in rest or 'quad_perm' in rest or 'wave_' in rest or 'sdwa' in op:
                self.src = self.src + R[0]
            if op.startswith('v_cndmask') and len(R) == 3: self.src = self.src + [('x', 'vcc')]
        elif op.startswith('ds_'):
            self.kind = 'ds'
            if op.startswith('ds_read') or op.startswith('ds_bpermute') or op.startswith('ds_permute') or op.startswith('ds_swizzle') or '_rtn' in op:
                self.dst = R[0]; self.src = flat(R[1:])
            else:
                self.src = flat(R)
        elif op.startswith('buffer_') or op.startswith('global_'):
            self.kind = 'vmem'
            if op in ('buffer_inv', 'buffer_wbl2'):
                pass
            elif 'load' in op and ' lds' not in (' ' + rest) and 'load_lds' not in op:
                self.dst = R[0]; self.src = flat(R[1:])
            elif 'load' in op:
                self.src = flat(R) + [('x', 'm0')]; self.dma = True
            elif 'atomic' in op:
                self.src = flat(R)
                if ' sc0' in rest: self.dst = R[0]
            else:
                self.src = flat(R)
                self.store = True
                self.sdata = R[0] if op.startswith('buffer_') else R[1]
        elif op.startswith('s_'):
            self.kind = 'salu'
            if op.startswith('s_cmp') or op.startswith('s_cbranch') or op in ('s_branch', 's_nop', 's_waitcnt', 's_barrier', 's_endpgm', 's_sleep', 's_setprio') or op.startswith('s_bitcmp'):
                self.src = flat(R)
            else:
                self.dst = R[0] if R else []; self.src = flat(R[1:])
                if 'saveexec' in op: self.dst = self.dst + [('x', 'exec')]
        self.isdpp = self.kind == 'valu' and ('dpp' in op or 'row_' in rest or 'quad_perm' in rest or 'wave_' in rest)

    def states(self):
        if self.kind in ('label', 'none'): return 0
        if self.op == 's_nop': return int(self.text.split()[1], 0) + 1
        return 1

def need(p, c):
    n = 0
    ov = lambda a, b: bool(set(a) & set(b))
    vd = [r for r in p.dst if r[0] in 'va']
    sd = [r for r in p.dst if r[0] == 's' or r == ('x', 'vcc')]
    if p.kind == 'valu':
        if c.kind == 'mfma' and ov(vd, c.src): n = max(n, 2)
        if c.kind == 'valu':
            if c.isdpp and ov(vd, c.src): n = max(n, 2)
            if c.op.startswith('v_permlane') and ov(vd, c.src): n = max(n, 2)
            if getattr(c, 'rl', False) and ov(vd, c.src): n = max(n, 1)
            if p.op.split('_e')[0] in TRANS and ov(vd, c.src) : n = max(n, 1)
            if ov(sd, c.src): n = max(n, 4 if getattr(c, 'rl', False) or c.op.startswith('v_writelane') else 2)
            if ('sdwa' in p.op or 'op_sel' in p.mods and not p.op.startswith('v_pk')) and ov(vd, c.src + c.dst): n = max(n, 1)
            if p.op.startswith('v_dot') and ov(vd, c.src + c.dst) and not (c.op == p.op): n = max(n, 3)
        if p.op.split('_e')[0] in TRANS and c.kind in ('ds', 'vmem', 'mfma') and ov(vd, c.src): n = max(n, 2)
        if c.kind == 'vmem' and ov(sd, c.src): n = max(n, 5)
        if c.kind == 'salu' and ov(sd, c.src): n = max(n, 1)
        if ('x', 'exec') in p.dst:
            if c.kind == 'mfma': n = max(n, 4)
            if c.kind == 'valu' and (c.isdpp): n = max(n, 5)
            if c.kind == 'valu' and (getattr(c, 'rl', False) or c.op.startswith('v_permlane')): n = max(n, 4)
    if p.kind == 'salu':
        if ('x', 'm0') in p.dst and (getattr(c, 'dma', False) or 'addtid' in c.op): n = max(n, 1)
    if p.kind == 'mfma':
        P = p.passes
        if c.kind == 'mfma':
            if ov(p.dst, c.srcab): n = max(n, {4: 8, 8: 12}[P])
            if ov(p.dst, c.srcc) and not (c.srcc == p.dst and c.passes == P): n = max(n, {4: 6, 8: 10}[P])
            if ov(p.dst, c.dst) and not (c.srcc == p.dst and c.passes == P): n = max(n, {4: 8, 8: 12}[P])
        elif c.kind in ('valu', 'ds', 'vmem'):
            if ov(p.dst, c.src + c.dst): n = max(n, {4: 8, 8: 12}[P])
            if c.kind == 'valu' and ov(p.srcc, c.dst): n = max(n, {4: 3, 8: 7}[P])
    if p.kind == 'vmem' and getattr(p, 'store', False) and len(p.sdata) >= 3:
        if ov(p.sdata, c.dst): n = max(n, 2 if c.kind == 'valu' else 1)
    return n

class Asm:
    def __init__(self):
        self.lines = []
    def __call__(self, text):
        for l in text.split('\n'):
            l = l.strip()
            if l: self.lines.append(l)
    def label(self, name): self.lines.append(name + ':')
    stamps = False
    stamp_filter = '^[^_]'
    nstamp = 0
    amp_name = None
    amp_from = 'start'
    def stamp(self, name=''):
        if self.amp_name is not None:
            if name == self.amp_name: self("s_memrealtime s[66:67]"); self.amp_hit = True
            if name == self.amp_from: self("s_memrealtime s[64:65]")
        if not self.stamps: return
        if name not in ('start', 'end') and not re.search(self.stamp_filter, name): return
        k = self.nstamp; self.nstamp += 1
        assert k < 16
        self.stamp_names = getattr(self, 'stamp_names', []) + [name]
        self(f"s_memrealtime s[{64+2*k}:{65+2*k}]")
    def stamp_begin(self):
        self.amp_hit = False
        if self.amp_name is not None and not self.stamps: self.stamp('start')
        if not self.stamps: return
        self.nstamp = 0; self.stamp_names = []
        self("s_memrealtime s[98:99]")
        for k in range(16): self(f"s_mov_b32 s{64+2*k}, 0")
        self.stamp('start')
    def stamp_end(self, srd, base, sid, swave):
        if self.amp_name is not None:
            self("s_waitcnt vmcnt(0)")
            if self.amp_name == 'end' and srd == 's[20:23]': self("s_memrealtime s[66:67]"); self.amp_hit = True
            if self.amp_hit:
                n = len(self.lines)
                self("s_memrealtime s[68:69]")
                self("s_waitcnt lgkmcnt(0)")
                self("s_sub_u32 s3, s66, s64")
                self("s_lshl_b32 s3, s3, 3")
                self("s_min_u32 s3, s3, 100000")
                self.label(f"Lamp{n}")
                self("s_sleep 4")
                self("s_memrealtime s[70:71]")
                self("s_waitcnt lgkmcnt(0)")
                self("s_sub_u32 s70, s70, s68")
                self("s_cmp_lt_u32 s70, s3")
                self(f"s_cbranch_scc1 Lamp{n}")
        if not self.stamps: return
        self("s_waitcnt vmcnt(0)")
        self.stamp('end')
        self("s_memrealtime s[100:101]")
        self("s_waitcnt lgkmcnt(0)")
        self(f"s_lshl_b32 s3, {sid}, 2")
        self(f"s_add_u32 s3, s3, {swave}")
        self(f"s_lshl_b32 s3, s3, 7")
        self(f"s_add_u32 s3, s3, {base}")
        self("v_mov_b32 v2, 0")
        self("s_mov_b64 exec, 1")
        for k in range(16):
            self(f"v_mov_b32 v3, s{64+2*k}")
            self(f"buffer_store_dword v3, v2, {srd}, s3 offen offset:{4*k}")
        self("v_mov_b32 v3, s98")
        self(f"buffer_store_dword v3, v2, {srd}, s3 offen offset:64")
        self("v_mov_b32 v3, s100")
        self(f"buffer_store_dword v3, v2, {srd}, s3 offen offset:68")
        print("stamps:", self.stamp_names)
    def fix_hazards(self, verbose=False):
        ins = [Ins(l) for l in self.lines]
        changed = True
        total = 0
        while changed:
            changed = False
            labels = {x.text[:-1]: i for i, x in enumerate(ins) if x.kind == 'label'}
            i = 0
            while i < len(ins):
                c = ins[i]
                if c.kind in ('label', 'none'):
                    i += 1; continue
                worst = 0
                stack = [(i - 1, 0)]
                seen = set()
                while stack:
                    j, dist = stack.pop()
                    if j < 0 or dist >= 12 or (j, dist) in seen: continue
                    seen.add((j, dist))
                    p = ins[j]
                    if p.kind == 'label':
                        nm = p.text[:-1]
                        for k, q in enumerate(ins):
                            if q.kind == 'salu' and (q.op.startswith('s_cbranch') or q.op == 's_branch') and q.text.split()[-1] == nm:
                                stack.append((k, dist))
                        k = j - 1
                        while k >= 0 and ins[k].kind in ('none',): k -= 1
                        if k >= 0 and not (ins[k].op in ('s_branch', 's_endpgm')):
                            stack.append((j - 1, dist))
                        continue
                    if p.kind == 'none':
                        stack.append((j - 1, dist)); continue
                    nd = need(p, c)
                    if nd > dist: worst = max(worst, nd - dist)
                    stack.append((j - 1, dist + p.states()))
                if worst > 0:
                    if verbose: print("hazard pad", worst, "before", c.text)
                    ins.insert(i, Ins(f"s_nop {worst - 1}"))
                    total += 1
                    changed = True
                    labels = None
                    i += 1
                i += 1
        self.lines = [x.text for x in ins]
        return total
    def text(self):
        out = []
        for l in self.lines:
            out.append(l if l.endswith(':') or l.startswith('.') or l.startswith(';') else '    ' + l)
        return '\n'.join(out) + '\n'

class Queue:
    def __init__(self, A, name, maxn):
        self.A = A; self.name = name; self.maxn = maxn
        self.q = []
    def push(self, tag):
        self.q.append(tag); self.seen = getattr(self, 'seen', set()); self.seen.add(tag); self.log = getattr(self, 'log', []); self.log.append(tag)
    def count_for(self, tags):
        if isinstance(tags, (str, tuple)): tags = [tags]
        last = -1
        for i, t in enumerate(self.q):
            if t in tags: last = i
        if last < 0: return None
        return len(self.q) - 1 - last
    def need(self, tags, emit=True):
        n = self.count_for(tags)
        if n is None: return None
        n = min(n, self.maxn)
        self.q = self.q[len(self.q) - n:] if n else []
        if emit: self.A(f"s_waitcnt {self.name}({n})")
        return n
    def drain(self, emit=True):
        if self.q and emit: self.A(f"s_waitcnt {self.name}(0)")
        self.q = []
```

```python
from layout import *
from asmlib import Queue

SPIN = 200000
NOUY = 0
NO_I0 = 0
W1_SIZE = 512 * 1376 * 2
OOB = 0x7ff00000
SLOT = 28672
XOFF = 12288
L_B = 3 * SLOT
KREV_SZ = 4576
TROW = 528
CPY = 4160
L_TAB = 0
L_U = L_B
L_PART = L_U
L_BX = L_U + 8 * CPY
L_MISC = L_BX + 32768
L_SB = L_MISC
L_CNT = L_MISC + 768
L_KREV = L_MISC + 1024
L_LN = L_KREV
LDS_TOTAL = 163840
def slot_of(s): return ((s + 1) % 3) * SLOT
NST = 11
W2AREA = {0: L_BX, 1: L_BX + 16384, 2: 65536, 3: 0, 4: 16384, 5: 32768, 6: 49152, 7: L_BX, 8: L_BX + 16384, 9: 65536, 10: 0}
HINC = [1]*8 + [248] + [2]*4 + [248, 4, 4, 248, 4, 4, 248, 8, 248, 8, 248, 8, 248, 8] + [8]*4
C_LN, C_EX, C_BUILT, C_CVD, C_PART, C_Y, C_TABW, C_TABF, C_U, C_FIN, C_TAG = range(0, 44, 4)
C_FULL, C_FREE = 64, 80
sID, sW, sTAG, sQ = 's4', 's5', 's6', 's7'
sRB, sCB, sRB2, sDB, sM2 = 's34', 's35', 's48', 's49', 's52'
vLANE = 'v1'

class Role:
    def __init__(self, A):
        self.A = A
        self.vm = Queue(A, 'vmcnt', 63); self.lg = Queue(A, 'lgkmcnt', 15)
        self.stubs = []
    def emit(self, op):
        lines, q, tag = op
        for l in lines: self.A(l)
        if q is not None: q.push(tag)
    def V(self, line, tag): self.A(line); self.vm.push(tag)
    def L(self, line, tag): self.A(line); self.lg.push(tag)
    def soft_arrive(self, off, vc, vt):
        A = self.A
        A(f"v_mov_b32 v{vt}, 1")
        A(f"s_mov_b64 exec, 1")
        self.L(f"ds_add_u32 v{vc}, v{vt} offset:{off}", 'sa')
        A(f"s_mov_b64 exec, -1")
    def soft_wait(self, name, off, target, vc, vt, slp=0):
        A = self.A
        A(f"s_mov_b32 s42, {SPIN*8}")
        A.label(f"L{name}")
        A(f"ds_read_b32 v{vt}, v{vc} offset:{off}")
        A(f"s_waitcnt lgkmcnt(0)")
        A(f"v_readfirstlane_b32 s3, v{vt}")
        A(f"s_sub_u32 s42, s42, 1")
        A(f"s_cbranch_scc1 L{name}_ok")
        A(f"s_cmp_ge_u32 s3, {target}")
        A(f"s_cbranch_scc1 L{name}_ok")
        if slp: A(f"s_sleep {slp}")
        A(f"s_branch L{name}")
        A.label(f"L{name}_ok")
        self.lg.q = []
    def post_word(self, vaddr, off, val, vt):
        A = self.A
        A(f"v_mov_b32 v{vt}, {val}")
        A(f"s_mov_b64 exec, 1")
        self.L(f"ds_write_b32 v{vaddr}, v{vt} offset:{off}", 'sa')
        A(f"s_mov_b64 exec, -1")
    def ids(self):
        A = self.A
        A(f"s_and_b32 s3, {sID}, 7")
        A(f"s_lshr_b32 {sQ}, {sID}, 3")
        A(f"s_lshl_b32 s43, s3, 5")
        A(f"s_add_u32 {sQ}, {sQ}, s43")
        A(f"s_bfe_u32 s34, {sID}, 0x10003")
        A(f"s_lshl_b32 s43, s3, 1")
        A(f"s_add_u32 s34, s34, s43")
        A(f"s_lshr_b32 s35, {sID}, 4")
        A(f"s_bfe_u32 s48, {sID}, 0x20003")
        A(f"s_lshl_b32 s43, s3, 2")
        A(f"s_add_u32 s48, s48, s43")
        A(f"s_lshr_b32 s49, {sID}, 5")
        A(f"s_lshl_b32 s52, {sW}, 12")

    def w2_src(self, vD, t0, t1, t2):
        A = self.A
        A(f"v_lshrrev_b32 v{t0}, 3, {vLANE}")
        A(f"v_and_b32 v{t1}, 7, {vLANE}")
        A(f"v_bfe_u32 v{t2}, {vLANE}, 4, 1")
        A(f"v_lshlrev_b32 v{t2}, 2, v{t2}")
        A(f"v_xor_b32 v{t1}, v{t1}, v{t2}")
        A(f"v_lshlrev_b32 v{t1}, 4, v{t1}")
        A(f"v_lshl_add_u32 v{t1}, v{t0}, 10, v{t1}")
        A(f"s_lshl_b32 s3, s49, 7")
        A(f"v_add_u32 v{vD}, s3, v{t1}")
        for i in (1, 2, 3): A(f"v_add_u32 v{vD+i}, {7168*i}, v{vD}")
        A(f"s_mul_i32 s50, {sW}, {NST*32768}")
    def w2_ops(self, st, vD, W2):
        return [([f"s_add_u32 m0, s52, {W2AREA[st]}", f"s_add_u32 s53, s50, {st*32768}"][:2 if i == 0 else 0]
                 + [f"buffer_load_dwordx4 v{vD+i}, {W2}, s53 offen offset:{1024*i} lds"], self.vm, ('w2', st)) for i in range(4)]

class M(Role):
    y_at = 8
    y_per = 2
    h_sleep = 2
    HD = 4
    n_early = 3
    t0_first = 0
    e0 = 18
    xl_at = 22
    st_at = 17
    w2_gate = 0
    osc = 'nt'
    sent = 0
    early_gate = 1
    w_by_l = 0
    poll_at = 1
    wait_built = 1
    h_first = 0
    w_pre = 2
    h_delay = 0
    x_at = 21
    def run(self):
        A = self.A; vm = self.vm; lg = self.lg; E = self.emit; V = self.V; L = self.L
        X, W2, WS, OUT, B1 = 's[8:11]', 's[16:19]', 's[20:23]', 's[24:27]', 's[28:31]'
        pB2 = 's[32:33]'
        sc = 'sc1'
        vXA, vWA, vONE, vSA, vB1, vACC, vWB, vXB = 12, 16, 20, 24, 28, 32, 80, 104
        vX, vS2, vOF = 192, 204, 208
        vST, vEX, vFU = 112, 116, 132
        vRA, vMS, vCN, vTM, vDS = 240, 246, 250, 251, 252
        A(f"s_load_dwordx2 s[8:9], s[0:1], 0")
        A(f"s_load_dwordx2 s[20:21], s[0:1], 112")
        A(f"s_load_dwordx2 s[28:29], s[0:1], 72")
        A(f"s_load_dwordx2 s[32:33], s[0:1], 88")
        A(f"s_load_dwordx2 s[16:17], s[0:1], 80")
        A(f"s_load_dwordx2 s[24:25], s[0:1], 96")
        self.ids()
        for base, size in ((8, 0x200000), (20, WS_SIZE), (16, W1_SIZE), (24, 0x200000), (28, 2752)):
            A(f"s_mov_b32 s{base+2}, {size}")
            A(f"s_mov_b32 s{base+3}, 0x20000")
        A(f"s_lshl_b32 s3, {sQ}, 13")
        A(f"s_lshl_b32 s43, {sW}, 11")
        A(f"s_add_u32 s3, s3, s43")
        vLO, vLW, vLR, vL3 = 136, 137, 138, 139
        R = 140; F = 32; T = 48
        A(f"v_lshl_add_u32 v{vLO}, {vLANE}, 4, s3")
        A(f"v_mov_b32 v{vST+3}, {WS_EP}")
        A(f"v_mov_b32 v{vCN}, {L_CNT}")
        A(f"v_mov_b32 v2, 0")
        A(f"v_lshl_add_u32 v3, {vLANE}, 2, v{vCN}")
        A(f"ds_write_b32 v3, v2")
        A(f"s_waitcnt lgkmcnt(0)")
        V(f"buffer_load_dwordx4 v[{R}:{R+3}], v{vLO}, {X}, 0 offen", 'lnx')
        V(f"buffer_load_dwordx4 v[{R+4}:{R+7}], v{vLO}, {X}, 0 offen offset:1024", 'lnx')
        V(f"buffer_load_dword v{vST+3}, v{vST+3}, {WS}, 0 offen sc1", 'ep')
        if not NO_I0: A(f"s_barrier")
        A("; split_pro")
        A(f"s_cmp_eq_u32 {sW}, 3")
        A(f"s_cselect_b32 s44, 0, {sW}")
        A(f"s_add_u32 s45, s44, 1")
        A(f"s_cmp_eq_u32 s45, 3")
        A(f"s_cselect_b32 s45, 0, s45")
        A(f"s_add_u32 s46, s45, 1")
        A(f"s_cmp_eq_u32 s46, 3")
        A(f"s_cselect_b32 s46, 0, s46")
        A(f"v_lshrrev_b32 v30, 4, {vLANE}")
        A(f"v_and_b32 v19, 31, {vLANE}")
        A(f"v_bfe_u32 v31, {vLANE}, 1, 3")
        A(f"v_lshrrev_b32 v11, 5, {vLANE}")
        A(f"v_xor_b32 v31, v31, v11")
        A(f"v_lshlrev_b32 v31, 4, v31")
        A(f"v_lshl_add_u32 v31, v19, 7, v31")
        A(f"s_add_u32 s3, {sM2}, {XOFF}")
        A(f"v_add_u32 v{vXA}, s3, v31")
        for k in (1, 2, 3): A(f"v_xor_b32 v{vXA+k}, {32*k}, v{vXA}")
        A(f"v_bfe_u32 v3, {vLANE}, 2, 2")
        A(f"v_lshl_add_u32 v2, v11, 3, v3")
        A(f"v_mul_u32_u24 v2, 192, v2")
        A(f"v_and_b32 v31, 1, v30")
        A(f"v_lshl_add_u32 v2, v31, 5, v2")
        A(f"v_and_b32 v29, 3, {vLANE}")
        A(f"v_lshl_add_u32 v2, v29, 3, v2")
        for i in range(3): A(f"v_lshl_add_u32 v{vWA+i}, s{44+i}, 6, v2")
        for i in range(3): A(f"v_add_u32 v{4+i}, {2*SLOT}, v{vWA+i}")
        A(f"v_lshl_add_u32 v2, v11, 2, v3")
        A(f"v_lshlrev_b32 v2, 7, v2")
        A(f"v_xor_b32 v31, {sW}, v31")
        A(f"v_and_b32 v8, 2, v3")
        A(f"v_xor_b32 v31, v31, v8")
        A(f"v_lshl_add_u32 v2, v31, 5, v2")
        A(f"v_lshl_add_u32 v2, v29, 3, v2")
        A(f"v_add_u32 v{vRA}, {sM2}, v2")
        A(f"v_xor_b32 v{vRA+1}, 64, v{vRA}")
        A(f"v_add_u32 v{vRA+2}, 65536, v{vRA}")
        A(f"v_add_u32 v{vRA+3}, 65536, v{vRA+1}")
        A(f"v_add_u32 v{vRA+4}, {L_BX}, v{vRA}")
        A(f"v_add_u32 v{vRA+5}, {L_BX}, v{vRA+1}")
        LNROW = 1088; STS = 8 * LNROW
        A(f"v_mul_u32_u24 v{vLR}, {LNROW}, v3")
        A(f"v_xor_b32 v3, v3, v30")
        A(f"v_and_b32 v3, 1, v3")
        A(f"v_cmp_eq_u32 vcc, 0, v3")
        A(f"v_mov_b32 v31, 0x3f803f80")
        A(f"s_mul_i32 s3, {sW}, {2*LNROW}")
        A(f"s_add_u32 s3, s3, {L_LN}")
        A(f"v_lshl_add_u32 v{vLW}, {vLANE}, 4, s3")
        for i in range(4): A(f"v_cndmask_b32 v{vONE+i}, 0, v31, vcc")
        A(f"v_lshl_add_u32 v{vLR}, v30, 5, v{vLR}")
        A(f"v_lshl_add_u32 v{vLR}, v29, 3, v{vLR}")
        A(f"s_lshl_b32 s3, {sW}, 8")
        A(f"s_add_u32 s3, s3, {L_LN}")
        A(f"v_add_u32 v{vLR}, s3, v{vLR}")
        self.w2_src(vDS, 2, 3, 8)
        A(f"v_mov_b32 v{T+12}, 0x3b000000")
        vm.need(['lnx', 'ep'])
        A.stamp('ln loaded')
        A(f"v_readfirstlane_b32 {sTAG}, v{vST+3}")
        for r in range(2):
            for i in range(4):
                A(f"v_lshlrev_b32 v{F+8*r+2*i}, 16, v{R+4*r+i}")
                A(f"v_and_b32 v{F+8*r+2*i+1}, 0xffff0000, v{R+4*r+i}")
        A(f"s_or_b32 {sTAG}, {sTAG}, 1")
        A(f"s_add_u32 {sTAG}, {sTAG}, {TAG_INC:#x}")
        for r in range(2):
            b = F + 8 * r
            A(f"v_pk_add_f32 v[{T+4*r}:{T+4*r+1}], v[{b}:{b+1}], v[{b+2}:{b+3}]")
            A(f"v_pk_mul_f32 v[{T+4*r+2}:{T+4*r+3}], v[{b}:{b+1}], v[{b}:{b+1}]")
        for i in (1, 2, 3):
            for r in range(2):
                b = F + 8 * r + 2 * i
                if i >= 2: A(f"v_pk_add_f32 v[{T+4*r}:{T+4*r+1}], v[{T+4*r}:{T+4*r+1}], v[{b}:{b+1}]")
                A(f"v_pk_fma_f32 v[{T+4*r+2}:{T+4*r+3}], v[{b}:{b+1}], v[{b}:{b+1}], v[{T+4*r+2}:{T+4*r+3}]")
        for k in range(4): A(f"v_add_f32 v{T+8+k}, v{T+2*k}, v{T+2*k+1}")
        for ctl in ("row_shr:1 row_mask:0xf bank_mask:0xf bound_ctrl:0", "row_shr:2 row_mask:0xf bank_mask:0xf bound_ctrl:0",
                    "row_shr:4 row_mask:0xf bank_mask:0xf bound_ctrl:0", "row_shr:8 row_mask:0xf bank_mask:0xf bound_ctrl:0",
                    "row_bcast:15 row_mask:0xa bank_mask:0xf", "row_bcast:31 row_mask:0xc bank_mask:0xf"):
            for k in range(4): A(f"v_add_f32_dpp v{T+8+k}, v{T+8+k}, v{T+8+k} {ctl}")
        for k in range(4): A(f"v_readlane_b32 s{56+k}, v{T+8+k}, 63")
        Mn, Vv, P = T, T + 2, T + 4
        for r in range(2):
            A(f"v_mul_f32 v{Mn+r}, s{56+2*r}, v{T+12}")
            A(f"v_mul_f32 v{Vv+r}, s{57+2*r}, v{T+12}")
        for r in range(2): A(f"v_fma_f32 v{Vv+r}, -v{Mn+r}, v{Mn+r}, v{Vv+r}")
        for r in range(2): A(f"v_max_f32 v{Vv+r}, 0, v{Vv+r}")
        for r in range(2): A(f"v_cvt_pk_bf16_f32 v{P+r}, v{Mn+r}, v{Vv+r}")
        for r in range(2): A(f"v_and_b32 v{Vv+r}, 0xffff0000, v{P+r}")
        for r in range(2): A(f"v_add_f32 v{Vv+r}, 0x3727c5ac, v{Vv+r}")
        A(f"v_cvt_pk_bf16_f32 v{P+2}, v{Vv}, v{Vv+1}")
        A(f"v_lshlrev_b32 v{Vv}, 16, v{P+2}")
        A(f"v_and_b32 v{Vv+1}, 0xffff0000, v{P+2}")
        for r in range(2): A(f"v_sqrt_f32 v{Vv+r}, v{Vv+r}")
        for r in range(2): A(f"v_lshlrev_b32 v{Mn+r}, 16, v{P+r}")
        Gq = 148
        for r in range(2):
            A(f"v_cvt_pk_bf16_f32 v{Gq+2*r}, v{Mn+r}, v{Vv+r}")
            A(f"v_mov_b32 v{Gq+2*r+1}, {sTAG}")
        for r in range(2): A(f"v_and_b32 v{Vv+r}, 0xffff0000, v{Gq+2*r}")
        RS = T + 14
        for r in range(2): A(f"v_rcp_f32 v{RS+2*r}, v{Vv+r}")
        A(f"s_lshl_b32 s3, {sW}, 4")
        A(f"s_add_u32 s3, s3, {L_LN}")
        A(f"v_mov_b32 v{vL3}, s3")
        A(f"s_mov_b64 exec, 1")
        L(f"ds_write_b128 v{vL3}, v[{Gq}:{Gq+3}] offset:{STS}", 'lnw')
        L(f"ds_write_b32 v{vCN}, v{Gq+1} offset:{C_TAG}", 'lnw')
        A(f"s_mov_b64 exec, -1")
        for r in range(2): A(f"v_mul_f32_e64 v{RS+2*r+1}, -v{Mn+r}, v{RS+2*r}")
        for r in range(2):
            for i in range(4):
                b = F + 8 * r + 2 * i
                A(f"v_pk_fma_f32 v[{b}:{b+1}], v[{b}:{b+1}], v[{RS+2*r}:{RS+2*r+1}], v[{RS+2*r}:{RS+2*r+1}] op_sel:[0,0,1] op_sel_hi:[1,0,1]")
            for i in range(4):
                b = F + 8 * r + 2 * i
                A(f"v_cvt_pk_bf16_f32 v{R+4*r+i}, v{b}, v{b+1}")
            L(f"ds_write_b128 v{vLW}, v[{R+4*r}:{R+4*r+3}] offset:{LNROW*r}", 'lnw')
        if not NO_I0: self.soft_arrive(C_LN, vCN, vTM)
        A(f"v_lshlrev_b32 v7, 4, {vLANE}")
        A(f"v_add_u32 v{vLW}, {L_LN}, v7")
        A(f"s_lshl_b32 s55, {sQ}, 7")
        A(f"s_add_u32 s54, s55, {WS_ST}")
        A(f"s_lshl_b32 s55, {sQ}, 2")
        A(f"s_add_u32 s55, s55, {WS_FU}")
        def ln_reads():
            for i in range(2):
                L(f"ds_read_b64_tr_b16 v[{R+4*i}:{R+4*i+1}], v{vLR} offset:{128*i}", 'lnr')
                L(f"ds_read_b64_tr_b16 v[{R+4*i+2}:{R+4*i+3}], v{vLR} offset:{128*i+4*LNROW}", 'lnr')
            L(f"ds_read_b128 v[{Gq}:{Gq+3}], v{vLW} offset:{STS}", 'lnr')
        def ln_stores():
            A(f"s_cmp_eq_u32 {sW}, 0")
            lg.need('lnr')
            A(f"s_cbranch_scc0 Lm_nost")
            A(f"s_mov_b64 exec, 15")
            A(f"buffer_store_dwordx4 v[{Gq}:{Gq+3}], v7, {WS}, s54 offen sc1")
            A(f"s_mov_b64 exec, -1")
            A.label("Lm_nost")
            V(f"buffer_store_dwordx4 v[{R}:{R+3}], v{vLO}, {WS}, 0 offen sc1", 'ust')
            V(f"buffer_store_dwordx4 v[{R+4}:{R+7}], v{vLO}, {WS}, 0 offen offset:1024 sc1", 'ust')
        if not NO_I0:
            self.soft_wait("m_ln", C_LN, 4, vCN, vTM)
            ln_reads(); ln_stores()
        A(f"v_lshlrev_b32 v29, 1, v19")
        A(f"s_mul_i32 s3, {sCB}, 192")
        A(f"s_lshl_b32 s43, s44, 6")
        A(f"s_add_u32 s3, s3, s43")
        V(f"buffer_load_ushort v{vB1}, v29, {B1}, s3 offen", 'b1')
        A.stamp('ln done')
        def rd_ops(i):
            s, ks = i >> 2, i & 3
            so = slot_of(s)
            xr = vXB + 4 * (i & 1)
            ops = [([f"ds_read_b128 v[{xr}:{xr+3}], v{vXA+ks} offset:{so}"], lg, ('f', i, 0))]
            base, off = (vWA, so) if so < 2 * SLOT else (4, 0)
            off += ks * 3072
            for t in range(3):
                r = vWB + 12 * (i & 1) + 4 * t
                ops.append(([f"ds_read_b64_tr_b16 v[{r}:{r+1}], v{base+t} offset:{off}"], lg, ('f', i, t)))
                ops.append(([f"ds_read_b64_tr_b16 v[{r+2}:{r+3}], v{base+t} offset:{off+768}"], lg, ('f', i, t)))
            return ops
        A(f"s_mov_b32 s41, {SPIN*8}")
        lg.drain()
        A(f"s_barrier")
        A.stamp('g1 st0')
        for o in rd_ops(0): E(o)
        if NO_I0: ln_reads()
        A(f"v_and_b32 v{vST+2}, 24, v19")
        A(f"v_add_lshl_u32 v{vST+2}, v{vST+2}, v19, 3")
        A(f"s_lshl_b32 s3, {sRB}, 11")
        A(f"s_lshl_b32 s43, {sW}, 9")
        A(f"s_add_u32 s47, s3, s43")
        A(f"s_add_u32 s47, s47, {WS_ST}")
        for i in range(32):
            s, ks = i >> 2, i & 3
            nxt = rd_ops(i + 1) if i < 31 else []
            x = vXB + 4 * (i & 1)
            cuts = [(0, 3), (3, 5), (5, 7)]
            for t in range(3):
                lg.need(('f', i, t))
                r = vWB + 12 * (i & 1) + 4 * t
                a = vACC + 16 * t
                c = '0' if i == 0 else f"v[{a}:{a+15}]"
                A(f"v_mfma_f32_32x32x16_bf16 v[{a}:{a+15}], v[{r}:{r+3}], v[{x}:{x+3}], {c}")
                if t == 0 and ks == 3 and s < 7:
                    A.stamp(f'_A{s}')
                    if s == self.u_at: vm.need('ust')
                    lg.drain()
                    A(f"s_barrier")
                    A.stamp(f'_B{s}')
                    if s == self.u_at:
                        A(f"s_cmp_eq_u32 {sW}, 0")
                        A(f"s_cbranch_scc1 Lm_pu")
                        A.label("Lm_pu_ok")
                        self.stubs.append(["Lm_pu:", f"v_mov_b32 v2, {sTAG}", f"v_mov_b32 v3, 0", f"s_mov_b64 exec, 1", f"buffer_store_dword v2, v3, {WS}, s55 offen sc1",
                                           f"s_mov_b64 exec, -1", f"s_branch Lm_pu_ok"])
                for o in nxt[cuts[t][0]:cuts[t][1]]: E(o)
            r = vWB + 12 * (i & 1)
            c = '0' if i == 0 else f"v[{vSA}:{vSA+3}]"
            A(f"v_mfma_f32_16x16x32_bf16 v[{vSA}:{vSA+3}], v[{vONE}:{vONE+3}], v[{r}:{r+3}], {c}")
            if i == 0 and NO_I0: ln_stores()
            if i == self.st_at:
                V(f"buffer_load_dwordx2 v[{vST}:{vST+1}], v{vST+2}, {WS}, s47 offen {sc}", 'st')
            if i == self.e0:
                A(f"v_lshlrev_b32 v{vOF}, 10, v19")
                A(f"v_lshl_add_u32 v{vOF}, v11, 4, v{vOF}")
                A(f"s_lshl_b32 s3, {sRB2}, 16")
                A(f"s_lshl_b32 s43, {sDB}, 7")
                A(f"s_lshl_b32 s40, {sW}, 5")
                A(f"s_add_u32 s43, s43, s40")
                A(f"s_add_u32 s3, s3, s43")
                A(f"v_add_u32 v{vOF}, s3, v{vOF}")
                A(f"v_add_u32 v{vOF+1}, 32768, v{vOF}")
                A(f"v_lshl_add_u32 v2, v11, 3, s43")
                A(f"s_lshl_b32 s39, {sRB2}, 10")
                A(f"s_add_u32 s39, s39, {WS_ST}")
                V(f"global_load_dwordx2 v[{vX+8}:{vX+9}], v2, {pB2}", 'st')
                V(f"global_load_dwordx2 v[{vX+10}:{vX+11}], v2, {pB2} offset:16", 'st')
            if i == self.x_at:
                V(f"buffer_load_dwordx2 v[{vS2}:{vS2+1}], v{vST+2}, {WS}, s39 offen {sc}", 'st')
                V(f"buffer_load_dwordx2 v[{vS2+2}:{vS2+3}], v{vST+2}, {WS}, s39 offen offset:512 {sc}", 'st')
            if i == self.xl_at: V(f"buffer_load_dwordx4 v[{vX}:{vX+3}], v{vOF}, {X}, 0 offen", 'st')
            if i == self.xl_at + 1: V(f"buffer_load_dwordx4 v[{vX+4}:{vX+7}], v{vOF+1}, {X}, 0 offen", 'st')
            if i == self.e0 + 1 and self.sent:
                A(f"v_and_b32 v2, 3, {vLANE}")
                A(f"v_lshlrev_b32 v2, 3, v2")
                A(f"v_lshrrev_b32_e64 v2, v2, {sTAG}")
                for j in range(4):
                    A(f"v_lshlrev_b32 v3, {15 - 2*j}, v2")
                    A(f"v_and_b32 v3, 0x8000, v3")
                    A(f"v_lshlrev_b32 v{vMS+j}, {30 - 2*j}, v2")
                    A(f"v_and_b32 v{vMS+j}, 0x80000000, v{vMS+j}")
                    A(f"v_or_b32 v{vMS+j}, v{vMS+j}, v3")
            if i == self.e0 + 1 and not self.sent:
                A(f"s_lshl_b32 s3, {sRB}, 1")
                A(f"s_lshr_b32 s43, {sW}, 1")
                A(f"s_add_u32 s3, s3, s43")
                A(f"s_lshl_b32 s3, s3, 5")
                A(f"s_lshl_b32 s43, {sCB}, 1")
                A(f"s_add_u32 s3, s3, s43")
                A(f"s_and_b32 s43, {sW}, 1")
                A(f"s_add_u32 s3, s3, s43")
                A(f"s_lshl_b32 s3, s3, 7")
                A(f"s_add_u32 s38, s3, {WS_FH}")
                def msk(w):
                    lo = (22 * w) // 6; hi = min((22 * w + 21) // 6, 14)
                    return sum(3 << (2 * c) for c in range(lo, hi + 1))
                A(f"s_mov_b32 s37, {msk(0):#x}")
                for w in (1, 2, 3):
                    A(f"s_cmp_eq_u32 {sW}, {w}")
                    A(f"s_cselect_b32 s37, {msk(w):#x}, s37")
                A(f"s_lshl_b32 s36, {sRB2}, 12")
                A(f"s_add_u32 s36, s36, {WS_FH}")
                A(f"v_lshlrev_b32 v{vMS}, 7, v19")
                A(f"v_mov_b32 v{vMS+1}, {sTAG}")
                A(f"v_mov_b32 v{vMS+2}, 0")
                A(f"v_lshl_add_u32 v{vMS+3}, {sW}, 2, v{vCN}")
            if i == self.e0 + 3:
                A(f"s_lshl_b32 s3, {sRB}, 2")
                A(f"s_add_u32 s3, s3, {sW}")
                A(f"s_mul_i32 s3, s3, {HK}")
                A(f"s_lshl_b32 s3, s3, 10")
                A(f"s_add_u32 s3, s3, {WS_H}")
                A(f"s_mul_i32 s43, {sCB}, 3")
                A(f"v_lshlrev_b32 v2, 3, v19")
                A(f"v_add_u32 v2, {L_SB}, v2")
                for k in range(3): A(f"v_lshl_add_u32 v{8+k}, s{44+k}, 8, v2")
                for k in range(3):
                    A(f"s_add_u32 s{44+k}, s{44+k}, s43")
                    A(f"s_cmp_lt_u32 s{44+k}, 43")
                    A(f"s_cselect_b32 s54, s3, {OOB:#x}")
                    A(f"s_lshl_b32 s{44+k}, s{44+k}, 11")
                    A(f"s_add_u32 s{44+k}, s{44+k}, s54")
            if i == self.e0 + 4:
                for k in range(16): A(f"v_mov_b32 v{vEX+k}, 0")
            if i == 29:
                vm.need(['st', 'b1'])
                A.label("Lg1_st")
                A(f"v_cmp_ne_u32 vcc, {sTAG}, v{vST+1}")
                A(f"s_cbranch_vccnz Lg1_st_r")
                A.label("Lg1_st_ok")
                self.stubs.append(["Lg1_st_r:", f"s_sub_u32 s41, s41, 8", f"s_cselect_b32 s41, 0, s41", f"s_cbranch_scc1 Lg1_st_ok", f"s_sleep 4",
                                   f"buffer_load_dwordx2 v[{vST}:{vST+1}], v{vST+2}, {WS}, s47 offen {sc}", f"s_waitcnt vmcnt(0)", f"s_branch Lg1_st"])
                vBX = vEX + 12
                A(f"v_xor_b32 v{vBX+1}, 0x8000, v{vST}")
                A(f"v_alignbit_b32 v{vBX}, v{vBX+1}, v{vBX+1}, 16")
                A(f"v_and_b32 v{vBX+1}, 0xffff, v{vBX+1}")
        A.stamp('g1 loop end')
        vBX = vEX + 12
        A(f"v_cvt_pk_bf16_f32 v2, v{vSA}, v{vSA}")
        A(f"v_and_b32 v2, 0xffff0000, v2")
        A(f"v_sub_f32 v3, v{vSA}, v2")
        A(f"s_mov_b32 exec_hi, 0")
        A(f"v_cvt_pk_bf16_f32 v{vEX+1}, v3, v{vBX+2}")
        A(f"v_or_b32 v{vEX}, v2, v{vB1}")
        L(f"ds_write_b64 v8, v[{vEX}:{vEX+1}]", 'exw')
        A(f"s_mov_b32 exec_hi, -1")
        A(f"v_mfma_f32_32x32x16_bf16 v[{vACC}:{vACC+15}], v[{vEX}:{vEX+3}], v[{vBX}:{vBX+3}], v[{vACC}:{vACC+15}]")
        vH0, vH1, vA2, vHF, HD = 7, 6, 32, 96, self.HD
        A(f"v_add_u32 v{vH1}, {HK*1024}, v{vH0}")
        A(f"v_mov_b32 v4, v{vOF}")
        A(f"v_mov_b32 v5, v{vOF+1}")
        def tile(k):
            a = vACC + 16 * k
            for half in range(2):
                for p in range(8 * half, 8 * half + 8): A(f"v_mul_f32_e64 v{a+p}, v{a+p}, |v{a+p}|")
                for p in range(4 * half, 4 * half + 4): A(f"v_cvt_pk_bf16_f32 v{a+p}, v{a+2*p}, v{a+2*p+1}")
                for p in range(4 * half, 4 * half + 4): A(f"v_pk_max_i16 v{a+p}, v{a+p}, 0")
                if self.sent:
                    for p in range(4 * half, 4 * half + 4): A(f"v_or_b32 v{a+p}, v{a+p}, v{vMS + (p & 3)}")
                V(f"buffer_store_dwordx4 v[{a+4*half}:{a+4*half+3}], v7, {WS}, s{44+k} offen offset:{1024*half} {sc}", 'hst')
        if self.t0_first: tile(0)
        lg.drain()
        A(f"s_barrier")
        A(f"s_mov_b32 exec_hi, 0")
        for k in (1, 2): L(f"ds_read_b64 v[{vEX+4*k}:{vEX+4*k+1}], v{8+k}", ('exr', k))
        A(f"s_mov_b32 exec_hi, -1")
        for k in (1, 2):
            lg.need(('exr', k))
            a = vACC + 16 * k
            A(f"v_mfma_f32_32x32x16_bf16 v[{a}:{a+15}], v[{vEX+4*k}:{vEX+4*k+3}], v[{vBX}:{vBX+3}], v[{a}:{a+15}]")
        if not self.t0_first: tile(0)
        tile(1); tile(2)
        A.stamp('g1 stored')
        W = lambda st: self.w2_ops(st, vDS, W2)
        if not self.w2_gate:
            for o in W(2): E(o)
        A(f"s_mul_i32 s51, {sRB2}, {2*HK*1024}")
        A(f"s_mul_i32 s3, {sW}, {NST*2048}")
        A(f"s_add_u32 s51, s51, s3")
        A(f"s_add_u32 s51, s51, {WS_H}")
        A(f"s_add_u32 s55, s51, {10*2048}")
        A(f"s_cmp_eq_u32 {sW}, 3")
        A(f"s_cselect_b32 s55, {OOB:#x}, s55")
        WREG = {0: 160, 1: 176, 2: 192}
        def rd2_ops(p, kk):
            ar = W2AREA[p]; ops = []; dst = (WREG[p] + 8 * kk) if p in WREG else treg(p, kk)
            a, off = (vRA, ar) if ar < 65536 else ((vRA + 2, ar - 65536) if ar < L_BX else (vRA + 4, ar - L_BX))
            off += kk * 2048
            for dt in range(2):
                r = dst + 4 * dt
                ops.append(([f"ds_read_b64_tr_b16 v[{r}:{r+1}], v{a+dt} offset:{off}"], lg, ('t', p, kk)))
                ops.append(([f"ds_read_b64_tr_b16 v[{r+2}:{r+3}], v{a+dt} offset:{off+1024}"], lg, ('t', p, kk)))
            return ops
        for o in rd2_ops(0, 0) + rd2_ops(0, 1): E(o)
        A(f"v_lshlrev_b32 v12, 3, v19")
        A(f"v_lshl_add_u32 v28, v11, 15, v12")
        A(f"v_and_b32 v13, 1, {vLANE}")
        A(f"v_lshlrev_b32 v13, 4, v13")
        A(f"v_lshrrev_b32_e64 v29, v13, {sTAG}")
        A(f"v_lshrrev_b32 v31, 8, v29")
        A.label("Lg2_st")
        A(f"v_xor_b32 v14, {sTAG}, v{vS2+1}")
        A(f"v_xor_b32 v30, {sTAG}, v{vS2+3}")
        A(f"v_or_b32 v14, v14, v30")
        A(f"v_cmp_ne_u32 vcc, 0, v14")
        A(f"s_cbranch_vccnz Lg2_st_r")
        A.label("Lg2_st_ok")
        self.stubs.append(["Lg2_st_r:", f"s_sub_u32 s41, s41, 8", f"s_cselect_b32 s41, 0, s41", f"s_cbranch_scc1 Lg2_st_ok", f"s_sleep 4",
                           f"buffer_load_dwordx2 v[{vS2}:{vS2+1}], v{vST+2}, {WS}, s39 offen {sc}", f"buffer_load_dwordx2 v[{vS2+2}:{vS2+3}], v{vST+2}, {WS}, s39 offen offset:512 {sc}",
                           f"s_waitcnt vmcnt(0)", f"s_branch Lg2_st"])
        def ldh_ops(p, kk):
            r = vHF + 16 * (p % HD) + 8 * kk
            so = 's55' if p == 10 else 's43'
            return [([f"s_add_u32 s43, s51, {p*2048}"][:(1 - tt) if p < 10 else 0] +
                     [f"buffer_load_dwordx4 v[{r+4*tt}:{r+4*tt+3}], v{[vH0, vH1][tt]}, {WS}, {so} offen offset:{1024*kk} {sc}"], vm, ('h', p, kk)) for tt in range(2)]
        for tt in range(2):
            b = vX + 4 * tt
            A(f"v_permlane32_swap_b32 v{b}, v{b+2}")
            A(f"v_permlane32_swap_b32 v{b+1}, v{b+3}")
        for tt in range(2):
            A(f"v_and_b32 v{8+tt}, 0xffff0000, v{vS2+2*tt}")
            A(f"v_mul_f32 v{8+tt}, v{8+tt}, v{8+tt}")
            A(f"v_rcp_f32 v{2+tt}, v{8+tt}")
        lg.drain()
        for o in rd2_ops(1, 0) + rd2_ops(1, 1): E(o)
        for j in range(4):
            A(f"v_lshlrev_b32 v{80+2*j}, 16, v{vX+8+j}")
            A(f"v_and_b32 v{81+2*j}, 0xffff0000, v{vX+8+j}")
        for tt in range(2):
            a = vA2 + 16 * tt
            for j in range(4):
                A(f"v_lshlrev_b32 v{a+2*j}, 16, v{vX+4*tt+j}")
                A(f"v_and_b32 v{a+2*j+1}, 0xffff0000, v{vX+4*tt+j}")
            for j in range(8): A(f"v_add_f32 v{a+j}, v{a+j}, v{80+j}")
            for j in range(8): A(f"v_mul_f32 v{a+j}, v{a+j}, v{8+tt}")
            for j in range(8, 16): A(f"v_mov_b32 v{a+j}, 0")
        A(f"s_lshl_b32 s3, {sDB}, 19")
        A(f"s_lshl_b32 s44, {sW}, 17")
        A(f"s_add_u32 s3, s3, s44")
        A(f"s_lshl_b32 s44, {sRB2}, 9")
        A(f"s_add_u32 s3, s3, s44")
        A(f"s_add_u32 s47, s3, {WS_YT}")
        if not self.sent:
            vm.need('hst')
            A(f"s_mov_b64 exec, 1")
            V(f"buffer_store_dword v{vMS+1}, v{vMS+2}, {WS}, s38 offen sc1", 'flag')
            A(f"s_mov_b64 exec, -1")
        A.stamp('g2 flag')
        if not self.w2_gate:
            vm.need(('w2', 2))
            lg.drain()
            for o in rd2_ops(2, 0) + rd2_ops(2, 1): E(o)
        pollop = ([f"s_mov_b32 exec_lo, s37", f"s_mov_b32 exec_hi, 0", f"buffer_load_dword v30, v{vMS}, {WS}, s36 offen sc1", f"s_mov_b64 exec, -1"], vm, 'poll')
        lg.drain()
        if self.w2_gate:
            del WREG[2]
            seq = [2, 7, 8]
        else: seq = [7, 8, 9]
        early = seq[:self.n_early]
        if self.early_gate: self.soft_wait("m_bu", C_U, 4, vCN, vTM, slp=2)
        for st_ in early:
            for o in W(st_): E(o)
        self.soft_wait("m_kd", C_BUILT, 4, vCN, vTM, slp=2)
        A.stamp('g2 kd')
        wq = sorted([3, 4, 5, 6] + seq[self.n_early:])
        grp = [W(wq.pop(0)) for _ in range(min(self.w_pre, len(wq)))]
        if not self.sent: grp.insert(self.poll_at, [pollop])
        for g_ in grp:
            for o in g_: E(o)
        wl = []
        for st_ in wq: wl += [W(st_)[:2], [(W(st_)[0][0][:2] + W(st_)[2][0], vm, ('w2', st_)), W(st_)[3]]]
        if not self.sent:
            vm.need('poll')
            A.label("Lg2_ph")
            A(f"v_cmp_ne_u32 vcc, {sTAG}, v30")
            A(f"s_and_b32 s3, vcc_lo, s37")
            A(f"s_cbranch_scc1 Lg2_ph_r")
            A.label("Lg2_ph_ok")
            self.stubs.append(["Lg2_ph_r:", f"s_sub_u32 s41, s41, 8", f"s_cselect_b32 s41, 0, s41", f"s_cbranch_scc1 Lg2_ph_ok", f"s_sleep 1", f"s_mov_b32 exec_lo, s3", f"s_mov_b32 exec_hi, 0",
                               f"buffer_load_dword v30, v{vMS}, {WS}, s36 offen sc1", f"s_mov_b64 exec, -1", f"s_waitcnt vmcnt(0)", f"s_branch Lg2_ph"])
        A.stamp('g2 h ok')
        for p in range(HD):
            for o in ldh_ops(p, 0) + ldh_ops(p, 1): E(o)
        vY = 224
        def ldy_ops():
            ops = []
            for q in range(2):
                for e2 in range(2):
                    for tt in range(2):
                        r = vY + 8 * tt + 4 * q + 2 * e2
                        ops.append(([f"s_add_u32 s44, s47, {(4*q+e2)*16384}"][:1 - tt] + [f"buffer_load_dwordx2 v[{r}:{r+1}], v28, {WS}, s44 offen offset:{256*tt} {sc}"], vm, 'y'))
            return ops
        def treg(p, kk): return [208, 216][(2 * p + kk) & 1]
        yq = ldy_ops()
        def check(p, kk):
            r = vHF + 16 * (p % HD) + 8 * kk
            vm.need(('h', p, kk))
            A.label(f"Lhc{p}_{kk}")
            for j in range(8): A(f"v_xor_b32 v{r+j}, v{r+j}, v{vMS + (j & 3)}")
            A(f"v_or3_b32 v15, v{r}, v{r+1}, v{r+2}")
            A(f"v_or3_b32 v14, v{r+3}, v{r+4}, v{r+5}")
            A(f"v_or3_b32 v15, v15, v{r+6}, v{r+7}")
            A(f"v_or_b32 v15, v15, v14")
            A(f"v_and_b32 v15, s40, v15")
            A(f"v_cmp_ne_u32 vcc, 0, v15")
            if p == 10:
                A(f"s_cmp_eq_u32 {sW}, 3")
                A(f"s_cbranch_scc1 Lhk{p}_{kk}")
            A(f"s_cbranch_vccnz Lhr{p}_{kk}")
            A.label(f"Lhk{p}_{kk}")
            self.stubs.append([f"Lhr{p}_{kk}:", f"s_sub_u32 s41, s41, 8", f"s_cselect_b32 s41, 0, s41", f"s_cbranch_scc1 Lhk{p}_{kk}", f"s_sleep {self.h_sleep}", f"s_add_u32 s3, s51, {p*2048}",
                          f"buffer_load_dwordx4 v[{r}:{r+3}], v{vH0}, {WS}, s3 offen offset:{1024*kk} {sc}",
                          f"buffer_load_dwordx4 v[{r+4}:{r+7}], v{vH1}, {WS}, s3 offen offset:{1024*kk} {sc}",
                          f"s_waitcnt vmcnt(0)", f"s_branch Lhc{p}_{kk}"])
        if self.sent:
            A(f"s_mov_b32 s40, 0x80008000")
            check(0, 0)
        for p in range(NST):
            for kk in range(2):
                np_, nkk = (p, 1) if kk == 0 else (p + 1, 0)
                rds = rd2_ops(np_, nkk) if (np_ < NST and np_ not in WREG) else []
                fill = []
                pp, pkk = (p, 0) if kk == 1 else (p - 1, 1)
                if pp >= 0 and pp + HD < NST: fill += ldh_ops(pp + HD, pkk)
                if (p, kk) == (3, 0) and self.w2_gate: wl += [W(9)[:2], [(W(9)[0][0][:2] + W(9)[2][0], vm, ('w2', 9)), W(9)[3]]]
                if (p, kk) == (4, 0): wl += [W(10)[:2], [(W(10)[0][0][:2] + W(10)[2][0], vm, ('w2', 10)), W(10)[3]]]
                if wl: fill += wl.pop(0)
                if p >= self.y_at and yq:
                    fill += yq[:self.y_per]; yq = yq[self.y_per:]
                if (p, kk) == (2, 0) and self.w_by_l: L(f"ds_read_b32 v15, v{vMS+3} offset:{C_FULL}", 'wf')
                vm.need(('h', p, kk))
                if p == 0 and kk == 0: A.stamp('g2 st0')
                if kk == 0: A.stamp(f'_P{p}')
                lg.need(('t', p, kk))
                w0 = (WREG[p] + 8 * kk) if p in WREG else treg(p, kk)
                last = (p == NST - 1 and kk == 1)
                n = 0
                for dt in ((1, 0) if last else (0, 1)):
                    for tt in range(2):
                        a = vA2 + 32 * dt + 16 * tt
                        w = w0 + 4 * dt
                        h = vHF + 16 * (p % HD) + 8 * kk + 4 * tt
                        c = '0' if (p == 0 and kk == 0 and dt == 1) else f"v[{a}:{a+15}]"
                        A(f"v_mfma_f32_32x32x16_bf16 v[{a}:{a+15}], v[{w}:{w+3}], v[{h}:{h+3}], {c}")
                        n += 1
                        if n == 1:
                            if (np_, nkk) == (3, 0) and self.w_by_l:
                                lg.need('wf')
                                A.label("Lwf")
                                A(f"v_readfirstlane_b32 s3, v15")
                                A(f"s_cmp_eq_u32 s3, 0")
                                A(f"s_cbranch_scc1 Lwf_r")
                                A.label("Lwf_ok")
                                self.stubs.append(["Lwf_r:", f"s_sub_u32 s41, s41, 1", f"s_cselect_b32 s41, 0, s41", f"s_cbranch_scc1 Lwf_ok", f"s_sleep 1", f"ds_read_b32 v15, v{vMS+3} offset:{C_FULL}",
                                                   f"s_waitcnt lgkmcnt(0)", f"s_branch Lwf"])
                            if rds and nkk == 0:
                                assert self.w_by_l or sum(1 for t_ in vm.log if t_ == ('w2', np_)) == 4, np_
                                vm.need(('w2', np_))
                            for o in rds: E(o)
                        elif not self.sent:
                            k = (len(fill) + (4 - n)) // (5 - n)
                            for o in fill[:k]: E(o)
                            fill = fill[k:]
                        elif n <= 3:
                            k = (len(fill) + (3 - n)) // (4 - n)
                            for o in fill[:k]: E(o)
                            fill = fill[k:]
                        elif np_ < NST:
                            check(np_, nkk)
        assert not yq
        A.stamp('g2 loop end')
        PA = {1: 16384, 2: 32768, 3: 49152}
        vP = vY
        A(f"v_add_u32 v12, {sM2}, v{vH0}")
        for i in (1, 2, 3):
            A(f"s_xor_b32 s3, {sW}, {i}")
            A(f"s_lshl_b32 s3, s3, 12")
            A(f"v_add_u32 v{20+i}, s3, v{vH0}")
        for i in (2, 3, 1):
            for tt in range(2):
                for qq in range(2):
                    a = vA2 + 32 * (i >> 1) + 16 * tt + 8 * (i & 1) + 4 * qq
                    L(f"ds_write_b128 v12, v[{a}:{a+3}] offset:{PA[i] + tt*2048 + qq*1024}", 'pw')
        vm.need('y')
        A.label("Lyc")
        for j in range(0, 16, 2):
            A(f"v_xor_b32 v14, v{vY+j}, v29")
            A(f"v_xor_b32 v15, v{vY+j+1}, v31")
            if j == 0: A(f"v_or_b32 v13, v14, v15")
            else: A(f"v_or3_b32 v13, v13, v14, v15")
        A(f"v_and_b32 v13, 0xff, v13")
        A(f"v_cmp_ne_u32 vcc, 0, v13")
        if not NOUY: A(f"s_cbranch_vccnz Lyr")
        A.label("Lyk")
        st = ["Lyr:", f"s_sub_u32 s41, s41, 8", f"s_cselect_b32 s41, 0, s41", f"s_cbranch_scc1 Lyk", f"s_sleep 2"]
        for o in ldy_ops(): st += o[0]
        self.stubs.append(st + [f"s_waitcnt vmcnt(0)", f"s_branch Lyc"])
        A.stamp('g2 y ok')
        lg.drain()
        A(f"s_barrier")
        A.stamp('g2 bar')
        RR = {1: 96, 2: 112, 3: 128}
        for i in (1, 2, 3):
            for k in range(4):
                r = RR[i] + 4 * k
                L(f"ds_read_b128 v[{r}:{r+3}], v{20+i} offset:{PA[i] + k*1024}", ('pr', i))
        for i in (1, 2, 3):
            lg.need(('pr', i))
            for tt in range(2):
                for j in range(4):
                    a = vA2 + 16 * tt + 2 * j
                    r = RR[i] + 8 * tt + 2 * j
                    A(f"v_pk_add_f32 v[{a}:{a+1}], v[{a}:{a+1}], v[{r}:{r+1}]")
        for tt in range(2):
            for j in range(4):
                a = vA2 + 16 * tt + 2 * j
                A(f"v_pk_fma_f32 v[{a}:{a+1}], v[{a}:{a+1}], v[2:3], v[{vP+8*tt+2*j}:{vP+8*tt+2*j+1}] op_sel:[0,{tt},0] op_sel_hi:[1,{tt},1]")
            for j in range(4):
                a = vA2 + 16 * tt + 2 * j
                A(f"v_cvt_pk_bf16_f32 v{16+4*tt+j}, v{a}, v{a+1}")
            b = 16 + 4 * tt
            A(f"v_permlane32_swap_b32 v{b}, v{b+2}")
            A(f"v_permlane32_swap_b32 v{b+1}, v{b+3}")
            A(f"buffer_store_dwordx4 v[{b}:{b+3}], v{4+tt}, {OUT}, 0 offen {self.osc}")
    u_at = 1

class Lr(Role):
    rot = 'cx'
    touch = 1
    zdum = 1
    kd_early = 0
    k_first = 0
    pu_late = 1
    l2pf = 0
    pf_plan = [2, 1, 1, 1, 1, 1]
    plan = [10, 8, 4, 4, 3, 3]
    kprio = 3
    dprio = 0
    cprio = 3
    w_by_l = 0
    w_every = 3
    w_cert = 72
    l_n = 3
    kper = 4
    spread = 1
    poll_sleep = 8
    def run(self):
        A = self.A; vm = self.vm; lg = self.lg; E = self.emit; V = self.V; L = self.L
        pLA, pAI, pCR, pCI, pLDT, pDSK = 's[10:11]', 's[12:13]', 's[14:15]', 's[16:17]', 's[18:19]', 's[20:21]'
        X, W1, W2, WS, UBS = 's[24:27]', 's[56:59]', 's[60:63]', 's[44:47]', 's[8:11]'
        sLDT, sDSK, sCH, sHW = 's28', 's29', 's22', 's23'
        sKX, sKW, sMX, sMW, sPERM = 's38', 's39', 's40', 's41', 's54'
        vXS, vWS_, vDS = 228, 232, 236
        vKA, vKB, vKW, vKZ, vTW, vCT, vCH, vUA, vUB, vUL, vPW, vPR, vUD, vCN = range(240, 254)
        A(f"s_load_dwordx16 s[8:23], s[0:1], 0")
        A(f"s_load_dwordx2 s[56:57], s[0:1], 64")
        A(f"s_load_dwordx2 s[44:45], s[0:1], 112")
        A(f"s_load_dwordx2 s[60:61], s[0:1], 80")
        self.ids()
        for base, size in ((24, 0x200000), (56, W1_SIZE), (60, W1_SIZE), (44, WS_SIZE)):
            A(f"s_mov_b32 s{base+2}, {size}")
            A(f"s_mov_b32 s{base+3}, 0x20000")
        A(f"s_and_b32 s31, {sW}, 1")
        A(f"s_lshl_b32 s30, {sQ}, 1")
        A(f"s_add_u32 s3, s31, s30")
        A(f"s_lshl_b32 s3, s3, 8")
        A(f"v_lshl_add_u32 v16, {vLANE}, 2, s3")
        A(f"s_lshl_b32 s30, {sQ}, 2")
        if self.rot == 'cx': A(f"s_add_u32 s3, {sCB}, {sID}")
        elif self.rot == 'cxa':
            A(f"s_lshl_b32 s3, {sRB}, 2")
            A(f"s_add_u32 s3, s3, {sCB}")
            A(f"s_add_u32 s3, s3, {sID}")
        elif self.rot == 'ca':
            A(f"s_lshl_b32 s3, {sRB}, 2")
            A(f"s_add_u32 s3, s3, {sCB}")
        elif self.rot == 'x': A(f"s_mov_b32 s3, {sID}")
        elif self.rot == 'c': A(f"s_mov_b32 s3, {sCB}")
        else: A(f"s_mov_b32 s3, 0")
        A(f"s_and_b32 s3, s3, 7")
        A(f"s_mul_i32 s3, s3, 0x11111111")
        A(f"s_add_u32 {sPERM}, s3, 0x76543210")
        A(f"s_mul_i32 s3, {sW}, {16*2752}")
        A(f"s_mul_i32 s43, {sCB}, 192")
        A(f"s_add_u32 s3, s3, s43")
        A(f"s_movk_i32 s43, {2752 - 192}")
        if self.zdum:
            A(f"s_mul_i32 s42, {sCB}, 12")
            A(f"s_sub_i32 s42, 172, s42")
            A(f"v_mov_b32 v29, {OOB:#x}")
        A(f"v_lshl_add_u32 v31, {vLANE}, 4, s3")
        for i in range(3):
            A(f"v_add_u32 v3, {64*i}, {vLANE}")
            A(f"v_mul_u32_u24 v3, 0x5556, v3")
            A(f"v_lshrrev_b32 v3, 18, v3")
            A(f"v_mad_u32_u24 v{vWS_+i}, v3, s43, v31")
            if self.zdum:
                A(f"v_mul_u32_u24 v3, 12, v3")
                A(f"v_sub_u32 v3, {vLANE}, v3")
                A(f"v_add_u32 v3, {64*i}, v3")
                A(f"v_cmp_le_i32 vcc, s42, v3")
                A(f"v_cndmask_b32 v{vWS_+i}, v{vWS_+i}, v29, vcc")
        A(f"v_lshrrev_b32 v3, 3, {vLANE}")
        A(f"v_lshrrev_b32 v30, 4, {vLANE}")
        A(f"v_and_b32 v31, 7, {vLANE}")
        A(f"v_xor_b32 v31, v31, v30")
        A(f"v_lshlrev_b32 v31, 4, v31")
        A(f"v_lshl_add_u32 v31, v3, 10, v31")
        A(f"s_lshl_b32 s3, {sRB}, 17")
        A(f"s_lshl_b32 s43, {sW}, 15")
        A(f"s_add_u32 s3, s3, s43")
        if self.zdum:
            A(f"s_cmp_eq_u32 {sCB}, 15")
            A(f"s_cselect_b32 s3, {OOB:#x}, s3")
        A(f"v_add_u32 v{vXS}, s3, v31")
        A(f"v_xor_b32 v{vXS+1}, 64, v{vXS}")
        A(f"v_add_u32 v{vXS+1}, {8192-1024}, v{vXS+1}")
        A(f"v_add_u32 v{vXS+2}, {2*(8192-1024)}, v{vXS}")
        A(f"v_add_u32 v{vXS+3}, {2*(8192-1024)}, v{vXS+1}")
        A(f"s_lshl_b32 {sMX}, {sW}, 12")
        A(f"s_add_u32 {sMX}, {sMX}, {XOFF}")
        A(f"s_mul_i32 {sMW}, {sW}, 3072")
        A(f"s_waitcnt lgkmcnt(0)")
        V(f"global_load_dword v4, v16, {pLA}", 'par')
        V(f"global_load_dword v5, v16, {pAI}", 'par')
        V(f"global_load_dword v6, v16, {pCR}", 'par')
        V(f"global_load_dword v7, v16, {pCI}", 'par')
        A(f"s_load_dword {sLDT}, {pLDT}, s30")
        A(f"s_load_dword {sDSK}, {pDSK}, s30")
        A(f"s_mov_b32 s24, s8")
        A(f"s_mov_b32 s25, s9")
        A(f"s_mov_b32 {sCH}, s31")
        A(f"s_lshr_b32 {sHW}, {sW}, 1")
        if not NO_I0: A(f"s_barrier")
        def st_ops(s):
            w = [([f"s_add_u32 m0, {sMW}, {slot_of(s)}", f"s_bfe_u32 s3, {sPERM}, {(4*s) | (3<<16):#x}", f"s_mul_i32 {sKW}, s3, {64*2752}", f"s_lshl_b32 {sKX}, s3, 7"][:4 if i == 0 else 0]
                  + [f"buffer_load_dwordx4 v{vWS_+i}, {W1}, {sKW} offen offset:{1024*i} lds"], vm, ('st', s)) for i in range(3)]
            x = [([f"s_add_u32 m0, {sMX}, {slot_of(s)}"][:1 if i == 0 else 0]
                  + [f"buffer_load_dwordx4 v{vXS+i}, {X}, {sKX} offen offset:{1024*i} lds"], vm, ('st', s)) for i in range(4)]
            return w + x
        A.stamp('_L0 i0')
        for o in st_ops(0): E(o)
        A.stamp('_L1 st0')
        def nibp(lst): return sum(lst[7 - p] << (4 * p) for p in range(8))
        N0 = nibp(list(range(8))); N1 = nibp([0,0,1,2,2,2,3,4]); N2 = nibp([0,0,0,1,1,1,2,2]); N4 = nibp([0,0,0,0,0,1,1,1])
        A(f"v_mov_b32 v{vCN}, {L_CNT}")
        A(f"v_and_b32 v20, 7, {vLANE}")
        A(f"v_lshlrev_b32 v20, 2, v20")
        A(f"v_bfe_u32 v21, {vLANE}, 3, 2")
        A(f"s_cmp_lt_u32 {sW}, 2")
        A(f"s_mov_b32 s51, {N4:#x}")
        A(f"s_cselect_b32 s32, {N0:#x}, s51")
        A(f"s_cselect_b32 s33, {N1:#x}, s51")
        A(f"s_cselect_b32 s55, {N2:#x}, s51")
        A(f"s_mov_b32 s51, {(26<<24)|(24<<16)|(22<<8)|20:#x}")
        A(f"s_cselect_b32 s51, {(17<<24)|(14<<16)|(9<<8)|0:#x}, s51")
        A(f"s_cselect_b32 s36, 0, 0xaaaaaaaa")
        A(f"s_mov_b32 s37, 0")
        A(f"v_cmp_eq_u32 vcc, 1, v21")
        A(f"v_mov_b32 v22, s55")
        A(f"v_mov_b32 v23, s33")
        A(f"v_cndmask_b32 v22, v22, v23, vcc")
        A(f"v_cmp_eq_u32 vcc, 0, v21")
        A(f"v_mov_b32 v23, s32")
        A(f"v_lshlrev_b32 v21, 3, v21")
        A(f"v_cndmask_b32 v22, v22, v23, vcc")
        A(f"v_bfe_u32 v22, v22, v20, 4")
        A(f"v_bfe_u32 v23, s51, v21, 8")
        A(f"v_add_u32 v22, v22, v23")
        A(f"v_lshrrev_b32 v23, 5, {vLANE}")
        A(f"s_mul_i32 s31, {sCH}, {60*TROW}")
        A(f"s_add_u32 s31, s31, {L_TAB}")
        A(f"v_lshl_add_u32 v24, v23, 4, s31")
        A(f"s_movk_i32 s30, {TROW}")
        A(f"v_mad_u32_u24 v{vKA}, v22, s30, v24")
        A(f"v_and_b32 v22, 31, {vLANE}")
        A(f"v_mad_u32_u24 v{vKB}, v22, s30, v24")
        A(f"s_mul_i32 s30, {sHW}, {28*TROW}")
        A(f"s_add_u32 s31, s31, s30")
        A(f"v_lshl_add_u32 v{vTW}, {vLANE}, 3, s31")
        A(f"s_mul_i32 s31, {sCH}, {KREV_SZ}")
        A(f"s_add_u32 s31, s31, {L_KREV}")
        A(f"v_lshl_add_u32 v{vKZ}, {vLANE}, 4, s31")
        A(f"s_lshl_b32 s30, {sHW}, 11")
        A(f"s_sub_u32 s32, s31, s30")
        A(f"s_add_u32 s32, s32, {4080 - 1536}")
        A(f"v_lshlrev_b32 v22, 4, v22")
        A(f"v_sub_u32 v22, s32, v22")
        A(f"v_lshl_add_u32 v{vKW}, v23, 3, v22")
        for o in st_ops(1)[:3]: E(o)
        A(f"v_and_b32 v20, 15, {vLANE}")
        A(f"s_lshl_b32 s32, {sHW}, 8")
        A(f"s_add_u32 s31, s31, s32")
        A(f"s_add_u32 s31, s31, 480")
        A(f"v_lshlrev_b32 v22, 5, v20")
        A(f"v_sub_u32 v22, s31, v22")
        A(f"v_lshl_add_u32 v{vCT}, v30, 4, v22")
        A(f"s_mul_i32 s31, {sCH}, {4*CPY}")
        A(f"s_add_u32 s31, s31, {L_U}")
        A(f"s_add_u32 s33, s31, s32")
        A(f"v_bfe_u32 v22, {vLANE}, 2, 2")
        A(f"v_and_b32 v24, 3, {vLANE}")
        A(f"v_mul_u32_u24 v25, {CPY}, v22")
        A(f"v_lshl_add_u32 v25, v30, 4, v25")
        A(f"v_lshl_add_u32 v25, v24, 3, v25")
        A(f"v_add_u32 v{vCH}, s33, v25")
        A(f"v_lshlrev_b32 v25, 2, v30")
        A(f"v_xor_b32 v25, v25, {vLANE}")
        A(f"s_lshl_b32 s3, {sW}, 13")
        A(f"s_add_u32 s3, s3, {L_PART}")
        A(f"v_lshl_add_u32 v{vPW}, v25, 4, s3")
        A(f"v_bfe_u32 v26, {vLANE}, 1, 2")
        A(f"v_lshrrev_b32 v25, 3, {vLANE}")
        A(f"v_lshlrev_b32 v27, 2, v26")
        A(f"v_xor_b32 v25, v25, v27")
        A(f"v_lshlrev_b32 v25, 4, v25")
        A(f"v_lshl_add_u32 v25, v26, 8, v25")
        A(f"v_and_b32 v24, 1, {vLANE}")
        A(f"v_lshl_add_u32 v25, v24, 3, v25")
        A(f"s_lshl_b32 s3, {sW}, 11")
        A(f"s_add_u32 s3, s3, {L_PART}")
        A(f"v_add_u32 v{vPR}, s3, v25")
        A(f"s_lshl_b32 s3, {sW}, 10")
        A(f"s_add_u32 s3, s3, {L_U}")
        A(f"v_lshl_add_u32 v{vUD}, {vLANE}, 2, s3")
        A(f"v_lshrrev_b32 v25, 1, {vLANE}")
        A(f"s_lshl_b32 s3, {sW}, 6")
        A(f"v_add_u32 v25, s3, v25")
        A(f"s_lshl_b32 s3, {sQ}, 5")
        A(f"s_sub_u32 s3, s3, 16384")
        A(f"v_lshlrev_b32 v26, 13, v25")
        A(f"v_lshl_add_u32 v26, v24, 4, v26")
        A(f"v_add_u32 v{vUA}, s3, v26")
        A(f"v_add_u32 v{vUB}, 8192, v{vUA}")
        A(f"v_mul_u32_u24 v26, {4*CPY}, v24")
        A(f"v_lshl_add_u32 v26, v25, 4, v26")
        A(f"v_add_u32 v{vUL}, {L_U}, v26")
        self.w2_src(vDS, 20, 21, 22)
        LOG2E = '0x3fb8aa3b'
        A(f"s_waitcnt lgkmcnt(0)")
        A(f"s_mov_b32 s8, s44")
        A(f"s_mov_b32 s9, s45")
        A(f"s_mov_b32 s10, {UB_SIZE}")
        A(f"s_mov_b32 s11, 0x20000")
        A(f"s_lshl_b32 s30, {sLDT}, 16")
        A(f"s_and_b32 s31, {sLDT}, 0xffff0000")
        A(f"s_cmp_eq_u32 {sCH}, 0")
        A(f"s_cselect_b32 {sLDT}, s30, s31")
        A(f"s_and_b32 s12, {sDSK}, 0xffff0000")
        A(f"s_lshl_b32 {sDSK}, {sDSK}, 16")
        A(f"v_mov_b32 v16, {LOG2E}")
        A(f"v_mul_f32 v17, {sLDT}, v16")
        A(f"v_exp_f32 v17, v17")
        A(f"s_cmp_lt_u32 {sW}, 2")
        A(f"s_cselect_b32 s32, 1.0, 0x41000000")
        A(f"s_cselect_b32 s33, 0x43780000, s32")
        A(f"s_cselect_b32 s55, 0xbe22f983, 0.15915494")
        A(f"v_cvt_pk_bf16_f32 v17, v17, v17")
        A(f"v_lshlrev_b32 v17, 16, v17")
        vm.need('par')
        A.stamp('par loaded')
        A(f"v_lshlrev_b32 v20, 16, v4")
        A(f"v_and_b32 v21, 0xffff0000, v4")
        A(f"v_mul_f32 v20, v20, v16")
        A(f"v_mul_f32 v21, v21, v16")
        A(f"v_exp_f32 v20, v20")
        A(f"v_exp_f32 v21, v21")
        A(f"v_lshlrev_b32 v22, 16, v5")
        A(f"v_and_b32 v23, 0xffff0000, v5")
        A(f"v_cvt_pk_bf16_f32 v18, v20, v21")
        A(f"v_mul_f32 v22, v22, v17")
        A(f"v_mul_f32 v23, v23, v17")
        A(f"v_lshlrev_b32 v20, 16, v18")
        A(f"v_and_b32 v21, 0xffff0000, v18")
        A(f"v_mul_f32 v22, s55, v22")
        A(f"v_mul_f32 v23, s55, v23")
        A(f"v_mul_f32 v20, v20, v17")
        A(f"v_mul_f32 v21, v21, v17")
        A(f"v_mul_f32_e64 v20, -v20, v16")
        A(f"v_mul_f32_e64 v21, -v21, v16")
        MR = {1: 24, 248: 28, 2: 32, 4: 36, 8: 40}
        for (inc, sreg, tb) in ((1, 's32', 56), (248, 's33', 60)):
            for i in range(2):
                A(f"v_mul_f32 v{tb+i}, {sreg}, v{20+i}")
                A(f"v_mul_f32 v{tb+2+i}, {sreg}, v{22+i}")
        for tb in (56, 60):
            for i in range(2):
                A(f"v_exp_f32 v{tb+i}, v{tb+i}")
                A(f"v_fract_f32 v{tb+2+i}, v{tb+2+i}")
        for (inc, tb) in ((1, 56), (248, 60)):
            for i in range(2):
                m = MR[inc] + 2 * i
                A(f"v_cos_f32 v{m}, v{tb+2+i}")
                A(f"v_sin_f32 v{m+1}, v{tb+2+i}")
        for (inc, tb) in ((1, 56), (248, 60)):
            for i in range(2):
                m = MR[inc] + 2 * i
                A(f"v_mul_f32 v{m}, v{m}, v{tb+i}")
                A(f"v_mul_f32 v{m+1}, v{m+1}, v{tb+i}")
        def cmul2(dst, a, m):
            l1 = []; l2 = []
            for i in range(2):
                d, x, y = dst + 2 * i, a + 2 * i, m + 2 * i
                l1.append(f"v_mul_f32_e64 v{d}, -v{x+1}, v{y+1}")
                l1.append(f"v_mul_f32 v{d+1}, v{x}, v{y+1}")
                l2.append(f"v_fmac_f32 v{d}, v{x}, v{y}")
                l2.append(f"v_fmac_f32 v{d+1}, v{x+1}, v{y}")
            return l1, l2
        A(f"s_cbranch_scc1 Lkg_h")
        for r in range(32, 44): A(f"v_mov_b32 v{r}, v{24 + (r & 3)}")
        A(f"v_mov_b32 v48, 1.0")
        A(f"v_mov_b32 v49, 0")
        A(f"v_mov_b32 v50, 1.0")
        A(f"v_mov_b32 v51, 0")
        A(f"s_branch Lkg_go")
        A.label("Lkg_h")
        A(f"v_add_f32 v17, v17, v17")
        A(f"v_lshlrev_b32 v48, 16, v6")
        A(f"v_lshlrev_b32 v49, 16, v7")
        A(f"v_and_b32 v50, 0xffff0000, v6")
        A(f"v_and_b32 v51, 0xffff0000, v7")
        for (d, s_) in ((2, 1), (4, 2), (8, 4)):
            l1, l2 = cmul2(MR[d], MR[s_], MR[s_])
            for x in l1 + l2: A(x)
        A(f"v_mul_f32 v48, v48, v17")
        A(f"v_mul_f32_e64 v49, -v49, v17")
        A(f"v_mul_f32 v50, v50, v17")
        A(f"v_mul_f32_e64 v51, -v51, v17")
        A.label("Lkg_go")
        dma = st_ops(1)[3:] + st_ops(2)
        if self.touch:
            dma.append(([f"s_mul_i32 s3, {sQ}, 5504", f"s_mul_i32 s30, {sW}, 1408", f"s_add_u32 s3, s3, s30", f"v_lshlrev_b32 v19, 7, {vLANE}", f"s_mov_b64 exec, 0x7ff",
                         f"buffer_load_dword v3, v19, {W2}, s3 offen", f"s_mov_b64 exec, -1"], vm, 'touch'))
        W = lambda st: self.w2_ops(st, vDS, W2)
        def W2h(st, h):
            o = W(st)
            return [(o[0][0][:2] + o[2*h][0][-1:], vm, ('w2', st)), o[2*h+1]]
        cur, nxt = 48, 52
        step = 0
        def chain_step(ndma):
            nonlocal cur, nxt, step
            pk = 64 + 2 * step
            if step < 31:
                l1, l2 = cmul2(nxt, cur, MR[HINC[step]])
                for x in l1: A(x)
            A(f"v_cvt_pk_bf16_f32 v{pk}, v{cur}, v{cur+1}")
            A(f"v_cvt_pk_bf16_f32 v{pk+1}, v{cur+2}, v{cur+3}")
            for _ in range(ndma):
                if dma: E(dma.pop(0))
            if step < 31:
                for x in l2: A(x)
            cur, nxt = nxt, cur
            step += 1
        extra = {b_: [] for b_ in range(-1, 5)}
        cert = {}
        if self.l2pf:
            A(f"v_lshlrev_b32 v227, 7, {vLANE}")
            A(f"s_and_b32 s13, {sRB}, 1")
            A(f"s_lshl_b32 s13, s13, 14")
            A(f"s_add_u32 s13, s13, s50")
        pfn = [0]
        def idle_pf(nsteps, tg):
            if not self.l2pf or nsteps == 0: return
            A(f"s_cmp_lg_u32 {sCB}, 15")
            A(f"s_cbranch_scc1 Lpf{tg}")
            for _ in range(nsteps):
                for j in range(2):
                    A(f"s_add_u32 s3, s13, {pfn[0]*32768 + j*8192}")
                    A(f"buffer_load_dword v3, v227, {W2}, s3 offen")
                pfn[0] += 1
            A.label(f"Lpf{tg}")
        for b, n in zip(range(-1, 5), self.plan):
            for k in range(n):
                if step < 32: chain_step(-(-len(dma) // (n - k)))
            while dma: E(dma.pop(0))
            A.stamp(f"_I{b}")
            vm.need([('st', b + 1)] + cert.get(b, []))
            idle_pf(self.pf_plan[b + 1], b + 1)
            A.stamp(f"_W{b}")
            A(f"s_barrier")
            if 0 <= b: dma.extend(st_ops(b + 3))
            dma.extend(extra[b])
        L(f"ds_read_b32 v60, v{vCN} offset:{C_TAG}", 'tag')
        A(f"v_lshlrev_b32 v20, 4, {vLANE}")
        A(f"s_mov_b32 s33, {WS_FU}")
        if not self.pu_late: V(f"buffer_load_dwordx4 v[128:131], v20, {WS}, s33 offen sc1", 'pu')
        while dma: E(dma.pop(0))
        if self.l2pf:
            rem = NST - pfn[0]
            lanes = 8 * rem
            A(f"s_lshr_b32 s3, {sID}, 3")
            A(f"s_lshl_b32 s3, s3, 10")
            A(f"s_add_u32 s3, s3, s50")
            A(f"s_add_u32 s3, s3, {pfn[0]*32768}")
            A(f"v_lshrrev_b32 v226, 3, {vLANE}")
            A(f"v_and_b32 v227, 7, {vLANE}")
            A(f"v_lshlrev_b32 v227, 7, v227")
            A(f"v_lshl_add_u32 v227, v226, 15, v227")
            for j in range((lanes + 63) // 64):
                nl = min(64, lanes - 64 * j)
                if nl < 64:
                    A(f"s_mov_b32 exec_lo, {((1 << min(nl, 32)) - 1):#x}")
                    A(f"s_mov_b32 exec_hi, {((1 << max(nl - 32, 0)) - 1):#x}")
                if j: A(f"s_add_u32 s3, s3, {8*32768}")
                V(f"buffer_load_dword v3, v227, {W2}, s3 offen", 'touch')
                A(f"s_mov_b64 exec, -1")
        while step < 32: chain_step(0)
        A.stamp('kg chain')
        for r in range(24, 28): A(f"v_mov_b32 v{r}, 0")
        lg.drain()
        A(f"v_readfirstlane_b32 {sTAG}, v60")
        vm.need([('st', 6), 'pu'])
        A(f"s_barrier")
        def u_check():
            for k in range(4): A(f"v_xor_b32 v{132+k}, {sTAG}, v{128+k}")
            A(f"v_or3_b32 v132, v132, v133, v134")
            A(f"v_or_b32 v132, v132, v135")
            A(f"v_cmp_ne_u32 vcc, 0, v132")
            if NOUY: A("s_mov_b64 vcc, 0")
        def u_loads(tg):
            A(f"s_mov_b32 s30, {32*8192}")
            A(f"v_add_u32 v22, s30, v{vUA}")
            A(f"v_add_u32 v23, s30, v{vUB}")
            A(f"s_cmp_lg_u32 {sW}, 3")
            A(f"s_cbranch_scc1 Lc_no3{tg}")
            A(f"s_mov_b64 exec, 15")
            A(f"buffer_load_dwordx4 v[144:147], v22, {UBS}, s30 offen sc1")
            A(f"buffer_load_dwordx2 v[148:149], v23, {UBS}, s30 offen sc1")
            A(f"s_mov_b64 exec, 1")
            A(f"s_cmp_lg_u32 {sID}, 0")
            A(f"s_cbranch_scc1 Lc_no3{tg}")
            A(f"v_mov_b32 v28, {sTAG}")
            A(f"v_mov_b32 v29, {WS_EP}")
            A(f"buffer_store_dword v28, v29, {WS}, 0 offen sc1")
            A.label(f"Lc_no3{tg}")
            A(f"s_mov_b32 exec_lo, 0xc000c000")
            A(f"s_mov_b32 exec_hi, 0xc000c000")
            A(f"buffer_load_dwordx2 v[132:133], v{vUB}, {UBS}, 0 offen sc1")
            A(f"buffer_load_dwordx2 v[140:141], v23, {UBS}, 0 offen sc1")
            A(f"s_mov_b64 exec, -1")
            A(f"buffer_load_dwordx4 v[128:131], v{vUA}, {UBS}, 0 offen sc1")
            A(f"buffer_load_dwordx4 v[136:139], v22, {UBS}, 0 offen sc1")
        if self.pu_late: V(f"buffer_load_dwordx4 v[128:131], v20, {WS}, s33 offen sc1", 'pu')
        for o in W(0): E(o)
        vm.need(('st', 7))
        A(f"s_barrier")
        for o in W(1): E(o)
        vm.need('pu')
        u_check()
        A(f"s_mov_b32 s39, 1")
        A(f"s_cbranch_vccnz Lc_skipu")
        A(f"s_mov_b32 s39, {2 if self.k_first else 0}")
        u_loads('a')
        A(f"s_waitcnt vmcnt(4)")
        A(f"s_branch Lc_exb")
        A.label("Lc_skipu")
        A(f"s_waitcnt vmcnt(0)")
        A(f"s_mov_b64 exec, vcc")
        A(f"buffer_load_dwordx4 v[128:131], v20, {WS}, s33 offen sc1")
        A(f"s_mov_b64 exec, -1")
        A.label("Lc_exb")
        vm.q = []
        A.stamp('u ok')
        A(f"s_barrier")
        A.stamp('ex ok')
        if self.dprio: A(f"s_setprio {self.dprio}")
        for st_ in range(28): A(f"ds_write_b64 v{vTW}, v[{64+2*st_}:{65+2*st_}] offset:{st_*TROW}")
        A(f"s_cmp_lt_u32 {sW}, 2")
        A(f"s_cbranch_scc1 Lc_h28")
        for st_ in range(28, 32): A(f"ds_write_b64 v{vTW}, v[{64+2*st_}:{65+2*st_}] offset:{st_*TROW}")
        A.label("Lc_h28")
        self.soft_arrive(C_TABW, vCN, 21)
        A.stamp('_L2 dumped')
        def build(tg):
            A(f"s_waitcnt vmcnt(0)")
            for i in range(3):
                w = 128 + 8 * i; t = 152 + 12 * i
                if i == 2:
                    A(f"s_cmp_lg_u32 {sW}, 3")
                    A(f"s_cbranch_scc1 Lc_nob{tg}")
                    A(f"s_mov_b64 exec, 15")
                else:
                    A(f"v_mov_b32_dpp v{w+4}, v{w} row_shl:2 row_mask:0xf bank_mask:0xf")
                    A(f"v_mov_b32_dpp v{w+5}, v{w+1} row_shl:2 row_mask:0xf bank_mask:0xf")
                for j in range(4): A(f"v_alignbyte_b32 v{t+j}, v{w+j+1}, v{w+j}, 2")
                off = 512 * i
                A(f"ds_write_b128 v{vUL}, v[{w+2}:{w+5}] offset:{off + 3*CPY}")
                for j in range(4): A(f"v_mov_b32 v{t+4+j}, v{w+j+1}")
                A(f"ds_write_b128 v{vUL}, v[{t}:{t+3}] offset:{off}")
                for j in range(4): A(f"v_alignbyte_b32 v{t+8+j}, v{w+j+2}, v{w+j+1}, 2")
                A(f"ds_write_b128 v{vUL}, v[{t+4}:{t+7}] offset:{off + CPY}")
                A(f"ds_write_b128 v{vUL}, v[{t+8}:{t+11}] offset:{off + 2*CPY}")
            A(f"s_mov_b64 exec, -1")
            A.label(f"Lc_nob{tg}")
            self.soft_arrive(C_U, vCN, 21)
        A(f"s_cmp_eq_u32 s39, 0")
        A(f"s_cbranch_scc1 Lc_build")
        A(f"s_cmp_eq_u32 s39, 2")
        A(f"s_cbranch_scc1 Lc_nobuild")
        A(f"s_waitcnt vmcnt(0)")
        u_check()
        A(f"s_cbranch_vccnz Lc_nobuild")
        A(f"s_mov_b32 s39, 2")
        u_loads('c')
        A(f"s_branch Lc_nobuild")
        A.label("Lc_build")
        build('')
        A(f"s_cmp_lg_u32 s39, 0")
        A(f"s_cbranch_scc1 Lc_built")
        A.label("Lc_nobuild")
        A(f"s_setprio 0")
        self.soft_wait("l_tabw", C_TABW, 4, vCN, 21, slp=1)
        A(f"s_setprio {self.kprio}")
        A.stamp('_L3 tabw')
        def rdk(k):
            r = 64 + 8 * (k % 8)
            L(f"ds_read_b128 v[{r}:{r+3}], v{vKA} offset:{32*k}", ('k', k))
            L(f"ds_read_b128 v[{r+4}:{r+7}], v{vKB} offset:{28*TROW + 32*k}", ('k', k))
        for k in range(7): rdk(k)
        for k in range(16):
            lg.need(('k', k))
            r = 64 + 8 * (k % 8)
            c = '0' if k == 0 else 'v[32:47]'
            A(f"v_mfma_f32_32x32x16_bf16 v[32:47], v[{r}:{r+3}], v[{r+4}:{r+7}], {c}")
            if k + 7 < 16: rdk(k + 7)
            if k == 8 and self.kd_early: self.soft_arrive(C_BUILT, vCN, 21)
            if k == 10:
                A(f"s_mov_b64 exec, 0x3fffffff")
                L(f"ds_write_b128 v{vKZ}, v[24:27] offset:4096", 'w')
                A(f"s_mov_b64 exec, -1")
        for q in range(4): A(f"v_cndmask_b32 v{32+4*q+3}, v{32+4*q+3}, v{32+4*q+2}, s[36:37]")
        for q in range(4):
            A(f"v_cvt_pk_bf16_f32 v{48+2*q}, v{32+4*q}, v{33+4*q}")
            A(f"v_cvt_pk_bf16_f32 v{49+2*q}, v{34+4*q}, v{35+4*q}")
            L(f"ds_write_b64 v{vKW}, v[{48+2*q}:{49+2*q}] offset:{512*(3-q)}", 'w')
        if not self.kd_early: self.soft_arrive(C_BUILT, vCN, 21)
        self.soft_arrive(C_U, vCN, 21)
        A.stamp('kg done')
        A(f"s_setprio 0")
        A(f"s_cmp_eq_u32 s39, 0")
        A(f"s_cbranch_scc1 Lc_built")
        A(f"s_cmp_eq_u32 s39, 2")
        A(f"s_cbranch_scc1 Lc_build")
        A(f"s_mov_b32 s31, {SPIN}")
        A.label("Lc_poll")
        A(f"s_mov_b64 exec, vcc")
        A(f"buffer_load_dwordx4 v[128:131], v20, {WS}, s33 offen sc1")
        A(f"s_mov_b64 exec, -1")
        A(f"s_waitcnt vmcnt(0)")
        u_check()
        A(f"s_sub_u32 s31, s31, 1")
        A(f"s_cbranch_scc1 Lc_poll_ok")
        A(f"s_cbranch_vccz Lc_poll_ok")
        A(f"s_sleep {self.poll_sleep}")
        A(f"s_branch Lc_poll")
        A.label("Lc_poll_ok")
        u_loads('b')
        A(f"s_branch Lc_build")
        A.label("Lc_built")
        A(f"s_waitcnt lgkmcnt(0)")
        for r in range(32, 64): A(f"v_mov_b32 v{r}, 0")
        A(f"s_setprio 0")
        self.soft_wait("l_built", C_U, 8, vCN, 21, slp=1)
        A(f"s_setprio {self.cprio}")
        A.stamp('cv built')
        def frag_ops(b, rho, i):
            T = 64 + 64 * b + 4 * i; H = 96 + 64 * b + 4 * i
            return [(f"ds_read_b128 v[{T}:{T+3}], v{vCT} offset:{512*(7-i) + 64*rho}", ('f', rho, i)),
                    (f"ds_read_b64_tr_b16 v[{H}:{H+1}], v{vCH} offset:{512*i + 64*rho}", ('f', rho, i)),
                    (f"ds_read_b64_tr_b16 v[{H+2}:{H+3}], v{vCH} offset:{512*i + 8 + 64*rho}", ('f', rho, i))]
        pend = [o for rho in range(4) for i in range(8) for o in frag_ops(rho & 1, rho, i)]
        for p in range(4):
            for c_ in range(2):
                pend.append((f"ds_read_b32 v{192+2*p+c_}, v{vUD} offset:{c_*4*CPY + 3*CPY + 24 + 256*p}", ('ud', 4, 0)))
        for o in pend[:12]: L(*o)
        pend = pend[12:]
        arrived = False
        wd = (W(3) + W(4) + W(5) + W(6)) if self.w_by_l else []
        nm = 0
        for rho in range(4):
            b = rho & 1
            for n in range(8):
                lg.need(('f', rho, n))
                pairs = [(s_, d) for s_ in range(8) for d in range(8) if s_ + d <= 7 and max(s_, d) == n]
                for (s_, d) in pairs:
                    a = 32 + 4 * (s_ + d)
                    A(f"v_mfma_f32_16x16x32_bf16 v[{a}:{a+3}], v[{96+64*b+4*s_}:{99+64*b+4*s_}], v[{64+64*b+4*d}:{67+64*b+4*d}], v[{a}:{a+3}]")
                    nm += 1
                    if wd and nm % self.w_every == 0: E(wd.pop(0))
                    if nm == self.w_cert and self.w_by_l:
                        assert not wd
                        vm.drain()
                        A(f"v_lshl_add_u32 v22, {sW}, 2, v{vCN}")
                        self.post_word(22, C_FULL, 1, 21)
                    k = 3 if (pend and pend[0][1][1] == rho) else 1
                    for _ in range(k):
                        if pend and pend[0][1][1] <= rho + 1:
                            if len(lg.q) >= 14:
                                A("s_waitcnt lgkmcnt(8)"); lg.q = lg.q[-8:]
                            L(*pend.pop(0))
                    if not pend and not arrived:
                        self.soft_arrive(C_CVD, vCN, 21); arrived = True
        A.stamp('cv loop')
        A(f"s_lshl_b32 s32, {sQ}, 14")
        A(f"s_lshl_b32 s30, {sW}, 12")
        A(f"s_add_u32 s32, s32, s30")
        A(f"s_add_u32 s32, s32, {WS_YT}")
        A(f"v_xor_b32 v23, 128, v{vPR}")
        self.soft_wait("l_cvd", C_CVD, 4, vCN, 21, slp=1)
        for a in range(8): L(f"ds_write_b128 v{vPW}, v[{32+4*a}:{35+4*a}] offset:{1024*a}", 'w')
        self.soft_arrive(C_PART, vCN, 21)
        A.stamp('_L4 partw')
        lg.need(('ud', 4, 0))
        for k in range(8):
            A(f"v_lshlrev_b32 v{200+2*k}, 16, v{192+k}")
            A(f"v_and_b32 v{201+2*k}, 0xffff0000, v{192+k}")
        self.soft_wait("l_part", C_PART, 4, vCN, 21, slp=1)
        A.stamp('_L5 parts')
        for p in range(4):
            if p == 3: lg.need(('pr', 0))
            for c_ in range(2):
                for part in range(2):
                    r = 64 + 8 * p + 4 * c_ + 2 * part
                    L(f"ds_read_b64 v[{r}:{r+1}], v{[vPR, 23][p & 1]} offset:{1024*(p >> 1) + 8192*c_ + 16384*part}", ('pr', p))
        A("s_setprio 3")
        A(f"s_movk_i32 s31, 0xff")
        for e in range(4): A(f"v_lshrrev_b32_e64 v{24+e}, {8*e}, {sTAG}")
        for p in range(4):
            lg.need(('pr', p))
            r = 64 + 8 * p; o_ = 96 + 4 * p
            for e in range(2):
                for c_ in range(2): A(f"v_add_f32 v{o_+2*e+c_}, v{r+4*c_+e}, v{r+4*c_+2+e}")
            for e in range(2):
                for c_ in range(2): A(f"v_fmac_f32 v{o_+2*e+c_}, {[sDSK, 's12'][c_]}, v{200+4*p+2*c_+e}")
            for e in range(4): A(f"v_bfi_b32 v{o_+e}, s31, v{24+e}, v{o_+e}")
            A(f"buffer_store_dwordx4 v[{o_}:{o_+3}], v20, {WS}, s32 offen offset:{1024*p} sc1")
        A.stamp('y stored')
```

```python
import sys
from asmlib import Asm
import blocks_h as U
from layout import *
KN = "parallel_sum__ssm_conv_s4d__dense_activation_squared_relu__prompt_kernel"
HDR = open("parallel_sum__ssm_conv_s4d__dense_activation_squared_relu__prompt.s.ref").read().split("; Override launch")[0]
opt = dict(a.split('=', 1) for a in sys.argv[2:] if '=' in a)
A = Asm()
A.stamps = '-s' in sys.argv
if opt.get('amp'): A.amp_name = opt['amp'].replace('_', ' ')
if opt.get('ampf'): A.amp_from = opt['ampf'].replace('_', ' ')
if opt.get('st'): A.stamp_filter = opt['st']
if opt.get('noi0'): U.NO_I0 = 1
if opt.get('xlds'): U.XLDS = 1
if opt.get('s2lds'): U.S2LDS = 1
if opt.get('nouy'): U.NOUY = 1
if opt.get('spin'): U.SPIN = int(opt['spin'])
def cfg(o):
    for k, v in opt.items():
        if hasattr(type(o), k):
            d = getattr(type(o), k)
            setattr(o, k, v if isinstance(d, str) else ([int(x) for x in v.split(',')] if isinstance(d, list) else int(v)))
    return o
A(f".globl {KN}\n.p2align 8\n.type {KN},@function")
A.label(KN)
A("s_cmp_ge_u32 s2, 256")
A("s_cbranch_scc1 Lexit")
if opt.get('half'):
    A("s_and_b32 s3, s2, 7")
    A(f"s_cmp_ge_u32 s3, {opt['half']}")
    A("s_cbranch_scc1 Lexit")
A("v_lshrrev_b32 v2, 6, v0")
A("v_and_b32 v1, 63, v0")
A("v_readfirstlane_b32 s3, v2")
A("s_mov_b32 s4, s2")
if opt.get('whatif'): A("s_mov_b32 s61, 0x7ff00000")
A("s_and_b32 s5, s3, 3")
lfirst = int(opt.get('lfirst', 0))
A("s_cmp_lt_u32 s3, 4" if opt.get('swap') else "s_cmp_ge_u32 s3, 4")
A("s_cbranch_scc0 Lrole_m" if lfirst else "s_cbranch_scc1 Lrole_d")
def role(cls, srd, k, prio):
    A.stamp_begin()
    if opt.get(prio): A(f"s_setprio {opt[prio]}")
    r = cfg(cls(A))
    r.run()
    A.stamp_end(srd, WS_STAMP + 0x20000 * k, 's2', 's5')
    A("s_endpgm")
    for st in r.stubs:
        for l_ in st: A(l_)
if not lfirst: role(U.M, 's[20:23]', 0, 'mprio')
A.label("Lrole_d")
if opt.get('cpf'):
    per = int(opt['cpf'])
    A("s_cmp_lg_u32 s5, 0")
    A("s_cbranch_scc1 Lnocpf")
    A("s_getpc_b64 s[8:9]")
    A.label("Lpc")
    A(f"s_sub_u32 s8, s8, Lpc-{KN}")
    A("s_subb_u32 s9, s9, 0")
    A("s_lshr_b32 s10, s2, 3")
    A(f"s_mul_i32 s10, s10, {per}")
    if per > 6: A(f"s_and_b32 s10, s10, 255")
    A("v_add_u32 v3, s10, v1")
    A(f"v_min_u32 v3, (Lexit-{KN})/128, v3")
    A("v_lshlrev_b32 v3, 7, v3")
    A("v_mov_b32 v5, s9")
    A("v_add_co_u32 v4, vcc, s8, v3")
    A("v_addc_co_u32 v5, vcc, 0, v5, vcc")
    A(f"s_mov_b64 exec, {(1 << per) - 1:#x}")
    A("global_load_dword v2, v[4:5], off")
    A("s_mov_b64 exec, -1")
    A.label("Lnocpf")
role(U.Lr, 's[44:47]', 1, 'lprio')
if lfirst:
    A(".p2align 6")
    A.label("Lrole_m")
    role(U.M, 's[20:23]', 0, 'mprio')
A.label("Lexit")
A("s_endpgm")
if opt.get('split'):
    a = A.lines.index("Lrole_m:"); b = A.lines.index("; split_pro")
    pro = A.lines[a + 1:b]
    del A.lines[a + 1:b + 1]
    i = A.lines.index("s_cbranch_scc0 Lrole_m")
    A.lines[i:i + 1] = ["s_cbranch_scc1 Lrole_d"] + pro + ["s_branch Lrole_m"]
if opt.get('whatif'):
    import re as _re
    w = opt['whatif']; keep = []; cnt = 0
    for l in A.lines:
        d = False
        if 'S' in w and l.startswith('v_mfma_f32_16x16x32_bf16 v[24:27]'): d = True
        if 'P' in w and l.startswith('ds_write_b128 v12, v['): d = True
        if 'C' in w and l.startswith('ds_write_b128 v250, v['): d = True
        if 'D' in w and l.startswith('ds_write_b64 v244, v['): d = True
        if 'B' in w and l.startswith('ds_write_b128 v249, v['): d = True
        if 'V' in w and l.startswith('v_mfma_f32_16x16x32_bf16') and not l.startswith('v_mfma_f32_16x16x32_bf16 v[24:27]'):
            cnt += 1; d = (cnt % 2 == 0)
        if 'W' in w and l.endswith(' lds') and 's[16:19], s53' in l: l = l.replace('s53', 's61')
        if 'X' in w and l.endswith(' lds') and 's[24:27], s38' in l: l = l.replace('s38', 's14')
        if 'H' in w and 'buffer_load_dwordx4 v[' in l and ', v6, s[20:23], s43' in l: l = l.replace('s43', 's61')
        if 'F' in w and l.startswith('s_cbranch_scc1 Lg2_ph_r'): d = True
        if 'A' in w and l.startswith('buffer_store_dwordx4') and ', v7, s[20:23], s4' in l: l = l.replace(' sc1', '')
        if d: keep.append('s_nop 0')
        else: keep.append(l)
    A.lines = keep
n = A.fix_hazards(verbose='-v' in sys.argv)
print("hazard pads:", n)
out = HDR
out += f"; @launch grid=(256,1,1) block=(512,1,1) lds={U.LDS_TOTAL}\n"
out += '.amdgcn_target "amdgcn-amd-amdhsa--gfx950"\n.text\n' + A.text()
out += f'''.section .rodata,"a"
.p2align 6
.amdhsa_kernel {KN}
  .amdhsa_next_free_vgpr 256
  .amdhsa_next_free_sgpr {102 if (A.stamps or A.amp_name) else 64}
  .amdhsa_accum_offset 256
  .amdhsa_group_segment_fixed_size 0
  .amdhsa_kernarg_size 120
  .amdhsa_user_sgpr_count 2
  .amdhsa_user_sgpr_kernarg_segment_ptr 1
  .amdhsa_system_sgpr_workgroup_id_x 1
.end_amdhsa_kernel
'''
open(sys.argv[1], "w").write(out)
```

```python
from layout import *
from asmlib import Queue

SPIN = 200000
NOUY = 0
XLDS = 0
S2LDS = 0
L_S2 = 163840 - 512
NO_I0 = 0
W1_SIZE = 512 * 1376 * 2
OOB = 0x7ff00000
SLOT = 28672
XOFF = 12288
L_B = 3 * SLOT
KREV_SZ = 4576
TROW = 528
CPY = 4160
L_TAB = 0
L_U = L_B
L_PART = L_U
L_BX = L_U + 8 * CPY
L_MISC = L_BX + 32768
L_SB = L_MISC
L_CNT = L_MISC + 768
L_KREV = L_MISC + 1024
L_LN = L_KREV
LDS_TOTAL = 163840
def slot_of(s): return ((s + 1) % 3) * SLOT
NST = 11
W2AREA = {0: L_BX, 1: L_BX + 16384, 2: 65536, 3: 0, 4: 16384, 5: 32768, 6: 49152, 7: L_BX, 8: L_BX + 16384, 9: 65536, 10: 0}
HINC = [1]*8 + [248] + [2]*4 + [248, 4, 4, 248, 4, 4, 248, 8, 248, 8, 248, 8, 248, 8] + [8]*4
C_LN, C_EX, C_BUILT, C_CVD, C_PART, C_Y, C_TABW, C_TABF, C_U, C_FIN, C_TAG = range(0, 44, 4)
C_FULL, C_FREE = 64, 80
sID, sW, sTAG, sQ = 's4', 's5', 's6', 's7'
sRB, sCB, sRB2, sDB, sM2 = 's34', 's35', 's48', 's49', 's52'
vLANE = 'v1'

class Role:
    def __init__(self, A):
        self.A = A
        self.vm = Queue(A, 'vmcnt', 63); self.lg = Queue(A, 'lgkmcnt', 15)
        self.stubs = []
    def emit(self, op):
        lines, q, tag = op
        for l in lines: self.A(l)
        if q is not None: q.push(tag)
    def V(self, line, tag): self.A(line); self.vm.push(tag)
    def L(self, line, tag): self.A(line); self.lg.push(tag)
    def soft_arrive(self, off, vc, vt):
        A = self.A
        A(f"v_mov_b32 v{vt}, 1")
        A(f"s_mov_b64 exec, 1")
        self.L(f"ds_add_u32 v{vc}, v{vt} offset:{off}", 'sa')
        A(f"s_mov_b64 exec, -1")
    def soft_wait(self, name, off, target, vc, vt, slp=0):
        A = self.A
        A(f"s_mov_b32 s42, {SPIN*8}")
        A.label(f"L{name}")
        A(f"ds_read_b32 v{vt}, v{vc} offset:{off}")
        A(f"s_waitcnt lgkmcnt(0)")
        A(f"v_readfirstlane_b32 s3, v{vt}")
        A(f"s_sub_u32 s42, s42, 1")
        A(f"s_cbranch_scc1 L{name}_ok")
        A(f"s_cmp_ge_u32 s3, {target}")
        A(f"s_cbranch_scc1 L{name}_ok")
        if slp: A(f"s_sleep {slp}")
        A(f"s_branch L{name}")
        A.label(f"L{name}_ok")
        self.lg.q = []
    def post_word(self, vaddr, off, val, vt):
        A = self.A
        A(f"v_mov_b32 v{vt}, {val}")
        A(f"s_mov_b64 exec, 1")
        self.L(f"ds_write_b32 v{vaddr}, v{vt} offset:{off}", 'sa')
        A(f"s_mov_b64 exec, -1")
    def ids(self):
        A = self.A
        A(f"s_and_b32 s3, {sID}, 7")
        A(f"s_lshr_b32 {sQ}, {sID}, 3")
        A(f"s_lshl_b32 s43, s3, 5")
        A(f"s_add_u32 {sQ}, {sQ}, s43")
        A(f"s_bfe_u32 s34, {sID}, 0x10003")
        A(f"s_lshl_b32 s43, s3, 1")
        A(f"s_add_u32 s34, s34, s43")
        A(f"s_lshr_b32 s35, {sID}, 4")
        if XLDS:
            A(f"s_bfe_u32 s48, {sID}, 0x10004")
            A(f"s_lshl_b32 s43, s34, 1")
            A(f"s_add_u32 s48, s48, s43")
            A(f"s_lshr_b32 s49, {sID}, 5")
            A(f"s_add_u32 s49, s49, s3")
            A(f"s_and_b32 s49, s49, 7")
        else:
            A(f"s_bfe_u32 s48, {sID}, 0x20003")
            A(f"s_lshl_b32 s43, s3, 2")
            A(f"s_add_u32 s48, s48, s43")
            A(f"s_lshr_b32 s49, {sID}, 5")
        A(f"s_lshl_b32 s52, {sW}, 12")

    def w2_src(self, vD, t0, t1, t2):
        A = self.A
        A(f"v_lshrrev_b32 v{t0}, 3, {vLANE}")
        A(f"v_and_b32 v{t1}, 7, {vLANE}")
        A(f"v_bfe_u32 v{t2}, {vLANE}, 4, 1")
        A(f"v_lshlrev_b32 v{t2}, 2, v{t2}")
        A(f"v_xor_b32 v{t1}, v{t1}, v{t2}")
        A(f"v_lshlrev_b32 v{t1}, 4, v{t1}")
        A(f"v_lshl_add_u32 v{t1}, v{t0}, 10, v{t1}")
        A(f"s_lshl_b32 s3, s49, 7")
        A(f"v_add_u32 v{vD}, s3, v{t1}")
        for i in (1, 2, 3): A(f"v_add_u32 v{vD+i}, {7168*i}, v{vD}")
        A(f"s_mul_i32 s50, {sW}, {NST*32768}")
    def w2_ops(self, st, vD, W2):
        return [([f"s_add_u32 m0, s52, {W2AREA[st]}", f"s_add_u32 s53, s50, {st*32768}"][:2 if i == 0 else 0]
                 + [f"buffer_load_dwordx4 v{vD+i}, {W2}, s53 offen offset:{1024*i} lds"], self.vm, ('w2', st)) for i in range(4)]

class M(Role):
    y_at = 8
    y_per = 2
    h_sleep = 2
    HD = 4
    n_early = 3
    t0_first = 0
    e0 = 18
    xl_at = 22
    st_at = 17
    w2_gate = 0
    osc = 'nt'
    sent = 0
    early_gate = 1
    w_by_l = 0
    poll_at = 1
    wait_built = 1
    h_first = 0
    w_pre = 2
    h_delay = 0
    x_at = 21
    def run(self):
        A = self.A; vm = self.vm; lg = self.lg; E = self.emit; V = self.V; L = self.L
        X, W2, WS, OUT, B1 = 's[8:11]', 's[16:19]', 's[20:23]', 's[24:27]', 's[28:31]'
        pB2 = 's[32:33]'
        sc = 'sc1'
        vXA, vWA, vONE, vSA, vB1, vACC, vWB, vXB = 12, 16, 20, 24, 28, 32, 80, 104
        vX, vS2, vOF = 192, 204, 208
        vST, vEX, vFU = 112, 116, 132
        vRA, vMS, vCN, vTM, vDS = 240, 246, 250, 251, 252
        A(f"s_load_dwordx2 s[8:9], s[0:1], 0")
        A(f"s_load_dwordx2 s[20:21], s[0:1], 112")
        A(f"s_load_dwordx2 s[28:29], s[0:1], 72")
        A(f"s_load_dwordx2 s[32:33], s[0:1], 88")
        A(f"s_load_dwordx2 s[16:17], s[0:1], 80")
        A(f"s_load_dwordx2 s[24:25], s[0:1], 96")
        self.ids()
        for base, size in ((8, 0x200000), (20, WS_SIZE), (16, W1_SIZE), (24, 0x200000), (28, 2752)):
            A(f"s_mov_b32 s{base+2}, {size}")
            A(f"s_mov_b32 s{base+3}, 0x20000")
        A(f"s_lshl_b32 s3, {sQ}, 13")
        A(f"s_lshl_b32 s43, {sW}, 11")
        A(f"s_add_u32 s3, s3, s43")
        vLO, vLW, vLR, vL3 = 136, 137, 138, 139
        R = 140; F = 32; T = 48
        A(f"v_lshl_add_u32 v{vLO}, {vLANE}, 4, s3")
        A(f"v_mov_b32 v{vST+3}, {WS_EP}")
        A(f"v_mov_b32 v{vCN}, {L_CNT}")
        A(f"v_mov_b32 v2, 0")
        A(f"v_lshl_add_u32 v3, {vLANE}, 2, v{vCN}")
        A(f"ds_write_b32 v3, v2")
        A(f"s_waitcnt lgkmcnt(0)")
        V(f"buffer_load_dwordx4 v[{R}:{R+3}], v{vLO}, {X}, 0 offen", 'lnx')
        V(f"buffer_load_dwordx4 v[{R+4}:{R+7}], v{vLO}, {X}, 0 offen offset:1024", 'lnx')
        V(f"buffer_load_dword v{vST+3}, v{vST+3}, {WS}, 0 offen sc1", 'ep')
        if not NO_I0: A(f"s_barrier")
        A("; split_pro")
        A(f"s_cmp_eq_u32 {sW}, 3")
        A(f"s_cselect_b32 s44, 0, {sW}")
        A(f"s_add_u32 s45, s44, 1")
        A(f"s_cmp_eq_u32 s45, 3")
        A(f"s_cselect_b32 s45, 0, s45")
        A(f"s_add_u32 s46, s45, 1")
        A(f"s_cmp_eq_u32 s46, 3")
        A(f"s_cselect_b32 s46, 0, s46")
        A(f"v_lshrrev_b32 v30, 4, {vLANE}")
        A(f"v_and_b32 v19, 31, {vLANE}")
        A(f"v_bfe_u32 v31, {vLANE}, 1, 3")
        A(f"v_lshrrev_b32 v11, 5, {vLANE}")
        A(f"v_xor_b32 v31, v31, v11")
        A(f"v_lshlrev_b32 v31, 4, v31")
        A(f"v_lshl_add_u32 v31, v19, 7, v31")
        A(f"s_add_u32 s3, {sM2}, {XOFF}")
        A(f"v_add_u32 v{vXA}, s3, v31")
        for k in (1, 2, 3): A(f"v_xor_b32 v{vXA+k}, {32*k}, v{vXA}")
        A(f"v_bfe_u32 v3, {vLANE}, 2, 2")
        A(f"v_lshl_add_u32 v2, v11, 3, v3")
        A(f"v_mul_u32_u24 v2, 192, v2")
        A(f"v_and_b32 v31, 1, v30")
        A(f"v_lshl_add_u32 v2, v31, 5, v2")
        A(f"v_and_b32 v29, 3, {vLANE}")
        A(f"v_lshl_add_u32 v2, v29, 3, v2")
        for i in range(3): A(f"v_lshl_add_u32 v{vWA+i}, s{44+i}, 6, v2")
        for i in range(3): A(f"v_add_u32 v{4+i}, {2*SLOT}, v{vWA+i}")
        A(f"v_lshl_add_u32 v2, v11, 2, v3")
        A(f"v_lshlrev_b32 v2, 7, v2")
        A(f"v_xor_b32 v31, {sW}, v31")
        A(f"v_and_b32 v8, 2, v3")
        A(f"v_xor_b32 v31, v31, v8")
        A(f"v_lshl_add_u32 v2, v31, 5, v2")
        A(f"v_lshl_add_u32 v2, v29, 3, v2")
        A(f"v_add_u32 v{vRA}, {sM2}, v2")
        A(f"v_xor_b32 v{vRA+1}, 64, v{vRA}")
        A(f"v_add_u32 v{vRA+2}, 65536, v{vRA}")
        A(f"v_add_u32 v{vRA+3}, 65536, v{vRA+1}")
        A(f"v_add_u32 v{vRA+4}, {L_BX}, v{vRA}")
        A(f"v_add_u32 v{vRA+5}, {L_BX}, v{vRA+1}")
        LNROW = 1088; STS = 8 * LNROW
        A(f"v_mul_u32_u24 v{vLR}, {LNROW}, v3")
        A(f"v_xor_b32 v3, v3, v30")
        A(f"v_and_b32 v3, 1, v3")
        A(f"v_cmp_eq_u32 vcc, 0, v3")
        A(f"v_mov_b32 v31, 0x3f803f80")
        A(f"s_mul_i32 s3, {sW}, {2*LNROW}")
        A(f"s_add_u32 s3, s3, {L_LN}")
        A(f"v_lshl_add_u32 v{vLW}, {vLANE}, 4, s3")
        for i in range(4): A(f"v_cndmask_b32 v{vONE+i}, 0, v31, vcc")
        A(f"v_lshl_add_u32 v{vLR}, v30, 5, v{vLR}")
        A(f"v_lshl_add_u32 v{vLR}, v29, 3, v{vLR}")
        A(f"s_lshl_b32 s3, {sW}, 8")
        A(f"s_add_u32 s3, s3, {L_LN}")
        A(f"v_add_u32 v{vLR}, s3, v{vLR}")
        self.w2_src(vDS, 2, 3, 8)
        A(f"v_mov_b32 v{T+12}, 0x3b000000")
        vm.need(['lnx', 'ep'])
        A.stamp('ln loaded')
        A(f"v_readfirstlane_b32 {sTAG}, v{vST+3}")
        for r in range(2):
            for i in range(4):
                A(f"v_lshlrev_b32 v{F+8*r+2*i}, 16, v{R+4*r+i}")
                A(f"v_and_b32 v{F+8*r+2*i+1}, 0xffff0000, v{R+4*r+i}")
        A(f"s_or_b32 {sTAG}, {sTAG}, 1")
        A(f"s_add_u32 {sTAG}, {sTAG}, {TAG_INC:#x}")
        for r in range(2):
            b = F + 8 * r
            A(f"v_pk_add_f32 v[{T+4*r}:{T+4*r+1}], v[{b}:{b+1}], v[{b+2}:{b+3}]")
            A(f"v_pk_mul_f32 v[{T+4*r+2}:{T+4*r+3}], v[{b}:{b+1}], v[{b}:{b+1}]")
        for i in (1, 2, 3):
            for r in range(2):
                b = F + 8 * r + 2 * i
                if i >= 2: A(f"v_pk_add_f32 v[{T+4*r}:{T+4*r+1}], v[{T+4*r}:{T+4*r+1}], v[{b}:{b+1}]")
                A(f"v_pk_fma_f32 v[{T+4*r+2}:{T+4*r+3}], v[{b}:{b+1}], v[{b}:{b+1}], v[{T+4*r+2}:{T+4*r+3}]")
        for k in range(4): A(f"v_add_f32 v{T+8+k}, v{T+2*k}, v{T+2*k+1}")
        for ctl in ("row_shr:1 row_mask:0xf bank_mask:0xf bound_ctrl:0", "row_shr:2 row_mask:0xf bank_mask:0xf bound_ctrl:0",
                    "row_shr:4 row_mask:0xf bank_mask:0xf bound_ctrl:0", "row_shr:8 row_mask:0xf bank_mask:0xf bound_ctrl:0",
                    "row_bcast:15 row_mask:0xa bank_mask:0xf", "row_bcast:31 row_mask:0xc bank_mask:0xf"):
            for k in range(4): A(f"v_add_f32_dpp v{T+8+k}, v{T+8+k}, v{T+8+k} {ctl}")
        for k in range(4): A(f"v_readlane_b32 s{56+k}, v{T+8+k}, 63")
        Mn, Vv, P = T, T + 2, T + 4
        for r in range(2):
            A(f"v_mul_f32 v{Mn+r}, s{56+2*r}, v{T+12}")
            A(f"v_mul_f32 v{Vv+r}, s{57+2*r}, v{T+12}")
        for r in range(2): A(f"v_fma_f32 v{Vv+r}, -v{Mn+r}, v{Mn+r}, v{Vv+r}")
        for r in range(2): A(f"v_max_f32 v{Vv+r}, 0, v{Vv+r}")
        for r in range(2): A(f"v_cvt_pk_bf16_f32 v{P+r}, v{Mn+r}, v{Vv+r}")
        for r in range(2): A(f"v_and_b32 v{Vv+r}, 0xffff0000, v{P+r}")
        for r in range(2): A(f"v_add_f32 v{Vv+r}, 0x3727c5ac, v{Vv+r}")
        A(f"v_cvt_pk_bf16_f32 v{P+2}, v{Vv}, v{Vv+1}")
        A(f"v_lshlrev_b32 v{Vv}, 16, v{P+2}")
        A(f"v_and_b32 v{Vv+1}, 0xffff0000, v{P+2}")
        for r in range(2): A(f"v_sqrt_f32 v{Vv+r}, v{Vv+r}")
        for r in range(2): A(f"v_lshlrev_b32 v{Mn+r}, 16, v{P+r}")
        Gq = 148
        for r in range(2):
            A(f"v_cvt_pk_bf16_f32 v{Gq+2*r}, v{Mn+r}, v{Vv+r}")
            A(f"v_mov_b32 v{Gq+2*r+1}, {sTAG}")
        for r in range(2): A(f"v_and_b32 v{Vv+r}, 0xffff0000, v{Gq+2*r}")
        RS = T + 14
        for r in range(2): A(f"v_rcp_f32 v{RS+2*r}, v{Vv+r}")
        A(f"s_lshl_b32 s3, {sW}, 4")
        A(f"s_add_u32 s3, s3, {L_LN}")
        A(f"v_mov_b32 v{vL3}, s3")
        A(f"s_mov_b64 exec, 1")
        L(f"ds_write_b128 v{vL3}, v[{Gq}:{Gq+3}] offset:{STS}", 'lnw')
        L(f"ds_write_b32 v{vCN}, v{Gq+1} offset:{C_TAG}", 'lnw')
        A(f"s_mov_b64 exec, -1")
        for r in range(2): A(f"v_mul_f32_e64 v{RS+2*r+1}, -v{Mn+r}, v{RS+2*r}")
        for r in range(2):
            for i in range(4):
                b = F + 8 * r + 2 * i
                A(f"v_pk_fma_f32 v[{b}:{b+1}], v[{b}:{b+1}], v[{RS+2*r}:{RS+2*r+1}], v[{RS+2*r}:{RS+2*r+1}] op_sel:[0,0,1] op_sel_hi:[1,0,1]")
            for i in range(4):
                b = F + 8 * r + 2 * i
                A(f"v_cvt_pk_bf16_f32 v{R+4*r+i}, v{b}, v{b+1}")
            L(f"ds_write_b128 v{vLW}, v[{R+4*r}:{R+4*r+3}] offset:{LNROW*r}", 'lnw')
        if not NO_I0: self.soft_arrive(C_LN, vCN, vTM)
        A(f"v_lshlrev_b32 v7, 4, {vLANE}")
        A(f"v_add_u32 v{vLW}, {L_LN}, v7")
        A(f"s_lshl_b32 s55, {sQ}, 7")
        A(f"s_add_u32 s54, s55, {WS_ST}")
        A(f"s_lshl_b32 s55, {sQ}, 2")
        A(f"s_add_u32 s55, s55, {WS_FU}")
        def ln_reads():
            for i in range(2):
                L(f"ds_read_b64_tr_b16 v[{R+4*i}:{R+4*i+1}], v{vLR} offset:{128*i}", 'lnr')
                L(f"ds_read_b64_tr_b16 v[{R+4*i+2}:{R+4*i+3}], v{vLR} offset:{128*i+4*LNROW}", 'lnr')
            L(f"ds_read_b128 v[{Gq}:{Gq+3}], v{vLW} offset:{STS}", 'lnr')
        def ln_stores():
            A(f"s_cmp_eq_u32 {sW}, 0")
            lg.need('lnr')
            A(f"s_cbranch_scc0 Lm_nost")
            A(f"s_mov_b64 exec, 15")
            A(f"buffer_store_dwordx4 v[{Gq}:{Gq+3}], v7, {WS}, s54 offen sc1")
            A(f"s_mov_b64 exec, -1")
            A.label("Lm_nost")
            V(f"buffer_store_dwordx4 v[{R}:{R+3}], v{vLO}, {WS}, 0 offen sc1", 'ust')
            V(f"buffer_store_dwordx4 v[{R+4}:{R+7}], v{vLO}, {WS}, 0 offen offset:1024 sc1", 'ust')
        if not NO_I0:
            self.soft_wait("m_ln", C_LN, 4, vCN, vTM)
            ln_reads(); ln_stores()
        A(f"v_lshlrev_b32 v29, 1, v19")
        A(f"s_mul_i32 s3, {sCB}, 192")
        A(f"s_lshl_b32 s43, s44, 6")
        A(f"s_add_u32 s3, s3, s43")
        V(f"buffer_load_ushort v{vB1}, v29, {B1}, s3 offen", 'b1')
        A.stamp('ln done')
        def rd_ops(i):
            s, ks = i >> 2, i & 3
            so = slot_of(s)
            xr = vXB + 4 * (i & 1)
            ops = [([f"ds_read_b128 v[{xr}:{xr+3}], v{vXA+ks} offset:{so}"], lg, ('f', i, 0))]
            base, off = (vWA, so) if so < 2 * SLOT else (4, 0)
            off += ks * 3072
            for t in range(3):
                r = vWB + 12 * (i & 1) + 4 * t
                ops.append(([f"ds_read_b64_tr_b16 v[{r}:{r+1}], v{base+t} offset:{off}"], lg, ('f', i, t)))
                ops.append(([f"ds_read_b64_tr_b16 v[{r+2}:{r+3}], v{base+t} offset:{off+768}"], lg, ('f', i, t)))
            return ops
        A(f"s_mov_b32 s41, {SPIN*8}")
        lg.drain()
        A(f"s_barrier")
        A.stamp('g1 st0')
        for o in rd_ops(0): E(o)
        if NO_I0: ln_reads()
        A(f"v_and_b32 v{vST+2}, 24, v19")
        A(f"v_add_lshl_u32 v{vST+2}, v{vST+2}, v19, 3")
        A(f"s_lshl_b32 s3, {sRB}, 11")
        A(f"s_lshl_b32 s43, {sW}, 9")
        A(f"s_add_u32 s47, s3, s43")
        A(f"s_add_u32 s47, s47, {WS_ST}")
        for i in range(32):
            s, ks = i >> 2, i & 3
            nxt = rd_ops(i + 1) if i < 31 else []
            x = vXB + 4 * (i & 1)
            cuts = [(0, 3), (3, 5), (5, 7)]
            for t in range(3):
                lg.need(('f', i, t))
                r = vWB + 12 * (i & 1) + 4 * t
                a = vACC + 16 * t
                c = '0' if i == 0 else f"v[{a}:{a+15}]"
                A(f"v_mfma_f32_32x32x16_bf16 v[{a}:{a+15}], v[{r}:{r+3}], v[{x}:{x+3}], {c}")
                if t == 0 and ks == 3 and s < 7:
                    A.stamp(f'_A{s}')
                    if s == self.u_at: vm.need('ust')
                    lg.drain()
                    A(f"s_barrier")
                    A.stamp(f'_B{s}')
                    if s == self.u_at:
                        A(f"s_cmp_eq_u32 {sW}, 0")
                        A(f"s_cbranch_scc1 Lm_pu")
                        A.label("Lm_pu_ok")
                        self.stubs.append(["Lm_pu:", f"v_mov_b32 v2, {sTAG}", f"v_mov_b32 v3, 0", f"s_mov_b64 exec, 1", f"buffer_store_dword v2, v3, {WS}, s55 offen sc1",
                                           f"s_mov_b64 exec, -1", f"s_branch Lm_pu_ok"])
                for o in nxt[cuts[t][0]:cuts[t][1]]: E(o)
            r = vWB + 12 * (i & 1)
            c = '0' if i == 0 else f"v[{vSA}:{vSA+3}]"
            A(f"v_mfma_f32_16x16x32_bf16 v[{vSA}:{vSA+3}], v[{vONE}:{vONE+3}], v[{r}:{r+3}], {c}")
            if i == 0 and NO_I0: ln_stores()
            if i == self.st_at:
                V(f"buffer_load_dwordx2 v[{vST}:{vST+1}], v{vST+2}, {WS}, s47 offen {sc}", 'st')
            if i == self.e0:
                A(f"v_lshlrev_b32 v{vOF}, 10, v19")
                A(f"v_lshl_add_u32 v{vOF}, v11, 4, v{vOF}")
                A(f"s_lshl_b32 s3, {sRB2}, 16")
                A(f"s_lshl_b32 s43, {sDB}, 7")
                A(f"s_lshl_b32 s40, {sW}, 5")
                A(f"s_add_u32 s43, s43, s40")
                A(f"s_add_u32 s3, s3, s43")
                A(f"v_add_u32 v{vOF}, s3, v{vOF}")
                A(f"v_add_u32 v{vOF+1}, 32768, v{vOF}")
                A(f"v_lshl_add_u32 v2, v11, 3, s43")
                if S2LDS:
                    A(f"s_lshl_b32 s3, {sW}, 7")
                    A(f"s_add_u32 s3, s3, {L_S2}")
                    A(f"v_lshl_add_u32 v{vS2+1}, v19, 2, s3")
                    A(f"s_and_b32 s3, {sRB2}, 1")
                    A(f"s_lshl_b32 s3, s3, 8")
                    A(f"s_add_u32 s3, s3, {L_S2}")
                    A(f"v_lshl_add_u32 v{vS2+3}, v19, 2, s3")
                A(f"s_lshl_b32 s39, {sRB2}, 10")
                A(f"s_add_u32 s39, s39, {WS_ST}")
                V(f"global_load_dwordx2 v[{vX+8}:{vX+9}], v2, {pB2}", 'st')
                V(f"global_load_dwordx2 v[{vX+10}:{vX+11}], v2, {pB2} offset:16", 'st')
            if i == self.x_at and not S2LDS:
                V(f"buffer_load_dwordx2 v[{vS2}:{vS2+1}], v{vST+2}, {WS}, s39 offen {sc}", 'st')
                V(f"buffer_load_dwordx2 v[{vS2+2}:{vS2+3}], v{vST+2}, {WS}, s39 offen offset:512 {sc}", 'st')
            if XLDS and i == 0:
                A(f"s_and_b32 s3, {sRB2}, 1")
                A(f"s_lshl_b32 s3, s3, 13")
                A(f"s_add_u32 s3, s3, {XOFF + slot_of(0)}")
                A(f"v_bfe_u32 v2, {vLANE}, 1, 3")
                A(f"v_lshl_add_u32 v3, {sW}, 1, v11")
                A(f"v_xor_b32 v2, v2, v3")
                A(f"v_lshlrev_b32 v2, 4, v2")
                A(f"v_lshl_add_u32 v2, v19, 7, v2")
                A(f"v_add_u32 v2, s3, v2")
                L(f"ds_read_b128 v[{vX}:{vX+3}], v2", 'xl')
                L(f"ds_read_b128 v[{vX+4}:{vX+7}], v2 offset:4096", 'xl')
            if i == self.xl_at and not XLDS: V(f"buffer_load_dwordx4 v[{vX}:{vX+3}], v{vOF}, {X}, 0 offen", 'st')
            if i == self.xl_at + 1 and not XLDS: V(f"buffer_load_dwordx4 v[{vX+4}:{vX+7}], v{vOF+1}, {X}, 0 offen", 'st')
            if i == self.e0 + 1 and self.sent:
                A(f"v_and_b32 v2, 3, {vLANE}")
                A(f"v_lshlrev_b32 v2, 3, v2")
                A(f"v_lshrrev_b32_e64 v2, v2, {sTAG}")
                for j in range(4):
                    A(f"v_lshlrev_b32 v3, {15 - 2*j}, v2")
                    A(f"v_and_b32 v3, 0x8000, v3")
                    A(f"v_lshlrev_b32 v{vMS+j}, {30 - 2*j}, v2")
                    A(f"v_and_b32 v{vMS+j}, 0x80000000, v{vMS+j}")
                    A(f"v_or_b32 v{vMS+j}, v{vMS+j}, v3")
            if i == self.e0 + 1 and not self.sent:
                A(f"s_lshl_b32 s3, {sRB}, 1")
                A(f"s_lshr_b32 s43, {sW}, 1")
                A(f"s_add_u32 s3, s3, s43")
                A(f"s_lshl_b32 s3, s3, 5")
                A(f"s_lshl_b32 s43, {sCB}, 1")
                A(f"s_add_u32 s3, s3, s43")
                A(f"s_and_b32 s43, {sW}, 1")
                A(f"s_add_u32 s3, s3, s43")
                A(f"s_lshl_b32 s3, s3, 7")
                A(f"s_add_u32 s38, s3, {WS_FH}")
                def msk(w):
                    lo = (22 * w) // 6; hi = min((22 * w + 21) // 6, 14)
                    return sum(3 << (2 * c) for c in range(lo, hi + 1))
                A(f"s_mov_b32 s37, {msk(0):#x}")
                for w in (1, 2, 3):
                    A(f"s_cmp_eq_u32 {sW}, {w}")
                    A(f"s_cselect_b32 s37, {msk(w):#x}, s37")
                A(f"s_lshl_b32 s36, {sRB2}, 12")
                A(f"s_add_u32 s36, s36, {WS_FH}")
                A(f"v_lshlrev_b32 v{vMS}, 7, v19")
                A(f"v_mov_b32 v{vMS+1}, {sTAG}")
                A(f"v_mov_b32 v{vMS+2}, 0")
                A(f"v_lshl_add_u32 v{vMS+3}, {sW}, 2, v{vCN}")
            if i == self.e0 + 3:
                A(f"s_lshl_b32 s3, {sRB}, 2")
                A(f"s_add_u32 s3, s3, {sW}")
                A(f"s_mul_i32 s3, s3, {HK}")
                A(f"s_lshl_b32 s3, s3, 10")
                A(f"s_add_u32 s3, s3, {WS_H}")
                A(f"s_mul_i32 s43, {sCB}, 3")
                A(f"v_lshlrev_b32 v2, 3, v19")
                A(f"v_add_u32 v2, {L_SB}, v2")
                for k in range(3): A(f"v_lshl_add_u32 v{8+k}, s{44+k}, 8, v2")
                for k in range(3):
                    A(f"s_add_u32 s{44+k}, s{44+k}, s43")
                    A(f"s_cmp_lt_u32 s{44+k}, 43")
                    A(f"s_cselect_b32 s54, s3, {OOB:#x}")
                    A(f"s_lshl_b32 s{44+k}, s{44+k}, 11")
                    A(f"s_add_u32 s{44+k}, s{44+k}, s54")
            if i == self.e0 + 4:
                for k in range(16): A(f"v_mov_b32 v{vEX+k}, 0")
            if i == 29:
                vm.need(['st', 'b1'])
                A.label("Lg1_st")
                A(f"v_cmp_ne_u32 vcc, {sTAG}, v{vST+1}")
                A(f"s_cbranch_vccnz Lg1_st_r")
                A.label("Lg1_st_ok")
                self.stubs.append(["Lg1_st_r:", f"s_sub_u32 s41, s41, 8", f"s_cselect_b32 s41, 0, s41", f"s_cbranch_scc1 Lg1_st_ok", f"s_sleep 4",
                                   f"buffer_load_dwordx2 v[{vST}:{vST+1}], v{vST+2}, {WS}, s47 offen {sc}", f"s_waitcnt vmcnt(0)", f"s_branch Lg1_st"])
                vBX = vEX + 12
                A(f"v_xor_b32 v{vBX+1}, 0x8000, v{vST}")
                A(f"v_alignbit_b32 v{vBX}, v{vBX+1}, v{vBX+1}, 16")
                A(f"v_and_b32 v{vBX+1}, 0xffff, v{vBX+1}")
        A.stamp('g1 loop end')
        vBX = vEX + 12
        A(f"v_cvt_pk_bf16_f32 v2, v{vSA}, v{vSA}")
        A(f"v_and_b32 v2, 0xffff0000, v2")
        A(f"v_sub_f32 v3, v{vSA}, v2")
        A(f"s_mov_b32 exec_hi, 0")
        A(f"v_cvt_pk_bf16_f32 v{vEX+1}, v3, v{vBX+2}")
        A(f"v_or_b32 v{vEX}, v2, v{vB1}")
        L(f"ds_write_b64 v8, v[{vEX}:{vEX+1}]", 'exw')
        if S2LDS: L(f"ds_write_b32 v{vS2+1}, v{vST}", 'exw')
        A(f"s_mov_b32 exec_hi, -1")
        A(f"v_mfma_f32_32x32x16_bf16 v[{vACC}:{vACC+15}], v[{vEX}:{vEX+3}], v[{vBX}:{vBX+3}], v[{vACC}:{vACC+15}]")
        vH0, vH1, vA2, vHF, HD = 7, 6, 32, 96, self.HD
        A(f"v_add_u32 v{vH1}, {HK*1024}, v{vH0}")
        A(f"v_mov_b32 v4, v{vOF}")
        A(f"v_mov_b32 v5, v{vOF+1}")
        def tile(k):
            a = vACC + 16 * k
            for half in range(2):
                for p in range(8 * half, 8 * half + 8): A(f"v_mul_f32_e64 v{a+p}, v{a+p}, |v{a+p}|")
                for p in range(4 * half, 4 * half + 4): A(f"v_cvt_pk_bf16_f32 v{a+p}, v{a+2*p}, v{a+2*p+1}")
                for p in range(4 * half, 4 * half + 4): A(f"v_pk_max_i16 v{a+p}, v{a+p}, 0")
                if self.sent:
                    for p in range(4 * half, 4 * half + 4): A(f"v_or_b32 v{a+p}, v{a+p}, v{vMS + (p & 3)}")
                V(f"buffer_store_dwordx4 v[{a+4*half}:{a+4*half+3}], v7, {WS}, s{44+k} offen offset:{1024*half} {sc}", 'hst')
        if self.t0_first: tile(0)
        lg.drain()
        A(f"s_barrier")
        A(f"s_mov_b32 exec_hi, 0")
        for k in (1, 2): L(f"ds_read_b64 v[{vEX+4*k}:{vEX+4*k+1}], v{8+k}", ('exr', k))
        A(f"s_mov_b32 exec_hi, -1")
        if S2LDS:
            L(f"ds_read_b32 v{vS2}, v{vS2+3}", 's2')
            L(f"ds_read_b32 v{vS2+2}, v{vS2+3} offset:128", 's2')
        for k in (1, 2):
            lg.need(('exr', k))
            a = vACC + 16 * k
            A(f"v_mfma_f32_32x32x16_bf16 v[{a}:{a+15}], v[{vEX+4*k}:{vEX+4*k+3}], v[{vBX}:{vBX+3}], v[{a}:{a+15}]")
        if not self.t0_first: tile(0)
        tile(1); tile(2)
        A.stamp('g1 stored')
        W = lambda st: self.w2_ops(st, vDS, W2)
        if not self.w2_gate:
            for o in W(2): E(o)
        A(f"s_mul_i32 s51, {sRB2}, {2*HK*1024}")
        A(f"s_mul_i32 s3, {sW}, {NST*2048}")
        A(f"s_add_u32 s51, s51, s3")
        A(f"s_add_u32 s51, s51, {WS_H}")
        A(f"s_add_u32 s55, s51, {10*2048}")
        A(f"s_cmp_eq_u32 {sW}, 3")
        A(f"s_cselect_b32 s55, {OOB:#x}, s55")
        WREG = {0: 160, 1: 176, 2: 192}
        def rd2_ops(p, kk):
            ar = W2AREA[p]; ops = []; dst = (WREG[p] + 8 * kk) if p in WREG else treg(p, kk)
            a, off = (vRA, ar) if ar < 65536 else ((vRA + 2, ar - 65536) if ar < L_BX else (vRA + 4, ar - L_BX))
            off += kk * 2048
            for dt in range(2):
                r = dst + 4 * dt
                ops.append(([f"ds_read_b64_tr_b16 v[{r}:{r+1}], v{a+dt} offset:{off}"], lg, ('t', p, kk)))
                ops.append(([f"ds_read_b64_tr_b16 v[{r+2}:{r+3}], v{a+dt} offset:{off+1024}"], lg, ('t', p, kk)))
            return ops
        for o in rd2_ops(0, 0) + rd2_ops(0, 1): E(o)
        A(f"v_lshlrev_b32 v12, 3, v19")
        A(f"v_lshl_add_u32 v28, v11, 15, v12")
        A(f"v_and_b32 v13, 1, {vLANE}")
        A(f"v_lshlrev_b32 v13, 4, v13")
        A(f"v_lshrrev_b32_e64 v29, v13, {sTAG}")
        A(f"v_lshrrev_b32 v31, 8, v29")
        if S2LDS: lg.need('s2')
        else:
            A.label("Lg2_st")
            A(f"v_xor_b32 v14, {sTAG}, v{vS2+1}")
            A(f"v_xor_b32 v30, {sTAG}, v{vS2+3}")
            A(f"v_or_b32 v14, v14, v30")
            A(f"v_cmp_ne_u32 vcc, 0, v14")
            A(f"s_cbranch_vccnz Lg2_st_r")
            A.label("Lg2_st_ok")
            self.stubs.append(["Lg2_st_r:", f"s_sub_u32 s41, s41, 8", f"s_cselect_b32 s41, 0, s41", f"s_cbranch_scc1 Lg2_st_ok", f"s_sleep 4",
                               f"buffer_load_dwordx2 v[{vS2}:{vS2+1}], v{vST+2}, {WS}, s39 offen {sc}", f"buffer_load_dwordx2 v[{vS2+2}:{vS2+3}], v{vST+2}, {WS}, s39 offen offset:512 {sc}",
                               f"s_waitcnt vmcnt(0)", f"s_branch Lg2_st"])
        def ldh_ops(p, kk):
            r = vHF + 16 * (p % HD) + 8 * kk
            so = 's55' if p == 10 else 's43'
            return [([f"s_add_u32 s43, s51, {p*2048}"][:(1 - tt) if p < 10 else 0] +
                     [f"buffer_load_dwordx4 v[{r+4*tt}:{r+4*tt+3}], v{[vH0, vH1][tt]}, {WS}, {so} offen offset:{1024*kk} {sc}"], vm, ('h', p, kk)) for tt in range(2)]
        for tt in range(2):
            b = vX + 4 * tt
            A(f"v_permlane32_swap_b32 v{b}, v{b+2}")
            A(f"v_permlane32_swap_b32 v{b+1}, v{b+3}")
        for tt in range(2):
            A(f"v_and_b32 v{8+tt}, 0xffff0000, v{vS2+2*tt}")
            A(f"v_mul_f32 v{8+tt}, v{8+tt}, v{8+tt}")
            A(f"v_rcp_f32 v{2+tt}, v{8+tt}")
        lg.drain()
        for o in rd2_ops(1, 0) + rd2_ops(1, 1): E(o)
        for j in range(4):
            A(f"v_lshlrev_b32 v{80+2*j}, 16, v{vX+8+j}")
            A(f"v_and_b32 v{81+2*j}, 0xffff0000, v{vX+8+j}")
        for tt in range(2):
            a = vA2 + 16 * tt
            for j in range(4):
                A(f"v_lshlrev_b32 v{a+2*j}, 16, v{vX+4*tt+j}")
                A(f"v_and_b32 v{a+2*j+1}, 0xffff0000, v{vX+4*tt+j}")
            for j in range(8): A(f"v_add_f32 v{a+j}, v{a+j}, v{80+j}")
            for j in range(8): A(f"v_mul_f32 v{a+j}, v{a+j}, v{8+tt}")
            for j in range(8, 16): A(f"v_mov_b32 v{a+j}, 0")
        A(f"s_lshl_b32 s3, {sDB}, 19")
        A(f"s_lshl_b32 s44, {sW}, 17")
        A(f"s_add_u32 s3, s3, s44")
        A(f"s_lshl_b32 s44, {sRB2}, 9")
        A(f"s_add_u32 s3, s3, s44")
        A(f"s_add_u32 s47, s3, {WS_YT}")
        if not self.sent:
            vm.need('hst')
            A(f"s_mov_b64 exec, 1")
            V(f"buffer_store_dword v{vMS+1}, v{vMS+2}, {WS}, s38 offen sc1", 'flag')
            A(f"s_mov_b64 exec, -1")
        A.stamp('g2 flag')
        if not self.w2_gate:
            vm.need(('w2', 2))
            lg.drain()
            for o in rd2_ops(2, 0) + rd2_ops(2, 1): E(o)
        pollop = ([f"s_mov_b32 exec_lo, s37", f"s_mov_b32 exec_hi, 0", f"buffer_load_dword v30, v{vMS}, {WS}, s36 offen sc1", f"s_mov_b64 exec, -1"], vm, 'poll')
        lg.drain()
        if self.w2_gate:
            del WREG[2]
            seq = [2, 7, 8]
        else: seq = [7, 8, 9]
        early = seq[:self.n_early]
        if self.early_gate: self.soft_wait("m_bu", C_U, 4, vCN, vTM, slp=2)
        for st_ in early:
            for o in W(st_): E(o)
        self.soft_wait("m_kd", C_BUILT, 4, vCN, vTM, slp=2)
        A.stamp('g2 kd')
        wq = sorted([3, 4, 5, 6] + seq[self.n_early:])
        grp = [W(wq.pop(0)) for _ in range(min(self.w_pre, len(wq)))]
        if not self.sent: grp.insert(self.poll_at, [pollop])
        for g_ in grp:
            for o in g_: E(o)
        wl = []
        for st_ in wq: wl += [W(st_)[:2], [(W(st_)[0][0][:2] + W(st_)[2][0], vm, ('w2', st_)), W(st_)[3]]]
        if not self.sent:
            vm.need('poll')
            A.label("Lg2_ph")
            A(f"v_cmp_ne_u32 vcc, {sTAG}, v30")
            A(f"s_and_b32 s3, vcc_lo, s37")
            A(f"s_cbranch_scc1 Lg2_ph_r")
            A.label("Lg2_ph_ok")
            self.stubs.append(["Lg2_ph_r:", f"s_sub_u32 s41, s41, 8", f"s_cselect_b32 s41, 0, s41", f"s_cbranch_scc1 Lg2_ph_ok", f"s_sleep 1", f"s_mov_b32 exec_lo, s3", f"s_mov_b32 exec_hi, 0",
                               f"buffer_load_dword v30, v{vMS}, {WS}, s36 offen sc1", f"s_mov_b64 exec, -1", f"s_waitcnt vmcnt(0)", f"s_branch Lg2_ph"])
        A.stamp('g2 h ok')
        for p in range(HD):
            for o in ldh_ops(p, 0) + ldh_ops(p, 1): E(o)
        vY = 224
        def ldy_ops():
            ops = []
            for q in range(2):
                for e2 in range(2):
                    for tt in range(2):
                        r = vY + 8 * tt + 4 * q + 2 * e2
                        ops.append(([f"s_add_u32 s44, s47, {(4*q+e2)*16384}"][:1 - tt] + [f"buffer_load_dwordx2 v[{r}:{r+1}], v28, {WS}, s44 offen offset:{256*tt} {sc}"], vm, 'y'))
            return ops
        def treg(p, kk): return [208, 216][(2 * p + kk) & 1]
        yq = ldy_ops()
        def check(p, kk):
            r = vHF + 16 * (p % HD) + 8 * kk
            vm.need(('h', p, kk))
            A.label(f"Lhc{p}_{kk}")
            for j in range(8): A(f"v_xor_b32 v{r+j}, v{r+j}, v{vMS + (j & 3)}")
            A(f"v_or3_b32 v15, v{r}, v{r+1}, v{r+2}")
            A(f"v_or3_b32 v14, v{r+3}, v{r+4}, v{r+5}")
            A(f"v_or3_b32 v15, v15, v{r+6}, v{r+7}")
            A(f"v_or_b32 v15, v15, v14")
            A(f"v_and_b32 v15, s40, v15")
            A(f"v_cmp_ne_u32 vcc, 0, v15")
            if p == 10:
                A(f"s_cmp_eq_u32 {sW}, 3")
                A(f"s_cbranch_scc1 Lhk{p}_{kk}")
            A(f"s_cbranch_vccnz Lhr{p}_{kk}")
            A.label(f"Lhk{p}_{kk}")
            self.stubs.append([f"Lhr{p}_{kk}:", f"s_sub_u32 s41, s41, 8", f"s_cselect_b32 s41, 0, s41", f"s_cbranch_scc1 Lhk{p}_{kk}", f"s_sleep {self.h_sleep}", f"s_add_u32 s3, s51, {p*2048}",
                          f"buffer_load_dwordx4 v[{r}:{r+3}], v{vH0}, {WS}, s3 offen offset:{1024*kk} {sc}",
                          f"buffer_load_dwordx4 v[{r+4}:{r+7}], v{vH1}, {WS}, s3 offen offset:{1024*kk} {sc}",
                          f"s_waitcnt vmcnt(0)", f"s_branch Lhc{p}_{kk}"])
        if self.sent:
            A(f"s_mov_b32 s40, 0x80008000")
            check(0, 0)
        for p in range(NST):
            for kk in range(2):
                np_, nkk = (p, 1) if kk == 0 else (p + 1, 0)
                rds = rd2_ops(np_, nkk) if (np_ < NST and np_ not in WREG) else []
                fill = []
                pp, pkk = (p, 0) if kk == 1 else (p - 1, 1)
                if pp >= 0 and pp + HD < NST: fill += ldh_ops(pp + HD, pkk)
                if (p, kk) == (3, 0) and self.w2_gate: wl += [W(9)[:2], [(W(9)[0][0][:2] + W(9)[2][0], vm, ('w2', 9)), W(9)[3]]]
                if (p, kk) == (4, 0): wl += [W(10)[:2], [(W(10)[0][0][:2] + W(10)[2][0], vm, ('w2', 10)), W(10)[3]]]
                if wl: fill += wl.pop(0)
                if p >= self.y_at and yq:
                    fill += yq[:self.y_per]; yq = yq[self.y_per:]
                if (p, kk) == (2, 0) and self.w_by_l: L(f"ds_read_b32 v15, v{vMS+3} offset:{C_FULL}", 'wf')
                vm.need(('h', p, kk))
                if p == 0 and kk == 0: A.stamp('g2 st0')
                if kk == 0: A.stamp(f'_P{p}')
                lg.need(('t', p, kk))
                w0 = (WREG[p] + 8 * kk) if p in WREG else treg(p, kk)
                last = (p == NST - 1 and kk == 1)
                n = 0
                for dt in ((1, 0) if last else (0, 1)):
                    for tt in range(2):
                        a = vA2 + 32 * dt + 16 * tt
                        w = w0 + 4 * dt
                        h = vHF + 16 * (p % HD) + 8 * kk + 4 * tt
                        c = '0' if (p == 0 and kk == 0 and dt == 1) else f"v[{a}:{a+15}]"
                        A(f"v_mfma_f32_32x32x16_bf16 v[{a}:{a+15}], v[{w}:{w+3}], v[{h}:{h+3}], {c}")
                        n += 1
                        if n == 1:
                            if (np_, nkk) == (3, 0) and self.w_by_l:
                                lg.need('wf')
                                A.label("Lwf")
                                A(f"v_readfirstlane_b32 s3, v15")
                                A(f"s_cmp_eq_u32 s3, 0")
                                A(f"s_cbranch_scc1 Lwf_r")
                                A.label("Lwf_ok")
                                self.stubs.append(["Lwf_r:", f"s_sub_u32 s41, s41, 1", f"s_cselect_b32 s41, 0, s41", f"s_cbranch_scc1 Lwf_ok", f"s_sleep 1", f"ds_read_b32 v15, v{vMS+3} offset:{C_FULL}",
                                                   f"s_waitcnt lgkmcnt(0)", f"s_branch Lwf"])
                            if rds and nkk == 0:
                                assert self.w_by_l or sum(1 for t_ in vm.log if t_ == ('w2', np_)) == 4, np_
                                vm.need(('w2', np_))
                            for o in rds: E(o)
                        elif not self.sent:
                            k = (len(fill) + (4 - n)) // (5 - n)
                            for o in fill[:k]: E(o)
                            fill = fill[k:]
                        elif n <= 3:
                            k = (len(fill) + (3 - n)) // (4 - n)
                            for o in fill[:k]: E(o)
                            fill = fill[k:]
                        elif np_ < NST:
                            check(np_, nkk)
        assert not yq
        A.stamp('g2 loop end')
        PA = {1: 16384, 2: 32768, 3: 49152}
        vP = vY
        A(f"v_add_u32 v12, {sM2}, v{vH0}")
        for i in (1, 2, 3):
            A(f"s_xor_b32 s3, {sW}, {i}")
            A(f"s_lshl_b32 s3, s3, 12")
            A(f"v_add_u32 v{20+i}, s3, v{vH0}")
        for i in (2, 3, 1):
            for tt in range(2):
                for qq in range(2):
                    a = vA2 + 32 * (i >> 1) + 16 * tt + 8 * (i & 1) + 4 * qq
                    L(f"ds_write_b128 v12, v[{a}:{a+3}] offset:{PA[i] + tt*2048 + qq*1024}", 'pw')
        vm.need('y')
        A.label("Lyc")
        for j in range(0, 16, 2):
            A(f"v_xor_b32 v14, v{vY+j}, v29")
            A(f"v_xor_b32 v15, v{vY+j+1}, v31")
            if j == 0: A(f"v_or_b32 v13, v14, v15")
            else: A(f"v_or3_b32 v13, v13, v14, v15")
        A(f"v_and_b32 v13, 0xff, v13")
        A(f"v_cmp_ne_u32 vcc, 0, v13")
        if not NOUY: A(f"s_cbranch_vccnz Lyr")
        A.label("Lyk")
        st = ["Lyr:", f"s_sub_u32 s41, s41, 8", f"s_cselect_b32 s41, 0, s41", f"s_cbranch_scc1 Lyk", f"s_sleep 2"]
        for o in ldy_ops(): st += o[0]
        self.stubs.append(st + [f"s_waitcnt vmcnt(0)", f"s_branch Lyc"])
        A.stamp('g2 y ok')
        lg.drain()
        A(f"s_barrier")
        A.stamp('g2 bar')
        RR = {1: 96, 2: 112, 3: 128}
        for i in (1, 2, 3):
            for k in range(4):
                r = RR[i] + 4 * k
                L(f"ds_read_b128 v[{r}:{r+3}], v{20+i} offset:{PA[i] + k*1024}", ('pr', i))
        for i in (1, 2, 3):
            lg.need(('pr', i))
            for tt in range(2):
                for j in range(4):
                    a = vA2 + 16 * tt + 2 * j
                    r = RR[i] + 8 * tt + 2 * j
                    A(f"v_pk_add_f32 v[{a}:{a+1}], v[{a}:{a+1}], v[{r}:{r+1}]")
        for tt in range(2):
            for j in range(4):
                a = vA2 + 16 * tt + 2 * j
                A(f"v_pk_fma_f32 v[{a}:{a+1}], v[{a}:{a+1}], v[2:3], v[{vP+8*tt+2*j}:{vP+8*tt+2*j+1}] op_sel:[0,{tt},0] op_sel_hi:[1,{tt},1]")
            for j in range(4):
                a = vA2 + 16 * tt + 2 * j
                A(f"v_cvt_pk_bf16_f32 v{16+4*tt+j}, v{a}, v{a+1}")
            b = 16 + 4 * tt
            A(f"v_permlane32_swap_b32 v{b}, v{b+2}")
            A(f"v_permlane32_swap_b32 v{b+1}, v{b+3}")
            A(f"buffer_store_dwordx4 v[{b}:{b+3}], v{4+tt}, {OUT}, 0 offen {self.osc}")
    u_at = 1

class Lr(Role):
    rot = 'cx'
    touch = 1
    zdum = 1
    i0_late = 0
    pk_steps = 0
    kd_early = 0
    k_first = 0
    pu_late = 1
    l2pf = 0
    pf_plan = [2, 1, 1, 1, 1, 1]
    plan = [10, 8, 4, 4, 3, 3]
    kprio = 3
    dprio = 0
    cprio = 3
    w_by_l = 0
    w_every = 3
    w_cert = 72
    l_n = 3
    kper = 4
    spread = 1
    poll_sleep = 8
    def run(self):
        A = self.A; vm = self.vm; lg = self.lg; E = self.emit; V = self.V; L = self.L
        pLA, pAI, pCR, pCI, pLDT, pDSK = 's[10:11]', 's[12:13]', 's[14:15]', 's[16:17]', 's[18:19]', 's[20:21]'
        X, W1, W2, WS, UBS = 's[24:27]', 's[56:59]', 's[60:63]', 's[44:47]', 's[8:11]'
        sLDT, sDSK, sCH, sHW = 's28', 's29', 's22', 's23'
        sKX, sKW, sMX, sMW, sPERM = 's38', 's39', 's40', 's41', 's54'
        vXS, vWS_, vDS = 228, 232, 236
        vKA, vKB, vKW, vKZ, vTW, vCT, vCH, vUA, vUB, vUL, vPW, vPR, vUD, vCN = range(240, 254)
        A(f"s_load_dwordx16 s[8:23], s[0:1], 0")
        A(f"s_load_dwordx2 s[56:57], s[0:1], 64")
        A(f"s_load_dwordx2 s[44:45], s[0:1], 112")
        A(f"s_load_dwordx2 s[60:61], s[0:1], 80")
        self.ids()
        for base, size in ((24, 0x200000), (56, W1_SIZE), (60, W1_SIZE), (44, WS_SIZE)):
            A(f"s_mov_b32 s{base+2}, {size}")
            A(f"s_mov_b32 s{base+3}, 0x20000")
        A(f"s_and_b32 s31, {sW}, 1")
        A(f"s_lshl_b32 s30, {sQ}, 1")
        A(f"s_add_u32 s3, s31, s30")
        A(f"s_lshl_b32 s3, s3, 8")
        A(f"v_lshl_add_u32 v16, {vLANE}, 2, s3")
        A(f"s_lshl_b32 s30, {sQ}, 2")
        if XLDS: A(f"s_mov_b32 s3, {sDB}")
        elif self.rot == 'cx': A(f"s_add_u32 s3, {sCB}, {sID}")
        elif self.rot == 'cxa':
            A(f"s_lshl_b32 s3, {sRB}, 2")
            A(f"s_add_u32 s3, s3, {sCB}")
            A(f"s_add_u32 s3, s3, {sID}")
        elif self.rot == 'ca':
            A(f"s_lshl_b32 s3, {sRB}, 2")
            A(f"s_add_u32 s3, s3, {sCB}")
        elif self.rot == 'x': A(f"s_mov_b32 s3, {sID}")
        elif self.rot == 'c': A(f"s_mov_b32 s3, {sCB}")
        else: A(f"s_mov_b32 s3, 0")
        A(f"s_and_b32 s3, s3, 7")
        A(f"s_mul_i32 s3, s3, 0x11111111")
        A(f"s_add_u32 {sPERM}, s3, 0x76543210")
        A(f"s_mul_i32 s3, {sW}, {16*2752}")
        A(f"s_mul_i32 s43, {sCB}, 192")
        A(f"s_add_u32 s3, s3, s43")
        A(f"s_movk_i32 s43, {2752 - 192}")
        if self.zdum:
            A(f"s_mul_i32 s42, {sCB}, 12")
            A(f"s_sub_i32 s42, 172, s42")
            A(f"v_mov_b32 v29, {OOB:#x}")
        A(f"v_lshl_add_u32 v31, {vLANE}, 4, s3")
        for i in range(3):
            A(f"v_add_u32 v3, {64*i}, {vLANE}")
            A(f"v_mul_u32_u24 v3, 0x5556, v3")
            A(f"v_lshrrev_b32 v3, 18, v3")
            A(f"v_mad_u32_u24 v{vWS_+i}, v3, s43, v31")
            if self.zdum:
                A(f"v_mul_u32_u24 v3, 12, v3")
                A(f"v_sub_u32 v3, {vLANE}, v3")
                A(f"v_add_u32 v3, {64*i}, v3")
                A(f"v_cmp_le_i32 vcc, s42, v3")
                A(f"v_cndmask_b32 v{vWS_+i}, v{vWS_+i}, v29, vcc")
        A(f"v_lshrrev_b32 v3, 3, {vLANE}")
        A(f"v_lshrrev_b32 v30, 4, {vLANE}")
        A(f"v_and_b32 v31, 7, {vLANE}")
        A(f"v_xor_b32 v31, v31, v30")
        A(f"v_lshlrev_b32 v31, 4, v31")
        A(f"v_lshl_add_u32 v31, v3, 10, v31")
        A(f"s_lshl_b32 s3, {sRB}, 17")
        A(f"s_lshl_b32 s43, {sW}, 15")
        A(f"s_add_u32 s3, s3, s43")
        if self.zdum and not XLDS:
            A(f"s_cmp_eq_u32 {sCB}, 15")
            A(f"s_cselect_b32 s3, {OOB:#x}, s3")
        A(f"v_add_u32 v{vXS}, s3, v31")
        A(f"v_xor_b32 v{vXS+1}, 64, v{vXS}")
        A(f"v_add_u32 v{vXS+1}, {8192-1024}, v{vXS+1}")
        A(f"v_add_u32 v{vXS+2}, {2*(8192-1024)}, v{vXS}")
        A(f"v_add_u32 v{vXS+3}, {2*(8192-1024)}, v{vXS+1}")
        A(f"s_lshl_b32 {sMX}, {sW}, 12")
        A(f"s_add_u32 {sMX}, {sMX}, {XOFF}")
        A(f"s_mul_i32 {sMW}, {sW}, 3072")
        A(f"s_waitcnt lgkmcnt(0)")
        V(f"global_load_dword v4, v16, {pLA}", 'par')
        V(f"global_load_dword v5, v16, {pAI}", 'par')
        V(f"global_load_dword v6, v16, {pCR}", 'par')
        V(f"global_load_dword v7, v16, {pCI}", 'par')
        A(f"s_load_dword {sLDT}, {pLDT}, s30")
        A(f"s_load_dword {sDSK}, {pDSK}, s30")
        A(f"s_mov_b32 s24, s8")
        A(f"s_mov_b32 s25, s9")
        A(f"s_mov_b32 {sCH}, s31")
        A(f"s_lshr_b32 {sHW}, {sW}, 1")
        if not NO_I0 and not self.i0_late: A(f"s_barrier")
        def st_ops(s):
            w = [([f"s_add_u32 m0, {sMW}, {slot_of(s)}", f"s_bfe_u32 s3, {sPERM}, {(4*s) | (3<<16):#x}", f"s_mul_i32 {sKW}, s3, {64*2752}", f"s_lshl_b32 {sKX}, s3, 7"][:4 if i == 0 else 0]
                  + [f"buffer_load_dwordx4 v{vWS_+i}, {W1}, {sKW} offen offset:{1024*i} lds"], vm, ('st', s)) for i in range(3)]
            x = [([f"s_add_u32 m0, {sMX}, {slot_of(s)}"][:1 if i == 0 else 0]
                  + [f"buffer_load_dwordx4 v{vXS+i}, {X}, {sKX} offen offset:{1024*i} lds"], vm, ('st', s)) for i in range(4)]
            return w + x
        A.stamp('_L0 i0')
        for o in st_ops(0)[:self.i0_late]: E(o)
        if self.i0_late: A(f"s_barrier")
        for o in st_ops(0)[self.i0_late:]: E(o)
        if self.zdum and XLDS:
            A(f"s_cmp_eq_u32 {sCB}, 15")
            A(f"s_cselect_b32 s3, {OOB:#x}, 0")
            for i in range(4): A(f"v_or_b32 v{vXS+i}, s3, v{vXS+i}")
        A.stamp('_L1 st0')
        def nibp(lst): return sum(lst[7 - p] << (4 * p) for p in range(8))
        N0 = nibp(list(range(8))); N1 = nibp([0,0,1,2,2,2,3,4]); N2 = nibp([0,0,0,1,1,1,2,2]); N4 = nibp([0,0,0,0,0,1,1,1])
        A(f"v_mov_b32 v{vCN}, {L_CNT}")
        A(f"v_and_b32 v20, 7, {vLANE}")
        A(f"v_lshlrev_b32 v20, 2, v20")
        A(f"v_bfe_u32 v21, {vLANE}, 3, 2")
        A(f"s_cmp_lt_u32 {sW}, 2")
        A(f"s_mov_b32 s51, {N4:#x}")
        A(f"s_cselect_b32 s32, {N0:#x}, s51")
        A(f"s_cselect_b32 s33, {N1:#x}, s51")
        A(f"s_cselect_b32 s55, {N2:#x}, s51")
        A(f"s_mov_b32 s51, {(26<<24)|(24<<16)|(22<<8)|20:#x}")
        A(f"s_cselect_b32 s51, {(17<<24)|(14<<16)|(9<<8)|0:#x}, s51")
        A(f"s_cselect_b32 s36, 0, 0xaaaaaaaa")
        A(f"s_mov_b32 s37, 0")
        A(f"v_cmp_eq_u32 vcc, 1, v21")
        A(f"v_mov_b32 v22, s55")
        A(f"v_mov_b32 v23, s33")
        A(f"v_cndmask_b32 v22, v22, v23, vcc")
        A(f"v_cmp_eq_u32 vcc, 0, v21")
        A(f"v_mov_b32 v23, s32")
        A(f"v_lshlrev_b32 v21, 3, v21")
        A(f"v_cndmask_b32 v22, v22, v23, vcc")
        A(f"v_bfe_u32 v22, v22, v20, 4")
        A(f"v_bfe_u32 v23, s51, v21, 8")
        A(f"v_add_u32 v22, v22, v23")
        A(f"v_lshrrev_b32 v23, 5, {vLANE}")
        A(f"s_mul_i32 s31, {sCH}, {60*TROW}")
        A(f"s_add_u32 s31, s31, {L_TAB}")
        A(f"v_lshl_add_u32 v24, v23, 4, s31")
        A(f"s_movk_i32 s30, {TROW}")
        A(f"v_mad_u32_u24 v{vKA}, v22, s30, v24")
        A(f"v_and_b32 v22, 31, {vLANE}")
        A(f"v_mad_u32_u24 v{vKB}, v22, s30, v24")
        A(f"s_mul_i32 s30, {sHW}, {28*TROW}")
        A(f"s_add_u32 s31, s31, s30")
        A(f"v_lshl_add_u32 v{vTW}, {vLANE}, 3, s31")
        A(f"s_mul_i32 s31, {sCH}, {KREV_SZ}")
        A(f"s_add_u32 s31, s31, {L_KREV}")
        A(f"v_lshl_add_u32 v{vKZ}, {vLANE}, 4, s31")
        A(f"s_lshl_b32 s30, {sHW}, 11")
        A(f"s_sub_u32 s32, s31, s30")
        A(f"s_add_u32 s32, s32, {4080 - 1536}")
        A(f"v_lshlrev_b32 v22, 4, v22")
        A(f"v_sub_u32 v22, s32, v22")
        A(f"v_lshl_add_u32 v{vKW}, v23, 3, v22")
        for o in st_ops(1)[:3]: E(o)
        A(f"v_and_b32 v20, 15, {vLANE}")
        A(f"s_lshl_b32 s32, {sHW}, 8")
        A(f"s_add_u32 s31, s31, s32")
        A(f"s_add_u32 s31, s31, 480")
        A(f"v_lshlrev_b32 v22, 5, v20")
        A(f"v_sub_u32 v22, s31, v22")
        A(f"v_lshl_add_u32 v{vCT}, v30, 4, v22")
        A(f"s_mul_i32 s31, {sCH}, {4*CPY}")
        A(f"s_add_u32 s31, s31, {L_U}")
        A(f"s_add_u32 s33, s31, s32")
        A(f"v_bfe_u32 v22, {vLANE}, 2, 2")
        A(f"v_and_b32 v24, 3, {vLANE}")
        A(f"v_mul_u32_u24 v25, {CPY}, v22")
        A(f"v_lshl_add_u32 v25, v30, 4, v25")
        A(f"v_lshl_add_u32 v25, v24, 3, v25")
        A(f"v_add_u32 v{vCH}, s33, v25")
        A(f"v_lshlrev_b32 v25, 2, v30")
        A(f"v_xor_b32 v25, v25, {vLANE}")
        A(f"s_lshl_b32 s3, {sW}, 13")
        A(f"s_add_u32 s3, s3, {L_PART}")
        A(f"v_lshl_add_u32 v{vPW}, v25, 4, s3")
        A(f"v_bfe_u32 v26, {vLANE}, 1, 2")
        A(f"v_lshrrev_b32 v25, 3, {vLANE}")
        A(f"v_lshlrev_b32 v27, 2, v26")
        A(f"v_xor_b32 v25, v25, v27")
        A(f"v_lshlrev_b32 v25, 4, v25")
        A(f"v_lshl_add_u32 v25, v26, 8, v25")
        A(f"v_and_b32 v24, 1, {vLANE}")
        A(f"v_lshl_add_u32 v25, v24, 3, v25")
        A(f"s_lshl_b32 s3, {sW}, 11")
        A(f"s_add_u32 s3, s3, {L_PART}")
        A(f"v_add_u32 v{vPR}, s3, v25")
        A(f"s_lshl_b32 s3, {sW}, 10")
        A(f"s_add_u32 s3, s3, {L_U}")
        A(f"v_lshl_add_u32 v{vUD}, {vLANE}, 2, s3")
        A(f"v_lshrrev_b32 v25, 1, {vLANE}")
        A(f"s_lshl_b32 s3, {sW}, 6")
        A(f"v_add_u32 v25, s3, v25")
        A(f"s_lshl_b32 s3, {sQ}, 5")
        A(f"s_sub_u32 s3, s3, 16384")
        A(f"v_lshlrev_b32 v26, 13, v25")
        A(f"v_lshl_add_u32 v26, v24, 4, v26")
        A(f"v_add_u32 v{vUA}, s3, v26")
        A(f"v_add_u32 v{vUB}, 8192, v{vUA}")
        A(f"v_mul_u32_u24 v26, {4*CPY}, v24")
        A(f"v_lshl_add_u32 v26, v25, 4, v26")
        A(f"v_add_u32 v{vUL}, {L_U}, v26")
        self.w2_src(vDS, 20, 21, 22)
        LOG2E = '0x3fb8aa3b'
        A(f"s_waitcnt lgkmcnt(0)")
        A(f"s_mov_b32 s8, s44")
        A(f"s_mov_b32 s9, s45")
        A(f"s_mov_b32 s10, {UB_SIZE}")
        A(f"s_mov_b32 s11, 0x20000")
        A(f"s_lshl_b32 s30, {sLDT}, 16")
        A(f"s_and_b32 s31, {sLDT}, 0xffff0000")
        A(f"s_cmp_eq_u32 {sCH}, 0")
        A(f"s_cselect_b32 {sLDT}, s30, s31")
        A(f"s_and_b32 s12, {sDSK}, 0xffff0000")
        A(f"s_lshl_b32 {sDSK}, {sDSK}, 16")
        A(f"v_mov_b32 v16, {LOG2E}")
        A(f"v_mul_f32 v17, {sLDT}, v16")
        A(f"v_exp_f32 v17, v17")
        A(f"s_cmp_lt_u32 {sW}, 2")
        A(f"s_cselect_b32 s32, 1.0, 0x41000000")
        A(f"s_cselect_b32 s33, 0x43780000, s32")
        A(f"s_cselect_b32 s55, 0xbe22f983, 0.15915494")
        A(f"v_cvt_pk_bf16_f32 v17, v17, v17")
        A(f"v_lshlrev_b32 v17, 16, v17")
        vm.need('par')
        A.stamp('par loaded')
        A(f"v_lshlrev_b32 v20, 16, v4")
        A(f"v_and_b32 v21, 0xffff0000, v4")
        A(f"v_mul_f32 v20, v20, v16")
        A(f"v_mul_f32 v21, v21, v16")
        A(f"v_exp_f32 v20, v20")
        A(f"v_exp_f32 v21, v21")
        A(f"v_lshlrev_b32 v22, 16, v5")
        A(f"v_and_b32 v23, 0xffff0000, v5")
        A(f"v_cvt_pk_bf16_f32 v18, v20, v21")
        A(f"v_mul_f32 v22, v22, v17")
        A(f"v_mul_f32 v23, v23, v17")
        A(f"v_lshlrev_b32 v20, 16, v18")
        A(f"v_and_b32 v21, 0xffff0000, v18")
        A(f"v_mul_f32 v22, s55, v22")
        A(f"v_mul_f32 v23, s55, v23")
        A(f"v_mul_f32 v20, v20, v17")
        A(f"v_mul_f32 v21, v21, v17")
        A(f"v_mul_f32_e64 v20, -v20, v16")
        A(f"v_mul_f32_e64 v21, -v21, v16")
        MR = {1: 24, 248: 28, 2: 32, 4: 36, 8: 40}
        for (inc, sreg, tb) in ((1, 's32', 56), (248, 's33', 60)):
            for i in range(2):
                A(f"v_mul_f32 v{tb+i}, {sreg}, v{20+i}")
                A(f"v_mul_f32 v{tb+2+i}, {sreg}, v{22+i}")
        for tb in (56, 60):
            for i in range(2):
                A(f"v_exp_f32 v{tb+i}, v{tb+i}")
                A(f"v_fract_f32 v{tb+2+i}, v{tb+2+i}")
        for (inc, tb) in ((1, 56), (248, 60)):
            for i in range(2):
                m = MR[inc] + 2 * i
                A(f"v_cos_f32 v{m}, v{tb+2+i}")
                A(f"v_sin_f32 v{m+1}, v{tb+2+i}")
        for (inc, tb) in ((1, 56), (248, 60)):
            for i in range(2):
                m = MR[inc] + 2 * i
                A(f"v_mul_f32 v{m}, v{m}, v{tb+i}")
                A(f"v_mul_f32 v{m+1}, v{m+1}, v{tb+i}")
        def cmul2(dst, a, m):
            l1 = []; l2 = []
            for i in range(2):
                d, x, y = dst + 2 * i, a + 2 * i, m + 2 * i
                l1.append(f"v_mul_f32_e64 v{d}, -v{x+1}, v{y+1}")
                l1.append(f"v_mul_f32 v{d+1}, v{x}, v{y+1}")
                l2.append(f"v_fmac_f32 v{d}, v{x}, v{y}")
                l2.append(f"v_fmac_f32 v{d+1}, v{x+1}, v{y}")
            return l1, l2
        A(f"s_cbranch_scc1 Lkg_h")
        for r in range(32, 44): A(f"v_mov_b32 v{r}, v{24 + (r & 3)}")
        A(f"v_mov_b32 v48, 1.0")
        A(f"v_mov_b32 v49, 0")
        A(f"v_mov_b32 v50, 1.0")
        A(f"v_mov_b32 v51, 0")
        A(f"s_branch Lkg_go")
        A.label("Lkg_h")
        A(f"v_add_f32 v17, v17, v17")
        A(f"v_lshlrev_b32 v48, 16, v6")
        A(f"v_lshlrev_b32 v49, 16, v7")
        A(f"v_and_b32 v50, 0xffff0000, v6")
        A(f"v_and_b32 v51, 0xffff0000, v7")
        for (d, s_) in ((2, 1), (4, 2), (8, 4)):
            l1, l2 = cmul2(MR[d], MR[s_], MR[s_])
            for x in l1 + l2: A(x)
        A(f"v_mul_f32 v48, v48, v17")
        A(f"v_mul_f32_e64 v49, -v49, v17")
        A(f"v_mul_f32 v50, v50, v17")
        A(f"v_mul_f32_e64 v51, -v51, v17")
        A.label("Lkg_go")
        dma = st_ops(1)[3:] + st_ops(2)
        if self.touch:
            dma.append(([f"s_mul_i32 s3, {sQ}, 5504", f"s_mul_i32 s30, {sW}, 1408", f"s_add_u32 s3, s3, s30", f"v_lshlrev_b32 v19, 7, {vLANE}", f"s_mov_b64 exec, 0x7ff",
                         f"buffer_load_dword v3, v19, {W2}, s3 offen", f"s_mov_b64 exec, -1"], vm, 'touch'))
        W = lambda st: self.w2_ops(st, vDS, W2)
        def W2h(st, h):
            o = W(st)
            return [(o[0][0][:2] + o[2*h][0][-1:], vm, ('w2', st)), o[2*h+1]]
        cur, nxt = 48, 52
        step = 0
        def chain_step(ndma):
            nonlocal cur, nxt, step
            pk = 64 + 2 * step
            if step < 31:
                l1, l2 = cmul2(nxt, cur, MR[HINC[step]])
                if step < self.pk_steps:
                    m_ = MR[HINC[step]]
                    l1 = [f"v_pk_mul_f32 v[{nxt+2*i}:{nxt+2*i+1}], v[{cur+2*i}:{cur+2*i+1}], v[{m_+2*i}:{m_+2*i+1}] op_sel:[0,0] op_sel_hi:[1,0]" for i in range(2)]
                    l2 = [f"v_pk_fma_f32 v[{nxt+2*i}:{nxt+2*i+1}], v[{cur+2*i}:{cur+2*i+1}], v[{m_+2*i}:{m_+2*i+1}], v[{nxt+2*i}:{nxt+2*i+1}] op_sel:[1,1,0] op_sel_hi:[0,1,1] neg_lo:[1,0,0]" for i in range(2)]
                for x in l1: A(x)
            A(f"v_cvt_pk_bf16_f32 v{pk}, v{cur}, v{cur+1}")
            A(f"v_cvt_pk_bf16_f32 v{pk+1}, v{cur+2}, v{cur+3}")
            for _ in range(ndma):
                if dma: E(dma.pop(0))
            if step < 31:
                for x in l2: A(x)
            cur, nxt = nxt, cur
            step += 1
        extra = {b_: [] for b_ in range(-1, 5)}
        cert = {}
        if self.l2pf:
            A(f"v_lshlrev_b32 v227, 7, {vLANE}")
            A(f"s_and_b32 s13, {sRB}, 1")
            A(f"s_lshl_b32 s13, s13, 14")
            A(f"s_add_u32 s13, s13, s50")
        pfn = [0]
        def idle_pf(nsteps, tg):
            if not self.l2pf or nsteps == 0: return
            A(f"s_cmp_lg_u32 {sCB}, 15")
            A(f"s_cbranch_scc1 Lpf{tg}")
            for _ in range(nsteps):
                for j in range(2):
                    A(f"s_add_u32 s3, s13, {pfn[0]*32768 + j*8192}")
                    A(f"buffer_load_dword v3, v227, {W2}, s3 offen")
                pfn[0] += 1
            A.label(f"Lpf{tg}")
        for b, n in zip(range(-1, 5), self.plan):
            for k in range(n):
                if step < 32: chain_step(-(-len(dma) // (n - k)))
            while dma: E(dma.pop(0))
            A.stamp(f"_I{b}")
            vm.need([('st', b + 1)] + cert.get(b, []))
            idle_pf(self.pf_plan[b + 1], b + 1)
            A.stamp(f"_W{b}")
            A(f"s_barrier")
            if 0 <= b: dma.extend(st_ops(b + 3))
            dma.extend(extra[b])
        L(f"ds_read_b32 v60, v{vCN} offset:{C_TAG}", 'tag')
        A(f"v_lshlrev_b32 v20, 4, {vLANE}")
        A(f"s_mov_b32 s33, {WS_FU}")
        if not self.pu_late: V(f"buffer_load_dwordx4 v[128:131], v20, {WS}, s33 offen sc1", 'pu')
        while dma: E(dma.pop(0))
        if self.l2pf:
            rem = NST - pfn[0]
            lanes = 8 * rem
            A(f"s_lshr_b32 s3, {sID}, 3")
            A(f"s_lshl_b32 s3, s3, 10")
            A(f"s_add_u32 s3, s3, s50")
            A(f"s_add_u32 s3, s3, {pfn[0]*32768}")
            A(f"v_lshrrev_b32 v226, 3, {vLANE}")
            A(f"v_and_b32 v227, 7, {vLANE}")
            A(f"v_lshlrev_b32 v227, 7, v227")
            A(f"v_lshl_add_u32 v227, v226, 15, v227")
            for j in range((lanes + 63) // 64):
                nl = min(64, lanes - 64 * j)
                if nl < 64:
                    A(f"s_mov_b32 exec_lo, {((1 << min(nl, 32)) - 1):#x}")
                    A(f"s_mov_b32 exec_hi, {((1 << max(nl - 32, 0)) - 1):#x}")
                if j: A(f"s_add_u32 s3, s3, {8*32768}")
                V(f"buffer_load_dword v3, v227, {W2}, s3 offen", 'touch')
                A(f"s_mov_b64 exec, -1")
        while step < 32: chain_step(0)
        A.stamp('kg chain')
        for r in range(24, 28): A(f"v_mov_b32 v{r}, 0")
        lg.drain()
        A(f"v_readfirstlane_b32 {sTAG}, v60")
        vm.need([('st', 6), 'pu'])
        A(f"s_barrier")
        def u_check():
            for k in range(4): A(f"v_xor_b32 v{132+k}, {sTAG}, v{128+k}")
            A(f"v_or3_b32 v132, v132, v133, v134")
            A(f"v_or_b32 v132, v132, v135")
            A(f"v_cmp_ne_u32 vcc, 0, v132")
            if NOUY: A("s_mov_b64 vcc, 0")
        def u_loads(tg):
            A(f"s_mov_b32 s30, {32*8192}")
            A(f"v_add_u32 v22, s30, v{vUA}")
            A(f"v_add_u32 v23, s30, v{vUB}")
            A(f"s_cmp_lg_u32 {sW}, 3")
            A(f"s_cbranch_scc1 Lc_no3{tg}")
            A(f"s_mov_b64 exec, 15")
            A(f"buffer_load_dwordx4 v[144:147], v22, {UBS}, s30 offen sc1")
            A(f"buffer_load_dwordx2 v[148:149], v23, {UBS}, s30 offen sc1")
            A(f"s_mov_b64 exec, 1")
            A(f"s_cmp_lg_u32 {sID}, 0")
            A(f"s_cbranch_scc1 Lc_no3{tg}")
            A(f"v_mov_b32 v28, {sTAG}")
            A(f"v_mov_b32 v29, {WS_EP}")
            A(f"buffer_store_dword v28, v29, {WS}, 0 offen sc1")
            A.label(f"Lc_no3{tg}")
            A(f"s_mov_b32 exec_lo, 0xc000c000")
            A(f"s_mov_b32 exec_hi, 0xc000c000")
            A(f"buffer_load_dwordx2 v[132:133], v{vUB}, {UBS}, 0 offen sc1")
            A(f"buffer_load_dwordx2 v[140:141], v23, {UBS}, 0 offen sc1")
            A(f"s_mov_b64 exec, -1")
            A(f"buffer_load_dwordx4 v[128:131], v{vUA}, {UBS}, 0 offen sc1")
            A(f"buffer_load_dwordx4 v[136:139], v22, {UBS}, 0 offen sc1")
        if self.pu_late: V(f"buffer_load_dwordx4 v[128:131], v20, {WS}, s33 offen sc1", 'pu')
        for o in W(0): E(o)
        vm.need(('st', 7))
        A(f"s_barrier")
        for o in W(1): E(o)
        vm.need('pu')
        u_check()
        A(f"s_mov_b32 s39, 1")
        A(f"s_cbranch_vccnz Lc_skipu")
        A(f"s_mov_b32 s39, {2 if self.k_first else 0}")
        u_loads('a')
        A(f"s_waitcnt vmcnt(4)")
        A(f"s_branch Lc_exb")
        A.label("Lc_skipu")
        A(f"s_waitcnt vmcnt(0)")
        A(f"s_mov_b64 exec, vcc")
        A(f"buffer_load_dwordx4 v[128:131], v20, {WS}, s33 offen sc1")
        A(f"s_mov_b64 exec, -1")
        A.label("Lc_exb")
        vm.q = []
        A.stamp('u ok')
        A(f"s_barrier")
        A.stamp('ex ok')
        A(f"s_setprio {self.dprio}")
        for st_ in range(28): A(f"ds_write_b64 v{vTW}, v[{64+2*st_}:{65+2*st_}] offset:{st_*TROW}")
        A(f"s_cmp_lt_u32 {sW}, 2")
        A(f"s_cbranch_scc1 Lc_h28")
        for st_ in range(28, 32): A(f"ds_write_b64 v{vTW}, v[{64+2*st_}:{65+2*st_}] offset:{st_*TROW}")
        A.label("Lc_h28")
        self.soft_arrive(C_TABW, vCN, 21)
        A.stamp('_L2 dumped')
        def build(tg):
            A(f"s_waitcnt vmcnt(0)")
            for i in range(3):
                w = 128 + 8 * i; t = 152 + 12 * i
                if i == 2:
                    A(f"s_cmp_lg_u32 {sW}, 3")
                    A(f"s_cbranch_scc1 Lc_nob{tg}")
                    A(f"s_mov_b64 exec, 15")
                else:
                    A(f"v_mov_b32_dpp v{w+4}, v{w} row_shl:2 row_mask:0xf bank_mask:0xf")
                    A(f"v_mov_b32_dpp v{w+5}, v{w+1} row_shl:2 row_mask:0xf bank_mask:0xf")
                for j in range(4): A(f"v_alignbyte_b32 v{t+j}, v{w+j+1}, v{w+j}, 2")
                off = 512 * i
                A(f"ds_write_b128 v{vUL}, v[{w+2}:{w+5}] offset:{off + 3*CPY}")
                for j in range(4): A(f"v_mov_b32 v{t+4+j}, v{w+j+1}")
                A(f"ds_write_b128 v{vUL}, v[{t}:{t+3}] offset:{off}")
                for j in range(4): A(f"v_alignbyte_b32 v{t+8+j}, v{w+j+2}, v{w+j+1}, 2")
                A(f"ds_write_b128 v{vUL}, v[{t+4}:{t+7}] offset:{off + CPY}")
                A(f"ds_write_b128 v{vUL}, v[{t+8}:{t+11}] offset:{off + 2*CPY}")
            A(f"s_mov_b64 exec, -1")
            A.label(f"Lc_nob{tg}")
            self.soft_arrive(C_U, vCN, 21)
        A(f"s_cmp_eq_u32 s39, 0")
        A(f"s_cbranch_scc1 Lc_build")
        A(f"s_cmp_eq_u32 s39, 2")
        A(f"s_cbranch_scc1 Lc_nobuild")
        A(f"s_waitcnt vmcnt(0)")
        u_check()
        A(f"s_cbranch_vccnz Lc_nobuild")
        A(f"s_mov_b32 s39, 2")
        u_loads('c')
        A(f"s_branch Lc_nobuild")
        A.label("Lc_build")
        build('')
        A(f"s_cmp_lg_u32 s39, 0")
        A(f"s_cbranch_scc1 Lc_built")
        A.label("Lc_nobuild")
        A(f"s_setprio 0")
        self.soft_wait("l_tabw", C_TABW, 4, vCN, 21, slp=1)
        A(f"s_setprio {self.kprio}")
        A.stamp('_L3 tabw')
        def rdk(k):
            r = 64 + 8 * (k % 8)
            L(f"ds_read_b128 v[{r}:{r+3}], v{vKA} offset:{32*k}", ('k', k))
            L(f"ds_read_b128 v[{r+4}:{r+7}], v{vKB} offset:{28*TROW + 32*k}", ('k', k))
        for k in range(7): rdk(k)
        for k in range(16):
            lg.need(('k', k))
            r = 64 + 8 * (k % 8)
            c = '0' if k == 0 else 'v[32:47]'
            A(f"v_mfma_f32_32x32x16_bf16 v[32:47], v[{r}:{r+3}], v[{r+4}:{r+7}], {c}")
            if k + 7 < 16: rdk(k + 7)
            if k == 8 and self.kd_early: self.soft_arrive(C_BUILT, vCN, 21)
            if k == 10:
                A(f"s_mov_b64 exec, 0x3fffffff")
                L(f"ds_write_b128 v{vKZ}, v[24:27] offset:4096", 'w')
                A(f"s_mov_b64 exec, -1")
        for q in range(4): A(f"v_cndmask_b32 v{32+4*q+3}, v{32+4*q+3}, v{32+4*q+2}, s[36:37]")
        for q in range(4):
            A(f"v_cvt_pk_bf16_f32 v{48+2*q}, v{32+4*q}, v{33+4*q}")
            A(f"v_cvt_pk_bf16_f32 v{49+2*q}, v{34+4*q}, v{35+4*q}")
            L(f"ds_write_b64 v{vKW}, v[{48+2*q}:{49+2*q}] offset:{512*(3-q)}", 'w')
        if not self.kd_early: self.soft_arrive(C_BUILT, vCN, 21)
        self.soft_arrive(C_U, vCN, 21)
        A.stamp('kg done')
        A(f"s_setprio 0")
        A(f"s_cmp_eq_u32 s39, 0")
        A(f"s_cbranch_scc1 Lc_built")
        A(f"s_cmp_eq_u32 s39, 2")
        A(f"s_cbranch_scc1 Lc_build")
        A(f"s_mov_b32 s31, {SPIN}")
        A.label("Lc_poll")
        A(f"s_mov_b64 exec, vcc")
        A(f"buffer_load_dwordx4 v[128:131], v20, {WS}, s33 offen sc1")
        A(f"s_mov_b64 exec, -1")
        A(f"s_waitcnt vmcnt(0)")
        u_check()
        A(f"s_sub_u32 s31, s31, 1")
        A(f"s_cbranch_scc1 Lc_poll_ok")
        A(f"s_cbranch_vccz Lc_poll_ok")
        A(f"s_sleep {self.poll_sleep}")
        A(f"s_branch Lc_poll")
        A.label("Lc_poll_ok")
        u_loads('b')
        A(f"s_branch Lc_build")
        A.label("Lc_built")
        A(f"s_waitcnt lgkmcnt(0)")
        for r in range(32, 64): A(f"v_mov_b32 v{r}, 0")
        A(f"s_setprio 0")
        self.soft_wait("l_built", C_U, 8, vCN, 21, slp=1)
        A(f"s_setprio {self.cprio}")
        A.stamp('cv built')
        def frag_ops(b, rho, i):
            T = 64 + 64 * b + 4 * i; H = 96 + 64 * b + 4 * i
            return [(f"ds_read_b128 v[{T}:{T+3}], v{vCT} offset:{512*(7-i) + 64*rho}", ('f', rho, i)),
                    (f"ds_read_b64_tr_b16 v[{H}:{H+1}], v{vCH} offset:{512*i + 64*rho}", ('f', rho, i)),
                    (f"ds_read_b64_tr_b16 v[{H+2}:{H+3}], v{vCH} offset:{512*i + 8 + 64*rho}", ('f', rho, i))]
        pend = [o for rho in range(4) for i in range(8) for o in frag_ops(rho & 1, rho, i)]
        for p in range(4):
            for c_ in range(2):
                pend.append((f"ds_read_b32 v{192+2*p+c_}, v{vUD} offset:{c_*4*CPY + 3*CPY + 24 + 256*p}", ('ud', 4, 0)))
        for o in pend[:12]: L(*o)
        pend = pend[12:]
        arrived = False
        wd = (W(3) + W(4) + W(5) + W(6)) if self.w_by_l else []
        nm = 0
        for rho in range(4):
            b = rho & 1
            for n in range(8):
                lg.need(('f', rho, n))
                pairs = [(s_, d) for s_ in range(8) for d in range(8) if s_ + d <= 7 and max(s_, d) == n]
                for (s_, d) in pairs:
                    a = 32 + 4 * (s_ + d)
                    A(f"v_mfma_f32_16x16x32_bf16 v[{a}:{a+3}], v[{96+64*b+4*s_}:{99+64*b+4*s_}], v[{64+64*b+4*d}:{67+64*b+4*d}], v[{a}:{a+3}]")
                    nm += 1
                    if wd and nm % self.w_every == 0: E(wd.pop(0))
                    if nm == self.w_cert and self.w_by_l:
                        assert not wd
                        vm.drain()
                        A(f"v_lshl_add_u32 v22, {sW}, 2, v{vCN}")
                        self.post_word(22, C_FULL, 1, 21)
                    k = 3 if (pend and pend[0][1][1] == rho) else 1
                    for _ in range(k):
                        if pend and pend[0][1][1] <= rho + 1:
                            if len(lg.q) >= 14:
                                A("s_waitcnt lgkmcnt(8)"); lg.q = lg.q[-8:]
                            L(*pend.pop(0))
                    if not pend and not arrived:
                        self.soft_arrive(C_CVD, vCN, 21); arrived = True
        A.stamp('cv loop')
        A(f"s_lshl_b32 s32, {sQ}, 14")
        A(f"s_lshl_b32 s30, {sW}, 12")
        A(f"s_add_u32 s32, s32, s30")
        A(f"s_add_u32 s32, s32, {WS_YT}")
        A(f"v_xor_b32 v23, 128, v{vPR}")
        self.soft_wait("l_cvd", C_CVD, 4, vCN, 21, slp=1)
        for a in range(8): L(f"ds_write_b128 v{vPW}, v[{32+4*a}:{35+4*a}] offset:{1024*a}", 'w')
        self.soft_arrive(C_PART, vCN, 21)
        A.stamp('_L4 partw')
        lg.need(('ud', 4, 0))
        for k in range(8):
            A(f"v_lshlrev_b32 v{200+2*k}, 16, v{192+k}")
            A(f"v_and_b32 v{201+2*k}, 0xffff0000, v{192+k}")
        self.soft_wait("l_part", C_PART, 4, vCN, 21, slp=1)
        A.stamp('_L5 parts')
        for p in range(4):
            if p == 3: lg.need(('pr', 0))
            for c_ in range(2):
                for part in range(2):
                    r = 64 + 8 * p + 4 * c_ + 2 * part
                    L(f"ds_read_b64 v[{r}:{r+1}], v{[vPR, 23][p & 1]} offset:{1024*(p >> 1) + 8192*c_ + 16384*part}", ('pr', p))
        A("s_setprio 3")
        A(f"s_movk_i32 s31, 0xff")
        for e in range(4): A(f"v_lshrrev_b32_e64 v{24+e}, {8*e}, {sTAG}")
        for p in range(4):
            lg.need(('pr', p))
            r = 64 + 8 * p; o_ = 96 + 4 * p
            for e in range(2):
                for c_ in range(2): A(f"v_add_f32 v{o_+2*e+c_}, v{r+4*c_+e}, v{r+4*c_+2+e}")
            for e in range(2):
                for c_ in range(2): A(f"v_fmac_f32 v{o_+2*e+c_}, {[sDSK, 's12'][c_]}, v{200+4*p+2*c_+e}")
            for e in range(4): A(f"v_bfi_b32 v{o_+e}, s31, v{24+e}, v{o_+e}")
            A(f"buffer_store_dwordx4 v[{o_}:{o_+3}], v20, {WS}, s32 offen offset:{1024*p} sc1")
        A.stamp('y stored')
```
